```python
import torch

def _softmax(x, axis=-1):
    return torch.softmax(x, dim=axis)
def _gelu(x):
    return torch.nn.functional.gelu(x, approximate="tanh")
def _silu(x):
    return torch.nn.functional.silu(x)
def _sigmoid(x):
    return torch.sigmoid(x)
def _layernorm(x, axis=-1, eps=1e-5):
    m = x.mean(dim=axis, keepdim=True)
    v = x.var(dim=axis, keepdim=True, unbiased=False)
    return (x - m) / torch.sqrt(v + eps)
def _scatter_add(tgt, idx, src, axis=0):
    return tgt.clone().index_add_(axis, idx, src)
def _segment_sum(src, seg, n):
    out = torch.zeros((n,) + src.shape[1:], dtype=src.dtype)
    return out.index_add_(0, seg, src)
def _pad(x, pw):
    flat = tuple(v for pair in reversed(pw) for v in pair)
    return torch.nn.functional.pad(x, flat)

kernel_name = 'sequential_preLN__spectral_gfnet__dense_activation_silu__prompt'

def setup_inputs():

    _w = (lambda a: (lambda t: t.to(torch.bfloat16) if t.is_floating_point() else t)(torch.as_tensor(a)))
    def _A_setup():
        B, S, D = 1, 2048, 512
        Df = D // 2 + 1
        return {
            "x": _w((lambda *s: torch.randn(*s, dtype=torch.bfloat16) * 0.05)(B, S, D)),
            "w_r": _w((lambda *s: torch.randn(*s, dtype=torch.bfloat16) * 0.4)(S, Df) * 0.02),
            "w_i": _w((lambda *s: torch.randn(*s, dtype=torch.bfloat16) * 0.4)(S, Df) * 0.02),
        }
    _A_in = _A_setup()

    def _B_setup():
        B, S, D, F = 1, 2048, 512, 1376
        return {
            "x": _w((lambda *s: torch.randn(*s, dtype=torch.bfloat16) * 0.05)(B, S, D)),
            "w1": _w((lambda *s: torch.randn(*s, dtype=torch.bfloat16) * 0.8)(D, F) * (D ** -0.5)),
            "w2": _w((lambda *s: torch.randn(*s, dtype=torch.bfloat16) * 0.1)(F, D) * (F ** -0.5)),
        }
    _B_in = _B_setup()

    return {
        "A_x": _A_in["x"],
        "A_w_r": _A_in["w_r"],
        "A_w_i": _A_in["w_i"],
        "B_x": _B_in["x"],
        "B_w1": _B_in["w1"],
        "B_w2": _B_in["w2"],
    }

def reference(A_x, A_w_r, A_w_i, B_x, B_w1, B_w2):
    def _A_ref(x, w_r, w_i):
        B, S, D = x.shape
        X = (lambda x, axes=(-2,-1): torch.fft.rfft2(x.float(), dim=axes))(x, axes=(-2, -1))
        W = w_r + 1j * w_i
        X = X * W
        y = (lambda x, s, axes=(-2,-1): torch.fft.irfft2(x, s=s, dim=axes).to(torch.bfloat16))(X, (S, D), axes=(-2, -1))
        return y

    def _B_ref(x, w1, w2):
        h = torch.einsum("bsd,df->bsf", x, w1)
        h = _silu(h)
        out = torch.einsum("bsf,fd->bsd", h, w2)
        return out

    x = A_x
    h = x + _A_ref(_layernorm(x, axis=-1), A_w_r, A_w_i)
    h2 = h + _B_ref(_layernorm(h, axis=-1), B_w1, B_w2)
    return h2
```

```python
import re, struct

def f2u(x):
    return struct.unpack('<I', struct.pack('<f', x))[0]
def fhex(x):
    return '0x%08x' % f2u(x)

def v(n, c=1):
    return 'v%d' % n if c == 1 else 'v[%d:%d]' % (n, n + c - 1)
def a(n, c=1):
    return 'a%d' % n if c == 1 else 'a[%d:%d]' % (n, n + c - 1)
def s(n, c=1):
    return 's%d' % n if c == 1 else 's[%d:%d]' % (n, n + c - 1)
def R(n, c=1):
    return v(n, c) if n < 256 else a(n - 256, c)

TRANS = ('v_exp_f32', 'v_log_f32', 'v_rcp_f32', 'v_rsq_f32', 'v_sqrt_f32', 'v_sin_f32', 'v_cos_f32')
REG_RE = re.compile(r'^-?\|?(?:abs\()?([vas])(?:(\d+)|\[(\d+):(\d+)\])\)?\|?$')

def regs_of(op):
    op = op.strip()
    if op in ('vcc',):
        return [('s', 106), ('s', 107)]
    if op == 'vcc_lo': return [('s', 106)]
    if op == 'vcc_hi': return [('s', 107)]
    if op == 'exec': return [('s', 126), ('s', 127)]
    if op == 'exec_lo': return [('s', 126)]
    if op == 'exec_hi': return [('s', 127)]
    if op == 'm0': return [('s', 124)]
    m = REG_RE.match(op)
    if not m:
        return []
    k = m.group(1)
    if m.group(2) is not None:
        return [(k, int(m.group(2)))]
    return [(k, i) for i in range(int(m.group(3)), int(m.group(4)) + 1)]

class Ins:
    def __init__(self, text):
        self.text = text
        t = text.split(';')[0].strip()
        self.label = t.endswith(':')
        self.directive = t.startswith('.')
        self.empty = (t == '')
        self.mn = ''
        self.w = []; self.r = []
        self.states = 0
        if self.label or self.directive or self.empty:
            return
        parts = t.split(None, 1)
        mn = parts[0]; self.mn = mn
        rest = parts[1] if len(parts) > 1 else ''
        ops = []; depth = 0; cur = ''
        for ch in rest:
            if ch in '[(': depth += 1
            if ch in '])': depth -= 1
            if ch == ',' and depth == 0:
                ops.append(cur.strip()); cur = ''
            else:
                cur += ch
        if cur.strip(): ops.append(cur.strip())
        mods = ''
        if ops:
            sp = ops[-1].split(None, 1)
            ops[-1] = sp[0]
            mods = sp[1] if len(sp) > 1 else ''
        self.ops = ops; self.mods = mods
        self.states = 1
        self.mfma = mn.startswith('v_mfma')
        self.valu = mn.startswith('v_') and not self.mfma
        self.trans = any(mn.startswith(x) for x in TRANS)
        self.dot = mn.startswith('v_dot')
        self.dpp = '_dpp' in mn or any(k in mods for k in ('row_', 'quad_perm'))
        self.perml = mn.startswith('v_permlane')
        self.rdlane = mn.startswith('v_readlane') or mn.startswith('v_readfirstlane')
        self.vmem = mn.startswith('buffer_') or mn.startswith('global_')
        self.ds = mn.startswith('ds_')
        self.salu = mn.startswith('s_')
        self.ldsdma = self.vmem and (' lds' in (' ' + mods) or 'load_lds' in mn)
        self.widestore = self.vmem and 'store' in mn and ('x4' in mn or 'x3' in mn)
        self.branch = mn.startswith('s_cbranch') or mn == 's_branch'
        R_ = [regs_of(o) for o in ops]
        if mn == 's_nop':
            self.states = int(ops[0], 0) + 1
        elif self.mfma:
            self.w = R_[0]; self.ra = R_[1]; self.rb = R_[2]; self.rc = R_[3]
            self.r = R_[1] + R_[2] + R_[3]
            self.passes = 8 if '32x32' in mn else 4
        elif self.valu:
            if self.perml:
                self.w = R_[0] + R_[1]; self.r = R_[0] + R_[1]
            elif mn.startswith('v_cmp'):
                self.w = R_[0]; self.r = sum(R_[1:], [])
            elif '_co_' in mn:
                self.w = R_[0] + R_[1]; self.r = sum(R_[2:], [])
            else:
                self.w = R_[0]; self.r = sum(R_[1:], [])
                if mn.startswith('v_fmac') or mn.startswith('v_dot2c') or self.dpp or mn.startswith('v_writelane'):
                    self.r = self.r + R_[0]
        elif self.vmem:
            if self.ldsdma:
                self.r = sum(R_, []) + [('s', 124)]
            elif 'load' in mn:
                self.w = R_[0]; self.r = sum(R_[1:], [])
            elif 'store' in mn or 'atomic' in mn:
                self.r = sum(R_, [])
                self.data = R_[0] if mn.startswith('buffer_') else R_[1]
        elif self.ds:
            if 'read' in mn or 'permute' in mn or 'swizzle' in mn:
                self.w = R_[0]; self.r = sum(R_[1:], [])
            else:
                self.r = sum(R_, [])
        elif self.salu:
            if mn.startswith('s_cmp') or mn.startswith('s_waitcnt') or self.branch or mn in ('s_barrier', 's_endpgm', 's_sleep', 's_setprio', 's_bitcmp0_b32', 's_bitcmp1_b32'):
                self.r = sum(R_, [])
            else:
                self.w = R_[0] if R_ else []; self.r = sum(R_[1:], [])
                if 'saveexec' in mn: self.w = self.w + [('s', 126), ('s', 127)]

def need(p, c):
    n = 0
    pw = set(p.w); cr = set(c.r); cw = set(c.w)
    if p.mfma:
        big = p.passes == 8
        if c.mfma:
            if pw & (set(c.ra) | set(c.rb)): n = max(n, 12 if big else 8)
            if pw & set(c.rc):
                if not (p.w == c.rc and p.passes == c.passes): n = max(n, 10 if big else 6)
            elif pw & cw:
                n = max(n, 10 if big else 6)
        elif c.valu or c.vmem or c.ds:
            if pw & (cr | cw): n = max(n, 12 if big else 8)
        if (c.valu) and set(p.rc) & cw: n = max(n, 7 if big else 3)
    elif p.valu:
        pv = set(x for x in pw if x[0] != 's'); ps = pw - pv
        if c.mfma and pv & cr: n = max(n, 2)
        if p.trans and c.valu and pv & cr: n = max(n, 1)
        if p.dot and (c.valu or c.mfma) and pv & (cr | cw):
            same_c = (c.mn == p.mn and c.valu and not (pv & set(regs_of(c.ops[1]) + regs_of(c.ops[2]))))
            if not same_c: n = max(n, 3)
        if p.dot and (c.vmem or c.ds) and pv & cr: n = max(n, 3)
        if c.valu and (c.dpp or c.perml) and pv & cr: n = max(n, 2)
        if c.valu and c.rdlane and pv & cr: n = max(n, 1)
        if ps:
            if c.valu and ps & cr: n = max(n, 4 if c.rdlane else 2)
            if c.valu and c.mn.startswith('v_cndmask') and len(c.ops) == 4 and ps & set(regs_of(c.ops[3])): n = max(n, 2)
            if c.vmem and ps & cr: n = max(n, 5)
            if c.salu and ps & cr: n = max(n, 1)
    elif p.vmem:
        if p.widestore and set(p.data) & cw: n = max(n, 2)
    elif p.salu:
        if ('s', 124) in pw and (c.vmem and c.ldsdma): n = max(n, 1)
    return n

class Asm:
    def __init__(self):
        self.lines = []
    def __call__(self, text):
        for ln in text.split('\n'):
            self.lines.append(ln.strip())
    def finish(self, stats=None):
        out = []; window = []
        nops = 0
        for ln in self.lines:
            i = Ins(ln)
            if i.label or i.directive or i.empty:
                out.append(ln if (i.label or i.directive) else ln)
                continue
            req = 0; dist = 0
            for p in reversed(window):
                k = need(p, i) - dist
                if k > req: req = k
                dist += p.states
                if dist >= 14: break
            while req > 0:
                k = min(req, 16)
                nop = Ins('s_nop %d' % (k - 1)); out.append('    s_nop %d' % (k - 1)); window.append(nop); req -= k; nops += k
            out.append('    ' + ln)
            window.append(i)
            if i.mn == 's_endpgm': window = []
            if len(window) > 20: window = window[-20:]
        if stats is not None: stats['nops'] = nops
        return '\n'.join(out) + '\n'
```

```python
from asmlib import *

XW_OFF = 0
Y_OFF  = 4 << 20
G_OFF  = 6 << 20
HR_OFF = 8 << 20
H_OFF  = 10 << 20
WS_BYTES = 17 << 20

sB, sW = 3, 4
SX, SWR, SWI, SW1, SW2, SOUT, SWS = 8, 12, 16, 20, 24, 28, 32
sT = 36
sMASK16 = 60

vTID, vN, vQ, vNF, vQF = 0, 1, 2, 3, 4

MF = 'v_mfma_f32_16x16x32_bf16'
def mfma(A, d, x, y, c=None):
    A('%s %s, %s, %s, %s' % (MF, R(d, 4), R(x, 4), R(y, 4), '0' if c is None else R(c, 4)))

def prologue(A, exit_label):
    A('s_cmp_ge_u32 s2, 256')
    A('s_cbranch_scc1 %s' % exit_label)
    for srd, off in ((SX, 0), (SWR, 8), (SWI, 16), (SW1, 32), (SW2, 40), (SOUT, 48), (SWS, 64)):
        A('s_load_dwordx2 %s, s[0:1], %d' % (s(srd, 2), off))
    A('s_and_b32 s36, s2, 7')
    A('s_lshl_b32 s36, s36, 5')
    A('s_lshr_b32 s37, s2, 3')
    A('s_or_b32 %s, s36, s37' % s(sB))
    A('v_lshrrev_b32 v5, 6, v0')
    A('v_and_b32 %s, 15, v0' % v(vN))
    A('v_readfirstlane_b32 %s, v5' % s(sW))
    A('v_bfe_u32 %s, v0, 4, 2' % v(vQ))
    for srd, nb in ((SX, 2048*1024), (SWR, 2048*514), (SWI, 2048*514), (SW1, 512*2752), (SW2, 1376*1024), (SOUT, 2048*1024), (SWS, WS_BYTES)):
        A('s_mov_b32 %s, %d' % (s(srd+2), nb))
        A('s_mov_b32 %s, 0x00020000' % s(srd+3))
    A('v_cvt_f32_u32 %s, %s' % (v(vNF), v(vN)))
    A('v_cvt_f32_u32 %s, %s' % (v(vQF), v(vQ)))
    A('s_mov_b64 %s, 0xffff' % s(sMASK16, 2))

def sincos_chain(A, ang, step, n, cdst, sdst):
    for i in range(n):
        A('v_cos_f32 %s, %s' % (v(cdst[i]), v(ang)))
        A('v_sin_f32 %s, %s' % (v(sdst[i]), v(ang)))
        if i + 1 < n:
            A('v_add_f32 %s, %s, %s' % (v(ang), v(ang), v(step)))

def cvt(A, d, lo, hi, nlo=False, nhi=False):
    f = lambda r, ng: (('-' if ng else '') + v(r)) if isinstance(r, int) else r
    A('v_cvt_pk_bf16_f32 %s, %s, %s' % (v(d), f(lo, nlo), f(hi, nhi)))

def nu_of(A, dst, k2, t0):
    A('v_lshlrev_b32 %s, 1, %s' % (v(dst), v(k2)))
    A('v_cmp_eq_u32 vcc, 0, %s' % v(k2))
    A('v_subrev_u32 %s, 15, %s' % (v(t0), v(dst)))
    A('v_cndmask_b32 %s, %s, 16, vcc' % (v(dst), v(dst)))
    A('v_cmp_gt_u32 vcc, 8, %s' % v(k2))
    A('v_cndmask_b32 %s, %s, %s, vcc' % (v(dst), v(t0), v(dst)))

def xreduce(A, regs, tmps, steps):
    for st in steps:
        if st in (1, 2, 4, 8):
            mod = {1: 'quad_perm:[1,0,3,2]', 2: 'quad_perm:[2,3,0,1]', 4: 'row_ror:4', 8: 'row_ror:8'}[st]
            for r in regs:
                A('v_add_f32_dpp %s, %s, %s %s row_mask:0xf bank_mask:0xf' % (v(r), v(r), v(r), mod))
        else:
            for r, t in zip(regs, tmps):
                A('v_mov_b32 %s, %s' % (v(t), v(r)))
            for r, t in zip(regs, tmps):
                A('v_permlane%d_swap_b32 %s, %s' % (st, v(r), v(t)))
            for r, t in zip(regs, tmps):
                A('v_add_f32 %s, %s, %s' % (v(r), v(r), v(t)))

GP = 4160

class P1:
    X = 8
    WL = 16
    CA, SA = 32, 36
    TW = 40
    BRE, BIM, BSR, BSI = 48, 52, 56, 60
    U = 64
    T = 80
    ADR = 112

def p1_loads(A):
    P = P1
    A('s_lshr_b32 s36, %s, 5' % s(sB))
    A('s_lshl_b32 s36, s36, 8')
    A('s_and_b32 s37, %s, 31' % s(sB))
    A('s_or_b32 s36, s36, s37')
    A('s_lshl_b32 s37, %s, 6' % s(sW))
    A('s_add_u32 s36, s36, s37')
    A('s_lshl_b32 s36, s36, 10')
    A('v_and_b32 v5, 1, v0')
    A('v_lshlrev_b32 v5, 15, v5')
    A('v_lshl_or_b32 v5, %s, 5, v5' % v(vQ))
    A('v_and_b32 v6, 14, v0')
    A('v_lshl_or_b32 v5, v6, 1, v5')
    A('s_waitcnt lgkmcnt(0)')
    for i in range(8):
        A('buffer_load_dword %s, v5, %s, s36 offen offset:%d' % (v(P.X+i), s(SX, 4), i*128))
    A('s_lshr_b32 s37, %s, 6' % s(sB))
    A('s_lshl_b32 s37, s37, 4')
    A('s_and_b32 s38, %s, 15' % s(sB))
    A('s_or_b32 s37, s37, s38')
    A('s_bfe_u32 s38, %s, 0x20004' % s(sB))
    A('s_lshl_b32 s38, s38, 8')
    A('s_or_b32 s37, s37, s38')
    A('s_mul_i32 s40, s37, 514')
    for io in range(1, 8):
        A('s_add_u32 %s, s40, %d' % (s(40+io), (64*(io & 3) + 1024*(io >> 2))*514))
    nu = P.ADR + 1
    nu_of(A, nu, vN, 6)
    A('v_lshrrev_b32 v6, 4, v0')
    A('v_lshl_add_u32 v7, %s, 5, v6' % v(vN))
    A('v_sub_u32 v5, 0x200, v7')
    A('v_cndmask_b32 v7, v5, v7, vcc')
    A('v_lshlrev_b32 v5, 4, %s' % v(nu))
    A('v_cmp_eq_u32 vcc, 0, v6')
    A('v_cndmask_b32 v7, v7, v5, vcc')
    A('v_lshlrev_b32 v7, 1, v7')
    for c in range(2):
        for io in range(8):
            A('buffer_load_ushort %s, v7, %s, %s offen' % (v(P.WL + 8*c + io), s((SWR, SWI)[c], 4), s(40+io)))

def p1_consts(A, sc1=1.0):
    P = P1; T = P.T; nu = P.ADR + 1
    A('v_mul_f32 v5, %s, %s' % (v(vNF), v(vQF)))
    A('v_mul_f32 v6, %s, v5' % fhex(1/32))
    A('v_mul_f32 v7, %s, %s' % (fhex(1/8), v(vNF)))
    sincos_chain(A, 6, 7, 8, [T+i for i in range(8)], [T+8+i for i in range(8)])
    for j in range(4):
        cvt(A, P.CA+j, T+2*j, T+2*j+1)
        cvt(A, P.SA+j, T+8+2*j, T+8+2*j+1, True, True)
    A('v_and_b32 v6, 1, %s' % v(vQ))
    A('v_mul_u32_u24 v6, 0x8000, v6')
    A('v_or_b32 v6, 0x3f80, v6')
    A('v_lshl_or_b32 v6, v6, 16, v6')
    A('v_cmp_eq_u32 vcc, 0, %s' % v(vN))
    for j in range(4):
        A('v_cndmask_b32 %s, %s, v6, vcc' % (v(P.SA+j), v(P.SA+j)))
    A('v_mul_f32 v6, %s, v5' % fhex(4/512))
    A('v_mul_f32 v7, %s, %s' % (fhex(1/512), v(vNF)))
    sincos_chain(A, 6, 7, 4, [P.TW+2*e for e in range(4)], [P.TW+2*e+1 for e in range(4)])
    if sc1 != 1.0:
        for e in range(8):
            A('v_mul_f32 %s, %s, %s' % (v(P.TW+e), fhex(sc1), v(P.TW+e)))
    A('v_mul_f32 v6, %s, v5' % fhex(4/16))
    A('v_mul_f32 v7, %s, %s' % (fhex(1/16), v(vNF)))
    sincos_chain(A, 6, 7, 4, [T+e for e in range(4)], [T+4+e for e in range(4)])
    A('v_and_b32 v6, 8, %s' % v(vN))
    A('v_mul_u32_u24 v6, 0x1000, v6')
    A('v_lshl_or_b32 v6, v6, 16, v6')
    for e in range(4):
        cvt(A, P.BRE+e, T+e, T+4+e)
        cvt(A, P.BIM+e, T+4+e, T+e, True, False)
    for e in range(4):
        A('v_xor_b32 %s, v6, %s' % (v(P.BIM+e), v(P.BIM+e)))
    A('v_cvt_f32_u32 v5, %s' % v(nu))
    A('v_mul_f32 v7, %s, v5' % fhex(1/32))
    A('v_mul_f32 v6, 4.0, v7')
    A('v_mul_f32 v6, v6, %s' % v(vQF))
    sincos_chain(A, 6, 7, 4, [T+e for e in range(4)], [T+4+e for e in range(4)])
    A('v_and_b32 v6, 8, %s' % v(vN))
    A('v_lshlrev_b32 v6, 1, v6')
    for e in range(4):
        cvt(A, P.BSR+e, T+e, '0')
        cvt(A, P.BSI+e, T+4+e, '0', True)
    for e in range(4):
        A('v_lshlrev_b32 %s, v6, %s' % (v(P.BSR+e), v(P.BSR+e)))
        A('v_lshlrev_b32 %s, v6, %s' % (v(P.BSI+e), v(P.BSI+e)))

def p1_addrs(A, lds):
    P = P1
    A('s_lshr_b32 s36, %s, 1' % s(sW))
    A('s_mul_i32 s36, s36, %d' % GP)
    A('s_and_b32 s37, %s, 1' % s(sW))
    A('s_lshl_b32 s37, s37, 2')
    A('s_add_u32 s36, s36, s37')
    A('s_add_u32 s36, s36, %d' % lds)
    A('v_lshl_or_b32 v5, %s, 6, %s' % (v(vQ), v(vN)))
    A('v_lshl_add_u32 %s, v5, 4, s36' % v(P.ADR+2))
    A('v_lshlrev_b32 %s, 4, v0' % v(P.ADR+3))
    A('v_and_b32 v5, 3, v0')
    A('v_mul_u32_u24 v5, %d, v5' % GP)
    A('v_lshrrev_b32 v6, 2, v0')
    A('v_lshl_add_u32 %s, v6, 4, v5' % v(P.ADR+4))
    A('s_lshl_b32 s48, %s, 14' % s(sB))
    for jj in range(1, 4):
        A('s_add_u32 %s, s48, %d' % (s(48+jj), jj*4096))

def p1_compute(A, lds, vm_after_x, vm_after_w, st_mod=''):
    P = P1; U = P.U; T = P.T
    A('s_waitcnt vmcnt(%d)' % vm_after_x)
    for i in range(8):
        A('v_lshlrev_b32 %s, 16, %s' % (v(U+i), v(P.X+i)))
        A('v_and_b32 %s, 0xffff0000, %s' % (v(U+8+i), v(P.X+i)))
    for j in range(4):
        A('v_pk_add_f32 %s, %s, %s' % (v(T+2*j, 2), v(U+2*j, 2), v(U+8+2*j, 2)))
    A('v_pk_add_f32 %s, %s, %s' % (v(T, 2), v(T, 2), v(T+2, 2)))
    A('v_pk_add_f32 %s, %s, %s' % (v(T+4, 2), v(T+4, 2), v(T+6, 2)))
    A('v_pk_add_f32 %s, %s, %s' % (v(T, 2), v(T, 2), v(T+4, 2)))
    A('v_add_f32 %s, %s, %s' % (v(T), v(T), v(T+1)))
    xreduce(A, [T], [T+1], [2, 4, 8, 16, 32])
    A('v_mul_f32 %s, %s, %s' % (v(T), fhex(1/512), v(T)))
    for j in range(8):
        A('v_pk_add_f32 %s, %s, %s op_sel_hi:[1,0] neg_lo:[0,1] neg_hi:[0,1]' % (v(U+2*j, 2), v(U+2*j, 2), v(T, 2)))
    A('v_pk_mul_f32 %s, %s, %s' % (v(T+2, 2), v(U, 2), v(U, 2)))
    A('v_pk_mul_f32 %s, %s, %s' % (v(T+4, 2), v(U+2, 2), v(U+2, 2)))
    for j in range(2, 8):
        t = T + 2 + 2*(j & 1)
        A('v_pk_fma_f32 %s, %s, %s, %s' % (v(t, 2), v(U+2*j, 2), v(U+2*j, 2), v(t, 2)))
    A('v_pk_add_f32 %s, %s, %s' % (v(T+2, 2), v(T+2, 2), v(T+4, 2)))
    A('v_add_f32 %s, %s, %s' % (v(T), v(T+2), v(T+3)))
    xreduce(A, [T], [T+1], [2, 4, 8, 16, 32])
    A('v_mov_b32 %s, %s' % (v(T+1), fhex(1e-5)))
    A('v_fmac_f32 %s, %s, %s' % (v(T+1), fhex(1/512), v(T)))
    A('v_rsq_f32 %s, %s' % (v(T), v(T+1)))
    for j in range(8):
        A('v_pk_mul_f32 %s, %s, %s op_sel_hi:[1,0]' % (v(U+2*j, 2), v(U+2*j, 2), v(T, 2)))
    FA = P.X
    for j in range(8):
        cvt(A, FA+j, U+2*j, U+2*j+1)
    D = T
    for bp in range(2):
        mfma(A, D+8*bp, FA+4*bp, P.CA)
        mfma(A, D+8*bp+4, FA+4*bp, P.SA)
    A('s_waitcnt vmcnt(%d)' % vm_after_w)
    for g in range(4):
        for h in range(2):
            lo = P.WL + 4*g + 2*h
            A('v_lshl_or_b32 %s, %s, 16, %s' % (v(P.WL+4*g+h), v(lo+1), v(lo)))
    for g in range(4):
        A('ds_write_b64 %s, %s offset:%d' % (v(P.ADR+3), v(P.WL+4*g, 2), lds + g*GP + 8))
    for e in range(4):
        bp, x = e & 1, e >> 1
        tr, ti, tw = D+8*bp+2*x, D+8*bp+4+2*x, P.TW+2*e
        re, im = U+4*e, U+4*e+2
        A('v_pk_mul_f32 %s, %s, %s op_sel_hi:[1,0]' % (v(re, 2), v(tr, 2), v(tw, 2)))
        A('v_pk_mul_f32 %s, %s, %s op_sel_hi:[1,0]' % (v(im, 2), v(ti, 2), v(tw, 2)))
        A('v_pk_fma_f32 %s, %s, %s, %s op_sel:[0,1,0] op_sel_hi:[1,1,1]' % (v(re, 2), v(ti, 2), v(tw, 2), v(re, 2)))
        A('v_pk_fma_f32 %s, %s, %s, %s op_sel:[0,1,0] op_sel_hi:[1,1,1] neg_lo:[1,0,0] neg_hi:[1,0,0]' % (v(im, 2), v(tr, 2), v(tw, 2), v(im, 2)))
    for rho in range(2):
        for e in range(4):
            cvt(A, FA+4*rho+e, U+4*e+rho, U+4*e+2+rho)
    for rho in range(2):
        mfma(A, T+16+8*rho, FA+4*rho, P.BSR)
        mfma(A, T+16+8*rho+4, FA+4*rho, P.BSI)
    for rho in range(2):
        mfma(A, T+8*rho, FA+4*rho, P.BRE)
        mfma(A, T+8*rho+4, FA+4*rho, P.BIM)
    for j in range(4):
        A('v_cndmask_b32 %s, %s, %s, %s' % (v(T+4*j), v(T+4*j), v(T+16+4*j), s(sMASK16, 2)))
    for c in range(2):
        for r in range(4):
            cvt(A, U+4*c+r, T+4*c+r, T+8+4*c+r)
    for c in range(2):
        for r in range(4):
            A('ds_write_b32 %s, %s offset:%d' % (v(P.ADR+2), v(U+4*c+r), r*256 + c*2*GP))
    A('s_waitcnt lgkmcnt(0)')
    A('s_barrier')
    for jj in range(4):
        A('ds_read_b128 %s, %s offset:%d' % (v(T+4*jj, 4), v(P.ADR+4), lds + jj*1024))
    for jj in range(4):
        A('s_waitcnt lgkmcnt(%d)' % (3-jj))
        A('buffer_store_dwordx4 %s, %s, %s, %s offen%s' % (v(T+4*jj, 4), v(P.ADR+3), s(SWS, 4), s(48+jj), st_mod))

class P2:
    C64, S64, N64 = 8, 16, 24
    C32, S32, N32 = 32, 40, 48
    TC1, TS1 = 56, 64
    TC2, TS2 = 72, 80
    F = 88
    D = 120
    ADR = 136
XC = 2048 + 64
WC = 4096 + 64

def p2_addr_loads(A):
    P = P2
    A('v_lshrrev_b32 v5, 2, v0')
    A('v_and_b32 v6, 3, v0')
    A('v_lshlrev_b32 v7, 14, v5')
    A('v_lshl_or_b32 %s, v6, 4, v7' % v(P.ADR))
    A('s_lshl_b32 s52, %s, 6' % s(sB))
    for jj in range(1, 4):
        A('s_add_u32 %s, s52, %d' % (s(52+jj), jj << 20))

def p2_loads(A, mod=''):
    P = P2
    for jj in range(4):
        A('buffer_load_dwordx4 %s, %s, %s, %s offen%s' % (v(P.F+4*jj, 4), v(P.ADR), s(SWS, 4), s(52+jj), mod))

def p2_setup(A, ldsx, ldsw, ldsq, sc2=1.0, sc3=1.0):
    P = P2; T = P.F + 16
    A('v_bfe_u32 v5, v0, 1, 1')
    A('v_and_b32 v6, 1, v0')
    A('v_lshlrev_b32 v6, 3, v6')
    A('v_bfe_u32 v7, v0, 2, 4')
    A('v_lshl_or_b32 v7, v7, 4, v6')
    A('s_and_b32 s36, %s, 1' % s(sW))
    A('s_mul_i32 s36, s36, %d' % (2*XC))
    A('s_lshr_b32 s37, %s, 1' % s(sW))
    A('s_lshl_b32 s37, s37, 8')
    A('s_add_u32 s36, s36, s37')
    A('s_add_u32 s36, s36, %d' % ldsx)
    A('v_mul_u32_u24 %s, %d, v5' % (v(P.ADR+1), XC))
    A('v_add3_u32 %s, %s, v7, s36' % (v(P.ADR+1), v(P.ADR+1)))
    A('s_lshl_b32 s36, %s, 8' % s(sW))
    A('s_add_u32 s36, s36, %d' % ldsw)
    A('v_mul_u32_u24 %s, %d, v5' % (v(P.ADR+2), WC))
    A('v_add3_u32 %s, %s, v7, s36' % (v(P.ADR+2), v(P.ADR+2)))
    A('v_and_b32 v5, 63, v0')
    A('v_lshlrev_b32 %s, 4, v5' % v(P.ADR+3))
    A('v_lshlrev_b32 %s, 4, v0' % v(P.ADR+4))
    A('v_lshrrev_b32 v5, 1, %s' % v(vQ))
    A('v_and_b32 v6, 1, %s' % v(vQ))
    A('v_lshlrev_b32 v7, 4, %s' % v(vN))
    A('v_lshl_or_b32 v7, v5, 8, v7')
    A('v_lshl_or_b32 v7, v6, 3, v7')
    A('s_lshl_b32 s36, %s, 9' % s(sW))
    A('s_add_u32 s36, s36, %d' % ldsq)
    A('v_add_u32 %s, s36, v7' % v(P.ADR+5))
    A('v_lshlrev_b32 v7, 5, %s' % v(vN))
    A('v_lshl_or_b32 v7, v5, 10, v7')
    A('v_lshl_or_b32 %s, v6, 4, v7' % v(P.ADR+6))
    A('s_lshl_b32 s56, %s, 13' % s(sB))
    A('s_lshl_b32 s36, %s, 11' % s(sW))
    A('s_add_u32 s56, s56, s36')
    A('s_add_u32 s56, s56, %d' % Y_OFF)
    SG = P.D; J = P.D + 1; W16 = P.D + 2
    A('v_and_b32 v5, 1, %s' % v(vN))
    A('v_mul_u32_u24 v5, 0x8000, v5')
    A('v_lshl_or_b32 %s, v5, 16, v5' % v(SG))
    A('s_lshl_b32 s36, %s, 4' % s(sW))
    A('v_cvt_f32_u32 %s, s36' % v(W16))
    A('v_add_f32 %s, %s, %s' % (v(J), v(W16), v(vNF)))
    A('v_mul_f32 v7, %s, %s' % (fhex(1/64), v(J)))
    A('v_mul_f32 v5, %s, %s' % (v(J), v(vQF)))
    A('v_mul_f32 v6, %s, v5' % fhex(1/8))
    sincos_chain(A, 6, 7, 8, [T+i for i in range(8)], [T+8+i for i in range(8)])
    for j in range(4):
        cvt(A, P.C64+j, T+2*j, T+2*j+1)
        cvt(A, P.S64+j, T+8+2*j, T+8+2*j+1)
        cvt(A, P.N64+j, T+8+2*j, T+8+2*j+1, True, True)
    for j in range(4):
        for base in (P.C64, P.S64, P.N64):
            A('v_xor_b32 %s, %s, %s' % (v(base+4+j), v(SG), v(base+j)))
    A('v_mul_f32 v7, %s, %s' % (fhex(1/2048), v(J)))
    A('v_mul_f32 v6, %s, v5' % fhex(4/2048))
    sincos_chain(A, 6, 7, 4, [P.TC1+r for r in range(4)], [P.TS1+r for r in range(4)])
    A('v_fmac_f32 v6, %s, v7' % fhex(13.0))
    sincos_chain(A, 6, 7, 4, [P.TC1+4+r for r in range(4)], [P.TS1+4+r for r in range(4)])
    A('v_mul_f32 v7, %s, %s' % (fhex(1/32), v(vNF)))
    A('v_mul_f32 v6, 4.0, v7')
    A('v_mul_f32 v6, v6, %s' % v(vQF))
    sincos_chain(A, 6, 7, 4, [T+i for i in range(4)], [T+4+i for i in range(4)])
    for j in range(2):
        for t in range(2):
            cvt(A, P.C32+4*t+j, T+2*j, T+2*j+1, False, t == 1)
            cvt(A, P.S32+4*t+j, T+4+2*j, T+4+2*j+1, False, t == 1)
            cvt(A, P.N32+4*t+j, T+4+2*j, T+4+2*j+1, True, t == 0)
    for j in range(2):
        for t in range(2):
            for base in (P.C32, P.S32, P.N32):
                A('v_xor_b32 %s, %s, %s' % (v(base+4*t+2+j), v(SG), v(base+4*t+j)))
    A('v_fma_f32 v5, %s, 4.0, %s' % (v(vQF), v(W16)))
    for t in range(2):
        A('v_mul_f32 v7, %s, %s' % (fhex(1/2048), v(vNF)))
        if t:
            A('v_add_f32 v7, %s, v7' % fhex(16/2048))
        A('v_mul_f32 v6, v5, v7')
        sincos_chain(A, 6, 7, 4, [P.TC2+4*t+r for r in range(4)], [P.TS2+4*t+r for r in range(4)])
    for base, sc in ((P.TC1, sc2), (P.TC2, sc3)):
        if sc != 1.0:
            for e in range(16):
                A('v_mul_f32 %s, %s, %s' % (v(base+e), fhex(sc), v(base+e)))

def cmul(A, ore, oim, xr, xi, c, sn, conj):
    neg = ' neg_lo:[1,0,0] neg_hi:[1,0,0]'
    A('v_pk_mul_f32 %s, %s, %s' % (v(ore, 2), v(xr, 2), v(c, 2)))
    A('v_pk_mul_f32 %s, %s, %s' % (v(oim, 2), v(xi, 2), v(c, 2)))
    A('v_pk_fma_f32 %s, %s, %s, %s%s' % (v(ore, 2), v(xi, 2), v(sn, 2), v(ore, 2), '' if conj else neg))
    A('v_pk_fma_f32 %s, %s, %s, %s%s' % (v(oim, 2), v(xr, 2), v(sn, 2), v(oim, 2), neg if conj else ''))

def p2_stage(A, vm_first=3):
    P = P2
    for jj in range(4):
        if vm_first is not None:
            A('s_waitcnt vmcnt(%d)' % (vm_first - jj))
        A('ds_write_b64 %s, %s offset:%d' % (v(P.ADR+1), v(P.F+4*jj, 2), (jj >> 1)*1024 + (jj & 1)*512))
        A('ds_write_b64 %s, %s offset:%d' % (v(P.ADR+2), v(P.F+4*jj+2, 2), jj*1024))
    A('s_waitcnt lgkmcnt(0)')
    A('s_barrier')

def p2_compute(A, ldsx, ldsw, ldsq, st_mod=''):
    P = P2; F = P.F; D = P.D
    fr = lambda t, c, oh: F + 16*t + 8*c + 4*oh
    for t in range(2):
        for oh in range(2):
            for c in range(2):
                A('ds_read_b128 %s, %s offset:%d' % (v(fr(t, c, oh), 4), v(P.ADR+3), ldsx + t*2*XC + c*XC + oh*1024))
    k = 0
    for t in range(2):
        dre, dim = D+8*t, D+8*t+4
        for oh in range(2):
            k += 1
            A('s_waitcnt lgkmcnt(%d)' % (9 - 2*k))
            mfma(A, dre, fr(t, 0, oh), P.C64+4*oh, dre if oh else None)
            mfma(A, dim, fr(t, 0, oh), P.N64+4*oh, dim if oh else None)
            A('s_waitcnt lgkmcnt(%d)' % (8 - 2*k))
            mfma(A, dre, fr(t, 1, oh), P.S64+4*oh, dre)
            mfma(A, dim, fr(t, 1, oh), P.C64+4*oh, dim)
    WP = F + 24
    for c in range(2):
        A('ds_read_b128 %s, %s offset:%d' % (v(WP+4*c, 4), v(P.ADR+4), ldsw + c*WC))
    T = F; UR, UI = F + 16, F + 20
    def twiddle_pack(cb, sb, conj):
        for t in range(2):
            for x in range(2):
                o = T + 8*t + 4*x
                cmul(A, o, o+2, D+8*t+2*x, D+8*t+4+2*x, cb+4*t+2*x, sb+4*t+2*x, conj)
            for x in range(2):
                o = T + 8*t + 4*x
                cvt(A, UR+2*t+x, o, o+1)
                cvt(A, UI+2*t+x, o+2, o+3)
    twiddle_pack(P.TC1, P.TS1, True)
    for t in range(2):
        dre, dim = D+8*t, D+8*t+4
        mfma(A, dre, P.C32+4*t, UR)
        mfma(A, dim, P.C32+4*t, UI)
        mfma(A, dre, P.S32+4*t, UI, dre)
        mfma(A, dim, P.N32+4*t, UR, dim)
    A('s_waitcnt lgkmcnt(0)')
    for c in range(2):
        for j in range(4):
            b = (P.TC1, P.TS1)[c] + 2*j
            A('v_lshlrev_b32 %s, 16, %s' % (v(b), v(WP+4*c+j)))
            A('v_and_b32 %s, 0xffff0000, %s' % (v(b+1), v(WP+4*c+j)))
    twiddle_pack(P.TC1, P.TS1, False)
    for t in range(2):
        dre, dim = D+8*t, D+8*t+4
        mfma(A, dre, UR, P.C32+4*t)
        mfma(A, dim, UI, P.C32+4*t)
        mfma(A, dre, UI, P.N32+4*t, dre)
        mfma(A, dim, UR, P.S32+4*t, dim)
    twiddle_pack(P.TC2, P.TS2, False)
    for t in range(2):
        for c in range(2):
            A('ds_write_b64 %s, %s offset:%d' % (v(P.ADR+5), v((UR, UI)[c]+2*t, 2), (2*t+c)*2048))
    A('s_waitcnt lgkmcnt(0)')
    A('s_barrier')
    for t in range(2):
        for oh in range(2):
            for c in range(2):
                A('ds_read_b128 %s, %s offset:%d' % (v(fr(t, c, oh), 4), v(P.ADR+3), ldsq + (2*t+c)*2048 + oh*1024))
    k = 0
    for t in range(2):
        dre, dim = D+8*t, D+8*t+4
        for oh in range(2):
            k += 1
            A('s_waitcnt lgkmcnt(%d)' % (9 - 2*k))
            mfma(A, dre, P.C64+4*oh, fr(t, 0, oh), dre if oh else None)
            mfma(A, dim, P.S64+4*oh, fr(t, 0, oh), dim if oh else None)
            A('s_waitcnt lgkmcnt(%d)' % (8 - 2*k))
            mfma(A, dre, P.N64+4*oh, fr(t, 1, oh), dre)
            mfma(A, dim, P.C64+4*oh, fr(t, 1, oh), dim)
    O = P.TC1
    for t in range(2):
        for r in range(4):
            cvt(A, O+4*t+r, D+8*t+r, D+8*t+4+r)
        A('buffer_store_dwordx4 %s, %s, %s, s56 offen offset:%d%s' % (v(O+4*t, 4), v(P.ADR+6), s(SWS, 4), t*512, st_mod))

class P3:
    BRE, BIM, BSR, BSI = 8, 12, 16, 20
    TC, TS = 24, 28
    CA = 32
    X = 40
    L = 48
    H = 56
    D = 72
    T = 104
    ADR = 120

def row_base(A, dst):
    A('s_lshr_b32 %s, %s, 5' % (s(dst), s(sB)))
    A('s_lshl_b32 %s, %s, 8' % (s(dst), s(dst)))
    A('s_and_b32 s37, %s, 31' % s(sB))
    A('s_or_b32 %s, %s, s37' % (s(dst), s(dst)))
    A('s_lshl_b32 s37, %s, 6' % s(sW))
    A('s_add_u32 %s, %s, s37' % (s(dst), s(dst)))
    A('s_lshl_b32 %s, %s, 10' % (s(dst), s(dst)))

def p3_addr_loads(A):
    P = P3
    A('v_lshrrev_b32 v5, 1, v0')
    A('v_and_b32 v6, 1, v0')
    A('v_lshlrev_b32 v7, 13, v5')
    A('v_lshl_or_b32 %s, v6, 4, v7' % v(P.ADR))
    A('v_lshlrev_b32 v5, 2, v5')
    A('v_lshl_or_b32 %s, v6, 12, v5' % v(P.ADR+1))
    A('s_lshl_b32 s52, %s, 5' % s(sB))
    A('s_add_u32 s52, s52, %d' % Y_OFF)
    A('s_add_u32 s53, s52, %d' % (128*8192))

def p3_loads(A, mod=''):
    P = P3
    for jj in range(2):
        A('buffer_load_dwordx4 %s, %s, %s, %s offen%s' % (v(P.L+4*jj, 4), v(P.ADR), s(SWS, 4), s(52+jj), mod))

def p3_xloads(A):
    P = P3
    row_base(A, 54)
    A('s_add_u32 s55, s54, 0x8000')
    A('v_lshlrev_b32 v5, 5, %s' % v(vN))
    A('v_lshl_or_b32 %s, %s, 3, v5' % (v(P.ADR+2), v(vQ)))
    for rho in range(2):
        for t in range(2):
            A('buffer_load_dwordx2 %s, %s, %s, %s offen offset:%d' % (v(P.X+4*rho+2*t, 2), v(P.ADR+2), s(SX, 4), s(54+rho), t*512))

def p3_setup(A, ldsy, sc4):
    P = P3; T = P.D
    A('v_mul_f32 v5, %s, %s' % (v(vNF), v(vQF)))
    A('v_mul_f32 v6, %s, v5' % fhex(4/16))
    A('v_mul_f32 v7, %s, %s' % (fhex(1/16), v(vNF)))
    sincos_chain(A, 6, 7, 4, [T+e for e in range(4)], [T+4+e for e in range(4)])
    A('v_lshlrev_b32 v6, 30, %s' % v(vQ))
    A('v_and_b32 v6, 0x80000000, v6')
    for e in range(4):
        cvt(A, P.BRE+e, T+e, T+4+e, False, True)
        cvt(A, P.BIM+e, T+4+e, T+e)
    for e in range(4):
        A('v_xor_b32 %s, v6, %s' % (v(P.BRE+e), v(P.BRE+e)))
        A('v_xor_b32 %s, v6, %s' % (v(P.BIM+e), v(P.BIM+e)))
    A('v_mul_f32 v6, %s, v5' % fhex(4/16))
    A('v_mul_f32 %s, %s, %s' % (v(T+8), fhex(15/32), v(vNF)))
    A('v_sub_f32 %s, v6, %s' % (v(T+8), v(T+8)))
    A('v_cmp_gt_u32 vcc, 2, %s' % v(vQ))
    A('v_cndmask_b32 v6, %s, v6, vcc' % v(T+8))
    sincos_chain(A, 6, 7, 4, [T+e for e in range(4)], [T+4+e for e in range(4)])
    for e in range(4):
        cvt(A, T+8+e, T+e, T+4+e, False, True)
    A('v_lshlrev_b32 v6, 15, %s' % v(vN))
    A('v_and_b32 v6, 0x8000, v6')
    A('v_or_b32 %s, 0x3f00, v6' % v(T+12))
    A('v_cndmask_b32 %s, %s, %s, %s' % (v(T+8), v(T+8), v(T+12), s(sMASK16, 2)))
    for e in range(4):
        A('v_cndmask_b32 %s, 0, %s, vcc' % (v(P.BSR+e), v(T+8+e)))
        A('v_cndmask_b32 %s, %s, 0, vcc' % (v(P.BSI+e), v(T+8+e)))
    A('v_or_b32 v6, 0x3f80, v6')
    A('v_lshlrev_b32 v6, 16, v6')
    A('v_or_b32 %s, 0x3f80, v6' % v(T+12))
    A('v_mul_f32 v6, %s, v5' % fhex(4/32))
    A('v_mul_f32 v7, %s, %s' % (fhex(1/32), v(vNF)))
    sincos_chain(A, 6, 7, 4, [T+e for e in range(4)], [T+4+e for e in range(4)])
    for r in range(4):
        cvt(A, P.CA+r, T+r, T+4+r, False, True)
        cvt(A, P.CA+4+r, T+r, T+4+r, (r & 1) == 1, (r & 1) == 0)
    for t in range(2):
        A('v_cndmask_b32 %s, %s, %s, %s' % (v(P.CA+4*t), v(P.CA+4*t), v(T+12), s(sMASK16, 2)))
    A('v_mul_f32 v6, %s, v5' % fhex(4/512))
    A('v_mul_f32 v7, %s, %s' % (fhex(1/512), v(vNF)))
    sincos_chain(A, 6, 7, 4, [P.TC+e for e in range(4)], [P.TS+e for e in range(4)])
    for e in range(8):
        A('v_mul_f32 %s, %s, %s' % (v(P.TC+e), fhex(sc4), v(P.TC+e)))
    A('v_lshlrev_b32 v5, 2, %s' % v(vN))
    A('v_or_b32 v5, v5, %s' % v(vQ))
    A('s_lshl_b32 s36, %s, 11' % s(sW))
    A('s_add_u32 s36, s36, %d' % ldsy)
    A('v_lshl_add_u32 %s, v5, 4, s36' % v(P.ADR+3))
    A('s_lshl_b32 s36, %s, 3' % s(sB))
    A('s_lshl_b32 s37, %s, 1' % s(sW))
    A('s_add_u32 s36, s36, s37')
    A('s_and_b32 s37, s36, 15')
    A('v_xor_b32 v5, s37, v5')
    A('v_lshlrev_b32 %s, 4, v5' % v(P.ADR+4))
    A('v_xor_b32 %s, 16, %s' % (v(P.ADR+5), v(P.ADR+4)))
    A('s_lshl_b32 s36, s36, 10')
    A('s_add_u32 s56, s36, %d' % G_OFF)
    A('s_add_u32 s57, s36, %d' % HR_OFF)

def p3_xunpack(A):
    P = P3
    for j in range(8):
        A('v_lshlrev_b32 %s, 16, %s' % (v(P.H+2*j), v(P.X+j)))
        A('v_and_b32 %s, 0xffff0000, %s' % (v(P.H+2*j+1), v(P.X+j)))

def p3_stage(A, ldsy):
    P = P3
    assert ldsy % 256 == 0
    o = ldsy // 256
    for jj in range(2):
        for e in (0, 2):
            A('ds_write2st64_b32 %s, %s, %s offset0:%d offset1:%d' % (v(P.ADR+1), v(P.L+4*jj+e), v(P.L+4*jj+e+1), o + 4*e + 2*jj, o + 4*e + 4 + 2*jj))
    A('s_waitcnt lgkmcnt(0)')
    A('s_barrier')

def p3_compute(A, st_mod=''):
    P = P3; D = P.D; T = P.T; H = P.H
    for rho in range(2):
        A('ds_read_b128 %s, %s offset:%d' % (v(P.L+4*rho, 4), v(P.ADR+3), rho*1024))
    for rho in range(2):
        A('s_waitcnt lgkmcnt(%d)' % (1-rho))
        mfma(A, D+16+8*rho, P.L+4*rho, P.BSR)
        mfma(A, D+16+8*rho+4, P.L+4*rho, P.BSI)
        mfma(A, D+8*rho, P.L+4*rho, P.BRE)
        mfma(A, D+8*rho+4, P.L+4*rho, P.BIM)
    for rho in range(2):
        for c in range(2):
            j = 8*rho + 4*c
            A('v_cndmask_b32 %s, %s, %s, %s' % (v(D+j), v(D+j), v(D+16+j), s(sMASK16, 2)))
        for x in range(2):
            o = T + 8*rho + 4*x
            cmul(A, o, o+2, D+8*rho+2*x, D+8*rho+4+2*x, P.TC+2*x, P.TS+2*x, False)
        for r in range(4):
            o = T + 8*rho + 4*(r >> 1) + (r & 1)
            cvt(A, P.L+4*rho+r, o, o+2)
        for t in range(2):
            mfma(A, H+8*rho+4*t, P.L+4*rho, P.CA+4*t, H+8*rho+4*t)
    S = [D, D+2]
    for rho in range(2):
        h = H + 8*rho; d = D + 4 + 4*rho
        A('v_pk_add_f32 %s, %s, %s' % (v(d, 2), v(h, 2), v(h+2, 2)))
        A('v_pk_add_f32 %s, %s, %s' % (v(d+2, 2), v(h+4, 2), v(h+6, 2)))
        A('v_pk_add_f32 %s, %s, %s' % (v(d, 2), v(d, 2), v(d+2, 2)))
        A('v_add_f32 %s, %s, %s' % (v(S[rho]), v(d), v(d+1)))
    HB = P.X
    for j in range(8):
        cvt(A, HB+j, H+2*j, H+2*j+1)
    xreduce(A, S, [D+1, D+3], [1, 2, 4, 8, 16, 32])
    for rho in range(2):
        A('v_mul_f32 %s, %s, %s' % (v(S[rho]), fhex(1/512), v(S[rho])))
    for rho in range(2):
        for j in range(4):
            h = H + 8*rho + 2*j
            A('v_pk_add_f32 %s, %s, %s op_sel_hi:[1,0] neg_lo:[0,1] neg_hi:[0,1]' % (v(h, 2), v(h, 2), v(S[rho], 2)))
    for rho in range(2):
        h = H + 8*rho; d = D + 4 + 4*rho
        A('v_pk_mul_f32 %s, %s, %s' % (v(d, 2), v(h, 2), v(h, 2)))
        for j in range(1, 4):
            A('v_pk_fma_f32 %s, %s, %s, %s' % (v(d, 2), v(h+2*j, 2), v(h+2*j, 2), v(d, 2)))
        A('v_add_f32 %s, %s, %s' % (v(S[rho]), v(d), v(d+1)))
    xreduce(A, S, [D+1, D+3], [1, 2, 4, 8, 16, 32])
    for rho in range(2):
        A('v_mov_b32 %s, %s' % (v(S[rho]+1), fhex(1e-5)))
        A('v_fmac_f32 %s, %s, %s' % (v(S[rho]+1), fhex(1/512), v(S[rho])))
        A('v_rsq_f32 %s, %s' % (v(S[rho]), v(S[rho]+1)))
    for rho in range(2):
        for j in range(4):
            h = H + 8*rho + 2*j
            A('v_pk_mul_f32 %s, %s, %s op_sel_hi:[1,0]' % (v(h, 2), v(h, 2), v(S[rho], 2)))
        for j in range(4):
            cvt(A, P.L+4*rho+j, H+8*rho+2*j, H+8*rho+2*j+1)
        A('buffer_store_dwordx4 %s, %s, %s, s56 offen offset:%d%s' % (v(P.L+4*rho, 4), v(P.ADR+4+rho), s(SWS, 4), rho*1024, st_mod))

def p3_hstore(A, st_mod=''):
    P = P3
    for rho in range(2):
        for t in range(2):
            A('buffer_store_dwordx2 %s, %s, %s, s57 offen offset:%d%s' % (v(P.X+4*rho+2*t, 2), v(P.ADR+2), s(SWS, 4), rho*1024 + t*512, st_mod))

def w1reg(ft, kap):
    i = 4*(16*ft + kap)
    return 144 + i if i < 112 else 256 + 176 + (i - 112)
def w2reg(dt, st):
    return 256 + 4*(4*st + dt)

def w1_addr(A, vo, va):
    A('v_and_b32 v5, 63, v0')
    for u in range(3):
        A('v_add_u32 v6, %d, v5' % (64*u))
        A('v_mul_u32_u24 v7, 0xaab, v6')
        A('v_lshrrev_b32 v7, 16, v7')
        A('v_mul_u32_u24 %s, 24, v7' % v(vo+u))
        A('v_sub_u32 v6, v6, %s' % v(vo+u))
        A('v_and_b32 %s, 6, v7' % v(vo+u))
        A('v_xor_b32 v6, v6, %s' % v(vo+u))
        A('v_mul_u32_u24 v7, 2752, v7')
        A('v_lshl_add_u32 v6, v6, 4, v7')
        A('v_subrev_u32 %s, %d, v6' % (v(vo+u), 1024*u))
    A('v_lshrrev_b32 v6, 2, v5')
    A('v_mul_u32_u24 v7, 384, v6')
    A('v_and_b32 v5, 3, v5')
    A('v_lshl_add_u32 v7, v5, 3, v7')
    A('v_bfe_u32 v6, v6, 1, 2')
    A('s_mul_i32 s36, %s, 3' % s(sW))
    for ft in range(3):
        A('s_add_u32 s37, s36, %d' % ft)
        A('v_xor_b32 v5, s37, v6')
        A('v_lshl_add_u32 %s, v5, 5, v7' % v(va+ft))

def w1_dma(A, vo, z0, z1, lds, row0):
    A('s_and_b32 s36, %s, 7' % s(sB))
    A('s_mul_i32 s36, s36, 384')
    A('s_mul_i32 s37, %s, %d' % (s(sW), 8*2752))
    A('s_add_u32 s36, s36, s37')
    A('s_add_u32 s36, s36, %d' % (32*z0*2752))
    A('s_mul_i32 s37, %s, 3072' % s(sW))
    A('s_add_u32 m0, s37, %d' % (lds + (32*z0 - row0)*384))
    for z in range(z0, z1):
        for u in range(3):
            A('buffer_load_dwordx4 %s, %s, s36 offen offset:%d lds' % (v(vo+u), s(SW1, 4), 1024*u))
        if z + 1 < z1:
            A('s_add_u32 s36, s36, %d' % (32*2752))
            A('s_add_u32 m0, m0, %d' % (32*384))

def w1_read(A, va, tmp, b0, b1, lds, row0):
    cur = 0; regs = [va, va+1, va+2]
    for b in range(b0, b1):
        off = lds + (16*b - row0)*384
        if off - cur > 65535:
            cur = off
            for ft in range(3):
                A('v_add_u32 %s, %d, %s' % (v(tmp+ft), cur, v(va+ft)))
            regs = [tmp, tmp+1, tmp+2]
        for ft in range(3):
            A('ds_read_b64_tr_b16 %s, %s offset:%d' % (R(w1reg(ft, b & 15) + 2*(b >> 4), 2), v(regs[ft]), off - cur))

def w2_addr(A, vo, va, lds, pitch):
    A('v_and_b32 v5, 63, v0')
    A('v_lshrrev_b32 v6, 3, v5')
    A('v_and_b32 v7, 2, v6')
    A('v_xor_b32 v7, v7, v5')
    A('v_and_b32 v7, 7, v7')
    A('v_lshlrev_b32 v7, 4, v7')
    A('v_lshl_or_b32 %s, v6, 10, v7' % v(vo))
    A('v_xor_b32 v7, 64, %s' % v(vo))
    A('v_add_u32 %s, %d, v7' % (v(vo+1), 7168))
    A('v_add_u32 %s, %d, %s' % (v(vo+2), 2*7168, v(vo)))
    A('v_add_u32 %s, %d, v7' % (v(vo+3), 3*7168))
    A('v_bfe_u32 v6, v5, 2, 2')
    A('v_lshl_or_b32 v6, %s, 3, v6' % v(vQ))
    A('v_and_b32 v7, 3, v5')
    A('v_lshlrev_b32 v7, 3, v7')
    A('v_lshl_or_b32 v7, v6, 7, v7')
    A('v_bfe_u32 v6, v5, 3, 2')
    A('v_lshl_or_b32 v7, v6, 5, v7')
    A('s_mul_i32 s36, %s, %d' % (s(sW), pitch))
    A('s_add_u32 s36, s36, %d' % lds)
    assert lds % 128 == 0 and pitch % 128 == 0
    A('v_add_u32 %s, s36, v7' % v(va))
    for dt in range(1, 4):
        A('v_xor_b32 %s, %d, %s' % (v(va+dt), 32*dt, v(va)))

def w2_dma(A, vo, st0, st1, lds, pitch):
    A('s_and_b32 s36, %s, 7' % s(sB))
    A('s_lshl_b32 s36, s36, 7')
    A('s_mul_i32 s37, %s, %d' % (s(sW), 11*32*1024))
    A('s_add_u32 s36, s36, s37')
    A('s_add_u32 s36, s36, %d' % (st0*32*1024))
    A('s_mul_i32 s37, %s, %d' % (s(sW), pitch))
    A('s_add_u32 m0, s37, %d' % lds)
    for st in range(st0, st1):
        for u in range(4):
            A('buffer_load_dwordx4 %s, %s, s36 offen offset:%d lds' % (v(vo+u), s(SW2, 4), 1024*u))
        if st + 1 < st1:
            A('s_add_u32 s36, s36, %d' % (32*1024))
            A('s_add_u32 m0, m0, 4096')

def w2_read(A, va, st0, st1):
    for st in range(st0, st1):
        for dt in range(4):
            for hi in range(2):
                A('ds_read_b64_tr_b16 %s, %s offset:%d' % (R(w2reg(dt, st) + 2*hi, 2), v(va+dt), (st-st0)*4096 + hi*512))

class G1:
    ACC = 8
    BF = 56
    T = 88
    O = 112
    ADR = 124

def g1_setup(A, ldsg):
    G = G1
    for k in range(4):
        A('v_or_b32 v5, %d, %s' % (4*k, v(vQ)))
        A('v_xor_b32 v5, v5, %s' % v(vN))
        A('v_lshlrev_b32 v5, 4, v5')
        A('v_lshl_or_b32 %s, %s, 10, v5' % (v(G.ADR+k), v(vN)))
        if ldsg:
            A('v_add_u32 %s, %d, %s' % (v(G.ADR+k), ldsg, v(G.ADR+k)))
    A('v_and_b32 v5, 63, v0')
    A('v_lshlrev_b32 %s, 4, v5' % v(G.ADR+4))
    A('v_and_b32 v5, 1, %s' % v(vQ))
    A('v_mul_u32_u24 v5, 49152, v5')
    A('v_lshrrev_b32 v6, 1, %s' % v(vQ))
    A('v_lshl_add_u32 v5, v6, 8, v5')
    A('v_lshl_add_u32 %s, %s, 4, v5' % (v(G.ADR+5), v(vN)))
    A('s_lshr_b32 s36, %s, 3' % s(sB))
    A('s_mul_i32 s58, s36, %d' % (4*49152))
    A('s_and_b32 s37, %s, 7' % s(sB))
    A('s_lshl_b32 s37, s37, 2')
    A('s_add_u32 s37, s37, %s' % s(sW))
    A('s_mul_i32 s37, s37, 1536')
    A('s_add_u32 s58, s58, s37')
    A('s_add_u32 s58, s58, %d' % H_OFF)
    A('s_add_u32 s59, s58, %d' % (2*49152))
    A('s_lshl_b32 s36, s36, 16')
    A('s_lshl_b32 s37, %s, 12' % s(sW))
    A('s_add_u32 s36, s36, s37')
    A('s_add_u32 s50, s36, %d' % G_OFF)
    A('s_add_u32 s51, s37, %d' % ldsg)

def g1_dma(A, mod=''):
    G = G1
    A('s_mov_b32 m0, s51')
    A('s_mov_b32 s36, s50')
    for rt in range(4):
        for u in range(4):
            A('buffer_load_dwordx4 %s, %s, s36 offen offset:%d%s lds' % (v(G.ADR+4), s(SWS, 4), 1024*u, mod))
        if rt < 3:
            A('s_add_u32 s36, s36, 16384')
            A('s_add_u32 m0, m0, 16384')

def silu_ops(rt):
    G = G1; ops = []
    for ft in range(3):
        acc = G.ACC + 12*rt + 4*ft; t = G.T + 4*ft
        for x in range(2):
            ops.append('v_pk_mul_f32 %s, %s, s[62:63]' % (v(t+2*x, 2), v(acc+2*x, 2)))
        for r in range(4):
            ops.append('v_exp_f32 %s, %s' % (v(t+r), v(t+r)))
        for x in range(2):
            ops.append('v_pk_add_f32 %s, %s, 1.0 op_sel_hi:[1,0]' % (v(t+2*x, 2), v(t+2*x, 2)))
        for r in range(4):
            ops.append('v_rcp_f32 %s, %s' % (v(t+r), v(t+r)))
        for x in range(2):
            ops.append('v_pk_mul_f32 %s, %s, %s' % (v(t+2*x, 2), v(t+2*x, 2), v(acc+2*x, 2)))
        for x in range(2):
            ops.append('v_cvt_pk_bf16_f32 %s, %s, %s' % (v(G.O+4*ft+2*(rt & 1)+x), v(t+2*x), v(t+2*x+1)))
    return ops

def hstore_ops(j, st_mod):
    G = G1; ops = []
    for ft in range(3):
        o = G.O + 4*ft
        ops.append('v_permlane16_swap_b32 %s, %s' % (v(o), v(o+2)))
        ops.append('v_permlane16_swap_b32 %s, %s' % (v(o+1), v(o+3)))
        ops.append('buffer_store_dwordx4 %s, %s, %s, %s offen offset:%d%s' % (v(o, 4), v(G.ADR+5), s(SWS, 4), s(58+j), ft*512, st_mod))
    return ops

def g1_compute(A, vm_wait, st_mod=''):
    G = G1
    A('s_mov_b32 s62, %s' % fhex(-1.4426950408889634))
    A('s_mov_b32 s63, s62')
    DEPTH = 6
    fill = []
    for rt in range(4):
        A('s_waitcnt vmcnt(%d)' % vm_wait(rt))
        A('s_barrier')
        rd = lambda k: A('ds_read_b128 %s, %s offset:%d' % (v(G.BF+4*(k & 7), 4), v(G.ADR+(k & 3)), rt*16384 + (k >> 2)*256))
        for k in range(DEPTH): rd(k)
        per = (len(fill) + 44) // 45
        for k in range(16):
            A('s_waitcnt lgkmcnt(%d)' % min(DEPTH-1, 15-k))
            for ft in range(3):
                acc = G.ACC + 12*rt + 4*ft
                mfma(A, acc, w1reg(ft, k), G.BF+4*(k & 7), acc if k else None)
                if ft == 0 and k + DEPTH < 16: rd(k + DEPTH)
                if k >= 1:
                    for _ in range(per):
                        if fill: A(fill.pop(0))
        for op in fill: A(op)
        fill = silu_ops(rt)
        if rt & 1: fill += hstore_ops(rt >> 1, st_mod)
    for op in fill: A(op)

class G2:
    ADR = 8
    HR = 16
    T = 24
    HF = 80
    ACC = 256 + 176

def g2_setup(A, ldsr):
    G = G2
    A('v_and_b32 v5, 63, v0')
    A('v_lshlrev_b32 %s, 4, v5' % v(G.ADR))
    A('s_lshr_b32 s36, %s, 3' % s(sB))
    A('s_mul_i32 s37, s36, %d' % (4*49152))
    A('s_mul_i32 s38, %s, %d' % (s(sW), 11*1024))
    A('s_add_u32 s37, s37, s38')
    A('s_add_u32 s37, s37, %d' % H_OFF)
    for tau in range(4):
        A('s_add_u32 s38, %s, %d' % (s(sW), tau))
        A('s_and_b32 s38, s38, 3')
        A('s_mul_i32 s39, s38, 49152')
        A('s_add_u32 %s, s37, s39' % s(40+tau))
        A('s_mul_i32 s39, s38, 12288')
        A('s_add_u32 s39, s39, %d' % (ldsr + max(tau-1, 0)*4096))
        A('v_add_u32 %s, s39, %s' % (v(G.ADR+1+tau), v(G.ADR)))
    A('s_lshl_b32 s37, s36, 16')
    A('s_lshl_b32 s38, %s, 14' % s(sW))
    A('s_add_u32 s37, s37, s38')
    A('s_and_b32 s38, %s, 7' % s(sB))
    A('s_lshl_b32 s38, s38, 7')
    A('s_add_u32 s37, s37, s38')
    A('s_add_u32 s44, s37, %d' % HR_OFF)
    A('v_lshlrev_b32 v5, 10, %s' % v(vN))
    A('v_lshl_or_b32 %s, %s, 3, v5' % (v(G.ADR+5), v(vQ)))
    A('s_lshr_b32 s37, %s, 5' % s(sB))
    A('s_lshl_b32 s37, s37, 8')
    A('s_and_b32 s39, %s, 24' % s(sB))
    A('s_add_u32 s37, s37, s39')
    A('s_lshl_b32 s39, %s, 1' % s(sW))
    A('s_add_u32 s37, s37, s39')
    A('s_lshl_b32 s37, s37, 10')
    A('s_add_u32 s45, s37, s38')
    A('v_and_b32 v5, 7, %s' % v(vN))
    A('v_lshlrev_b32 v5, 15, v5')
    A('v_lshrrev_b32 v6, 3, %s' % v(vN))
    A('v_lshl_or_b32 v5, v6, 10, v5')
    A('v_and_b32 v6, 1, %s' % v(vQ))
    A('v_lshl_or_b32 v5, v6, 5, v5')
    A('v_lshrrev_b32 v6, 1, %s' % v(vQ))
    A('v_lshl_or_b32 %s, v6, 4, v5' % v(G.ADR+6))

def g2_loads(A, mod=''):
    G = G2
    for st in range(11):
        if st in (4, 8):
            for tau in range(4):
                A('s_add_u32 %s, %s, 4096' % (s(40+tau), s(40+tau)))
        for tau in range(4):
            A('buffer_load_dwordx4 %s, %s, %s, %s offen offset:%d%s' % (v(G.HF+16*st+4*tau, 4), v(G.ADR), s(SWS, 4), s(40+tau), (st & 3)*1024, mod))
    for dt in range(4):
        A('buffer_load_dwordx2 %s, %s, %s, s44 offen offset:%d%s' % (v(G.HR+2*dt, 2), v(G.ADR+5), s(SWS, 4), dt*32, mod))

def g2_compute(A):
    G = G2; T = G.T
    for st in range(11):
        for tau in range(4):
            A('s_waitcnt vmcnt(%d)' % (4 + 43 - 4*st - tau))
            for dt in range(4):
                acc = G.ACC + 16*tau + 4*dt
                mfma(A, acc, w2reg(dt, st), G.HF+16*st+4*tau, acc if st else None)
    for tau in range(1, 4):
        for dt in range(4):
            A('ds_write_b128 %s, %s offset:%d' % (v(G.ADR+1+tau), R(G.ACC+16*tau+4*dt, 4), dt*1024))
    S = G.HF
    for j in range(16):
        A('v_accvgpr_read_b32 %s, %s' % (v(S+j), R(G.ACC+j)))
    A('s_waitcnt vmcnt(0)')
    for j in range(8):
        A('v_lshlrev_b32 %s, 16, %s' % (v(S+16+2*j), v(G.HR+j)))
        A('v_and_b32 %s, 0xffff0000, %s' % (v(S+16+2*j+1), v(G.HR+j)))
    for j in range(8):
        A('v_pk_add_f32 %s, %s, %s' % (v(S+2*j, 2), v(S+2*j, 2), v(S+16+2*j, 2)))
    A('s_waitcnt lgkmcnt(0)')
    A('s_barrier')
    for dt in range(4):
        for k in range(3):
            A('ds_read_b128 %s, %s offset:%d' % (v(T+12*dt+4*k, 4), v(G.ADR+1), k*4096 + dt*1024))
    O = G.HR
    for dt in range(4):
        A('s_waitcnt lgkmcnt(%d)' % (9 - 3*dt))
        t = T + 12*dt
        for x in range(2):
            A('v_pk_add_f32 %s, %s, %s' % (v(t+2*x, 2), v(t+2*x, 2), v(t+4+2*x, 2)))
            A('v_pk_add_f32 %s, %s, %s' % (v(S+4*dt+2*x, 2), v(S+4*dt+2*x, 2), v(t+8+2*x, 2)))
        for x in range(2):
            A('v_pk_add_f32 %s, %s, %s' % (v(t+2*x, 2), v(t+2*x, 2), v(S+4*dt+2*x, 2)))
        for x in range(2):
            cvt(A, O+2*dt+x, t+2*x, t+2*x+1)
        if dt & 1:
            o = O + 4*(dt >> 1)
            A('v_permlane16_swap_b32 %s, %s' % (v(o), v(o+2)))
            A('v_permlane16_swap_b32 %s, %s' % (v(o+1), v(o+3)))
            A('buffer_store_dwordx4 %s, %s, %s, s45 offen offset:%d' % (v(o, 4), v(G.ADR+6), s(SOUT, 4), (dt >> 1)*64))
```

```python
import sys
from phases import *

HEAD = open('sequential_preLN__spectral_gfnet__dense_activation_silu__prompt.s.ref').read().split('; Override')[0]

def kernel(name, body, nv=512, acc=256):
    A = Asm()
    A('.globl %s\n.p2align 8\n.type %s,@function\n%s:' % (name, name, name))
    prologue(A, 'L_%s_end' % name)
    body(A)
    A('L_%s_end:' % name)
    A('s_endpgm')
    st = {}
    txt = A.finish(st)
    kd = '''.amdhsa_kernel %s
  .amdhsa_next_free_vgpr %d
  .amdhsa_next_free_sgpr 96
  .amdhsa_accum_offset %d
  .amdhsa_group_segment_fixed_size 0
  .amdhsa_kernarg_size 72
  .amdhsa_user_sgpr_count 2
  .amdhsa_user_sgpr_kernarg_segment_ptr 1
  .amdhsa_system_sgpr_workgroup_id_x 1
.end_amdhsa_kernel
''' % (name, nv, acc)
    print(name, 'nops', st['nops'], file=sys.stderr)
    return txt, kd

def k1(A):
    p1_loads(A); p1_consts(A); p1_addrs(A, 0); p1_compute(A, 0, 16, 0)
def k2(A):
    p2_addr_loads(A); A('s_waitcnt lgkmcnt(0)'); p2_loads(A)
    p2_setup(A, 0, 8448, 16768); p2_stage(A); p2_compute(A, 0, 8448, 16768)
def k3(A):
    p3_addr_loads(A); A('s_waitcnt lgkmcnt(0)'); p3_loads(A); p3_xloads(A)
    p3_setup(A, 0, 2.0**-19)
    A('s_waitcnt vmcnt(0)')
    p3_stage(A, 0); p3_xunpack(A); p3_compute(A); p3_hstore(A)
def k4(A):
    w1_addr(A, 132, 136)
    A('s_waitcnt lgkmcnt(0)')
    w1_dma(A, 132, 0, 8, 65536, 0)
    g1_setup(A, 0)
    A('s_waitcnt vmcnt(0)'); A('s_barrier')
    w1_read(A, 136, 140, 0, 16, 65536, 0)
    A('s_waitcnt lgkmcnt(0)'); A('s_barrier')
    w1_dma(A, 132, 8, 16, 65536, 256)
    g1_dma(A)
    A('s_waitcnt vmcnt(16)'); A('s_barrier')
    w1_read(A, 136, 140, 16, 32, 65536, 256)
    A('s_waitcnt lgkmcnt(0)')
    g1_compute(A, lambda rt: [12, 8, 4, 3][rt])
def k5(A):
    w2_addr(A, 72, 76, 0, 32768)
    A('s_waitcnt lgkmcnt(0)')
    w2_dma(A, 72, 0, 8, 0, 32768)
    g2_setup(A, 0)
    A('s_waitcnt vmcnt(0)')
    w2_read(A, 76, 0, 8)
    A('s_waitcnt lgkmcnt(0)')
    w2_dma(A, 72, 8, 11, 0, 32768)
    g2_loads(A)
    A('s_waitcnt vmcnt(48)')
    w2_read(A, 76, 8, 11)
    A('s_waitcnt lgkmcnt(0)'); A('s_barrier')
    g2_compute(A)

ks = [('p1_kernel', k1, 16640, 128, 128), ('p2_kernel', k2, 24960, 144, 144), ('p3_kernel', k3, 8192, 128, 128),
      ('g1_kernel', k4, 163840, 512, 256), ('g2_kernel', k5, 131072, 512, 256)]
extra = int(sys.argv[2]) if len(sys.argv) > 2 else 0
out = HEAD
for n, f, lds, nv, acc in ks:
    out += '; @launch kernel=%s grid=(256,1,1) block=(256,1,1) lds=%d\n' % (n, lds)
for i in range(extra):
    out += '; @launch kernel=nop_kernel grid=(256,1,1) block=(256,1,1) lds=0\n'
if extra: ks.append(('nop_kernel', lambda A: None, 0, 16, 16))
out += '.amdgcn_target "amdgcn-amd-amdhsa--gfx950"\n.text\n'
kds = ''
for n, f, lds, nv, acc in ks:
    t, kd = kernel(n, f, nv, acc)
    out += t; kds += '.p2align 6\n' + kd
out += '.section .rodata,"a"\n' + kds
open(sys.argv[1], 'w').write(out)
```

```python
from asmlib import *

XW_OFF = 0
Y_OFF  = 4 << 20
G_OFF  = 6 << 20
HR_OFF = 8 << 20
H_OFF  = 10 << 20
STAMP_OFF = 16 << 20
WS_BYTES = 17 << 20

sB, sW = 3, 4
SX, SWR, SWI, SW1, SW2, SOUT, SWS = 8, 12, 16, 20, 24, 28, 32
sT = 36
sMASK16 = 60

vTID, vN, vQ, vNF, vQF = 0, 1, 2, 3, 4

MF = 'v_mfma_f32_16x16x32_bf16'
def mfma(A, d, x, y, c=None):
    A('%s %s, %s, %s, %s' % (MF, R(d, 4), R(x, 4), R(y, 4), '0' if c is None else R(c, 4)))

def prologue(A, exit_label, st=False):
    A('s_cmp_ge_u32 s2, 256')
    A('s_cbranch_scc1 %s' % exit_label)
    if st: stamp(A, 0)
    for srd, off in ((SX, 0), (SWR, 8), (SWI, 16), (SW1, 32), (SW2, 40), (SOUT, 48), (SWS, 64)):
        A('s_load_dwordx2 %s, s[0:1], %d' % (s(srd, 2), off))
    A('s_and_b32 s36, s2, 7')
    A('s_lshl_b32 s36, s36, 5')
    A('s_lshr_b32 s37, s2, 3')
    A('s_or_b32 %s, s36, s37' % s(sB))
    A('v_lshrrev_b32 v5, 6, v0')
    A('v_and_b32 %s, 15, v0' % v(vN))
    A('v_readfirstlane_b32 %s, v5' % s(sW))
    A('v_bfe_u32 %s, v0, 4, 2' % v(vQ))
    for srd, nb in ((SX, 2048*1024), (SWR, 2048*514), (SWI, 2048*514), (SW1, 512*2752), (SW2, 1376*1024), (SOUT, 2048*1024), (SWS, WS_BYTES)):
        A('s_mov_b32 %s, %d' % (s(srd+2), nb))
        A('s_mov_b32 %s, 0x00020000' % s(srd+3))
    A('v_cvt_f32_u32 %s, %s' % (v(vNF), v(vN)))
    A('v_cvt_f32_u32 %s, %s' % (v(vQF), v(vQ)))
    A('s_mov_b64 %s, 0xffff' % s(sMASK16, 2))

def sincos_chain(A, ang, step, n, cdst, sdst):
    for i in range(n):
        A('v_cos_f32 %s, %s' % (v(cdst[i]), v(ang)))
        A('v_sin_f32 %s, %s' % (v(sdst[i]), v(ang)))
        if i + 1 < n:
            A('v_add_f32 %s, %s, %s' % (v(ang), v(ang), v(step)))

def cvt(A, d, lo, hi, nlo=False, nhi=False):
    f = lambda r, ng: (('-' if ng else '') + v(r)) if isinstance(r, int) else r
    A('v_cvt_pk_bf16_f32 %s, %s, %s' % (v(d), f(lo, nlo), f(hi, nhi)))

def nu_of(A, dst, k2, t0):
    A('v_lshlrev_b32 %s, 1, %s' % (v(dst), v(k2)))
    A('v_cmp_eq_u32 vcc, 0, %s' % v(k2))
    A('v_subrev_u32 %s, 15, %s' % (v(t0), v(dst)))
    A('v_cndmask_b32 %s, %s, 16, vcc' % (v(dst), v(dst)))
    A('v_cmp_gt_u32 vcc, 8, %s' % v(k2))
    A('v_cndmask_b32 %s, %s, %s, vcc' % (v(dst), v(t0), v(dst)))

def xreduce(A, regs, tmps, steps):
    for st in steps:
        if st in (1, 2, 4, 8):
            mod = {1: 'quad_perm:[1,0,3,2]', 2: 'quad_perm:[2,3,0,1]', 4: 'row_ror:4', 8: 'row_ror:8'}[st]
            for r in regs:
                A('v_add_f32_dpp %s, %s, %s %s row_mask:0xf bank_mask:0xf' % (v(r), v(r), v(r), mod))
        else:
            for r, t in zip(regs, tmps):
                A('v_mov_b32 %s, %s' % (v(t), v(r)))
            for r, t in zip(regs, tmps):
                A('v_permlane%d_swap_b32 %s, %s' % (st, v(r), v(t)))
            for r, t in zip(regs, tmps):
                A('v_add_f32 %s, %s, %s' % (v(r), v(r), v(t)))

GP = 4416
TAGM = 0x60006000
sTAG = 5

def tagbits_s(A, dst, pos_s, tmp):
    A('s_xor_b32 %s, %s, %s' % (s(dst), s(sTAG), pos_s))
    A('s_and_b32 %s, %s, 12' % (s(tmp), s(dst)))
    A('s_lshl_b32 %s, %s, 27' % (s(tmp), s(tmp)))
    A('s_and_b32 %s, %s, 3' % (s(dst), s(dst)))
    A('s_lshl_b32 %s, %s, 13' % (s(dst), s(dst)))
    A('s_or_b32 %s, %s, %s' % (s(dst), s(dst), s(tmp)))
def tagconst(j):
    return ((j & 3) << 13) | ((j & 12) << 27)

class P1:
    X = 8
    WL = 16
    CA, SA = 24, 28
    TC, TS = 32, 36
    BRE, BIM, BSR, BSI = 40, 44, 48, 52
    U = 56
    D = 72
    T = 104
    ADR = 120
    S = 24

def p1_loads(A, ldsxs):
    P = P1
    row_base(A, 36)
    A('s_add_u32 s38, s36, %d' % (0x8000 - 1024))
    A('s_lshl_b32 s39, %s, 12' % s(sW))
    A('s_add_u32 m0, s39, %d' % ldsxs)
    A('v_and_b32 v5, 63, v0')
    A('v_lshlrev_b32 v6, 4, v5')
    A('s_waitcnt lgkmcnt(0)')
    A('buffer_load_dwordx4 v6, %s, s36 offen lds' % s(SX, 4))
    A('buffer_load_dwordx4 v6, %s, s38 offen offset:1024 lds' % s(SX, 4))
    A('s_lshr_b32 s37, %s, 6' % s(sB))
    A('s_lshl_b32 s37, s37, 4')
    A('s_and_b32 s38, %s, 15' % s(sB))
    A('s_or_b32 s37, s37, s38')
    A('s_bfe_u32 s38, %s, 0x20004' % s(sB))
    A('s_lshl_b32 s38, s38, 8')
    A('s_or_b32 s37, s37, s38')
    A('s_mul_i32 s37, s37, 514')
    A('s_lshl_b32 s38, %s, 7' % s(sW))
    A('s_add_u32 s37, s37, s38')
    A('s_add_u32 s37, s37, 2')
    A('v_bfe_u32 v6, v0, 3, 2')
    A('v_bfe_u32 v7, v0, 5, 1')
    A('v_lshl_or_b32 v6, v7, 4, v6')
    A('v_mul_u32_u24 v6, %d, v6' % (64*514))
    A('v_and_b32 v7, 7, v0')
    A('v_lshl_add_u32 v6, v7, 4, v6')
    A('s_add_u32 m0, m0, 2048')
    A('v_lshl_add_u32 %s, v5, 3, s39' % v(P.ADR))
    A('buffer_load_dwordx4 v6, %s, s37 offen lds' % s(SWR, 4))
    A('s_add_u32 m0, m0, 1024')
    A('buffer_load_dwordx4 v6, %s, s37 offen lds' % s(SWI, 4))

def p1_consts(A, sc1=1.0):
    P = P1; T = P.T
    A('v_mul_f32 v5, %s, %s' % (v(vNF), v(vQF)))
    A('v_mul_f32 v6, %s, v5' % fhex(4/32))
    A('v_mul_f32 v7, %s, %s' % (fhex(1/32), v(vNF)))
    sincos_chain(A, 6, 7, 4, [T+i for i in range(4)], [T+4+i for i in range(4)])
    A('v_and_b32 v6, 1, %s' % v(vN))
    A('v_mul_u32_u24 v6, 0x8000, v6')
    A('v_lshl_or_b32 v6, v6, 16, v6')
    A('v_mov_b32 v7, 0xbf803f80')
    A('v_cmp_eq_u32 vcc, 0, %s' % v(vN))
    for j in range(2):
        cvt(A, P.CA+j, T+2*j, T+2*j+1)
        cvt(A, P.SA+j, T+4+2*j, T+4+2*j+1, True, True)
    for j in range(2):
        A('v_cndmask_b32 %s, %s, v7, vcc' % (v(P.SA+j), v(P.SA+j)))
    A('v_mov_b32 v7, %s' % fhex(-32.0))
    A('v_cndmask_b32 %s, 0, v7, vcc' % v(P.ADR+6))
    for j in range(2):
        A('v_xor_b32 %s, v6, %s' % (v(P.CA+2+j), v(P.CA+j)))
        A('v_xor_b32 %s, v6, %s' % (v(P.SA+2+j), v(P.SA+j)))
    A('v_mul_f32 v6, %s, v5' % fhex(4/512))
    A('v_mul_f32 v7, %s, %s' % (fhex(1/512), v(vNF)))
    sincos_chain(A, 6, 7, 4, [P.TC+e for e in range(4)], [P.TS+e for e in range(4)])
    A('v_mul_f32 v6, %s, v5' % fhex(4/16))
    A('v_mul_f32 v7, %s, %s' % (fhex(1/16), v(vNF)))
    sincos_chain(A, 6, 7, 4, [T+e for e in range(4)], [T+4+e for e in range(4)])
    A('v_and_b32 v6, 8, %s' % v(vN))
    A('v_mul_u32_u24 v6, 0x1000, v6')
    A('v_lshl_or_b32 v6, v6, 16, v6')
    for e in range(4):
        cvt(A, P.BRE+e, T+e, T+4+e)
        cvt(A, P.BIM+e, T+4+e, T+e, True, False)
    for e in range(4):
        A('v_xor_b32 %s, v6, %s' % (v(P.BIM+e), v(P.BIM+e)))
    nu_of(A, 5, vN, 6)
    A('v_cvt_f32_u32 v5, v5')
    A('v_mul_f32 v7, %s, v5' % fhex(1/32))
    A('v_mul_f32 v6, 4.0, v7')
    A('v_mul_f32 v6, v6, %s' % v(vQF))
    sincos_chain(A, 6, 7, 4, [T+e for e in range(4)], [T+4+e for e in range(4)])
    A('v_and_b32 v6, 8, %s' % v(vN))
    A('v_lshlrev_b32 v6, 1, v6')
    for e in range(4):
        cvt(A, P.BSR+e, T+e, '0')
        cvt(A, P.BSI+e, T+4+e, '0', True)
    for e in range(4):
        A('v_lshlrev_b32 %s, v6, %s' % (v(P.BSR+e), v(P.BSR+e)))
        A('v_lshlrev_b32 %s, v6, %s' % (v(P.BSI+e), v(P.BSI+e)))

def p1_addrs(A, lds):
    P = P1
    A('v_bfe_u32 v5, v0, 2, 2')
    A('v_lshlrev_b32 v5, 7, v5')
    A('v_lshl_or_b32 v5, %s, 5, v5' % v(vQ))
    A('v_and_b32 v6, 3, v0')
    A('v_lshl_or_b32 v5, v6, 3, v5')
    A('s_lshl_b32 s39, %s, 12' % s(sW))
    A('v_add_u32 %s, s39, v5' % v(P.ADR+1))
    A('v_mul_u32_u24 v6, %d, v6' % GP)
    A('v_bfe_u32 v5, v0, 2, 4')
    A('v_lshl_add_u32 v5, v5, 4, v6')
    A('s_mul_i32 s36, %s, 272' % s(sW))
    A('v_add_u32 %s, s36, v5' % v(P.ADR+4))
    A('s_lshr_b32 s36, %s, 1' % s(sW))
    A('s_mul_i32 s36, s36, %d' % GP)
    A('s_and_b32 s37, %s, 1' % s(sW))
    A('s_lshl_b32 s37, s37, 2')
    A('s_add_u32 s36, s36, s37')
    A('s_add_u32 s36, s36, %d' % lds)
    A('v_mul_u32_u24 v5, 68, %s' % v(vQ))
    A('v_add_u32 v5, v5, %s' % v(vN))
    A('v_lshl_add_u32 %s, v5, 4, s36' % v(P.ADR+2))
    A('v_add_u32 v5, 1, v0')
    A('v_and_b32 v6, 31, v5')
    A('v_lshrrev_b32 v5, 5, v5')
    A('v_and_b32 v5, 7, v5')
    A('v_mad_u32_u24 v7, v6, 17, v5')
    A('v_sub_u32 %s, %d, v7' % (v(P.ADR+5), 17*32 + 15))
    A('v_cmp_gt_u32 vcc, 16, v6')
    A('v_add_u32 v5, 8, v5')
    A('v_cndmask_b32 v7, %s, v7, vcc' % v(P.ADR+5))
    A('v_cmp_eq_u32 vcc, 16, v6')
    A('v_lshlrev_b32 %s, 4, v0' % v(P.ADR+3))
    A('v_cndmask_b32 v7, v7, v5, vcc')
    A('v_lshlrev_b32 %s, 4, v7' % v(P.ADR+5))
    A('s_lshl_b32 s48, %s, 14' % s(sB))
    for jj in range(1, 4):
        A('s_add_u32 %s, s48, %d' % (s(48+jj), jj*4096))

def p1_tags(A):
    tagbits_s(A, 46, s(sW), 36)
    A('s_xor_b32 s47, s46, 0x%x' % tagconst(4))
    A('v_mov_b32 %s, 0x%x' % (v(P1.ADR+7), TAGM))

def interleave(A, main, fill, ratio=1):
    fill = list(fill)
    for op in main:
        A(op)
        for _ in range(ratio):
            if fill: A(fill.pop(0))
    for op in fill: A(op)

class Rec:
    def __init__(self): self.ops = []
    def __call__(self, t): self.ops.append(t)

def p1_compute(A, ldsxs, lds, vm_x, vm_w, sc1, st_mod='', tags=True):
    P = P1; U = P.U; T = P.T; D = P.D; X = P.X
    A('s_waitcnt vmcnt(%d)' % vm_x)
    for rho in range(2):
        for hi in range(2):
            A('ds_read_b64_tr_b16 %s, %s offset:%d' % (v(X+4*rho+2*hi, 2), v(P.ADR), ldsxs + rho*1024 + hi*512))
    for rho in range(2):
        A('s_waitcnt lgkmcnt(%d)' % (2 - 2*rho))
        mfma(A, D+8*rho, X+4*rho, P.CA)
        mfma(A, D+8*rho+4, X+4*rho, P.SA)
    for j in range(8):
        A('v_lshlrev_b32 %s, 16, %s' % (v(U+2*j), v(X+j)))
        A('v_and_b32 %s, 0xffff0000, %s' % (v(U+2*j+1), v(X+j)))
    S = [P.S, P.S+2]
    for rho in range(2):
        h = U + 8*rho; d = T + 4*rho
        A('v_pk_add_f32 %s, %s, %s' % (v(d, 2), v(h, 2), v(h+2, 2)))
        A('v_pk_add_f32 %s, %s, %s' % (v(d+2, 2), v(h+4, 2), v(h+6, 2)))
        A('v_pk_add_f32 %s, %s, %s' % (v(d, 2), v(d, 2), v(d+2, 2)))
        A('v_add_f32 %s, %s, %s' % (v(S[rho]), v(d), v(d+1)))
    A('s_waitcnt vmcnt(%d)' % vm_w)
    for g in range(4):
        A('ds_read_b64_tr_b16 %s, %s offset:%d' % (v(P.WL+2*g, 2), v(P.ADR+1), ldsxs + 2048 + g*512))
    xreduce(A, S, [P.S+1, P.S+3], [1, 2, 4, 8, 16, 32])
    for rho in range(2):
        A('v_mul_f32 %s, %s, %s' % (v(S[rho]), fhex(1/512), v(S[rho])))
    for rho in range(2):
        A('v_mul_f32 %s, %s, %s' % (v(S[rho]+1), v(S[rho]), v(P.ADR+6)))
    for rho in range(2):
        for x in range(2):
            A('v_pk_add_f32 %s, %s, %s op_sel:[0,1] op_sel_hi:[1,1]' % (v(D+8*rho+2*x, 2), v(D+8*rho+2*x, 2), v(S[rho], 2)))
        for x in range(2):
            o = T + 8*rho + 4*x
            cmul(A, o, o+2, D+8*rho+2*x, D+8*rho+4+2*x, P.TC+2*x, P.TS+2*x, True)
        for r in range(4):
            o = T + 8*rho + 4*(r >> 1) + (r & 1)
            cvt(A, X+4*rho+r, o, o+2)
    A('s_waitcnt lgkmcnt(0)')
    for g in range(4):
        A('ds_write_b64 %s, %s offset:%d' % (v(P.ADR+5), v(P.WL+2*g, 2), lds + g*GP + 8))
    M = Rec()
    for rho in range(2):
        mfma(M, D+16+8*rho, X+4*rho, P.BSR)
        mfma(M, D+16+8*rho+4, X+4*rho, P.BSI)
        mfma(M, D+8*rho, X+4*rho, P.BRE)
        mfma(M, D+8*rho+4, X+4*rho, P.BIM)
    V = Rec()
    for rho in range(2):
        for j in range(4):
            h = U + 8*rho + 2*j
            V('v_pk_add_f32 %s, %s, %s op_sel_hi:[1,0] neg_lo:[0,1] neg_hi:[0,1]' % (v(h, 2), v(h, 2), v(S[rho], 2)))
    for j in range(4):
        for rho in range(2):
            h = U + 8*rho; d = T + 4*rho
            if j == 0: V('v_pk_mul_f32 %s, %s, %s' % (v(d, 2), v(h, 2), v(h, 2)))
            else: V('v_pk_fma_f32 %s, %s, %s, %s' % (v(d, 2), v(h+2*j, 2), v(h+2*j, 2), v(d, 2)))
    for rho in range(2):
        V('v_add_f32 %s, %s, %s' % (v(S[rho]), v(T+4*rho), v(T+4*rho+1)))
    interleave(A, M.ops, V.ops, 1)
    xreduce(A, S, [P.S+1, P.S+3], [1, 2, 4, 8, 16, 32])
    for rho in range(2):
        A('v_mov_b32 %s, %s' % (v(S[rho]+1), fhex(1e-5)))
        A('v_fmac_f32 %s, %s, %s' % (v(S[rho]+1), fhex(1/512), v(S[rho])))
        A('v_rsq_f32 %s, %s' % (v(S[rho]), v(S[rho]+1)))
    for j in range(4):
        A('v_cndmask_b32 %s, %s, %s, %s' % (v(D+4*j), v(D+4*j), v(D+16+4*j), s(sMASK16, 2)))
    if sc1 != 1.0:
        for rho in range(2):
            A('v_mul_f32 %s, %s, %s' % (v(S[rho]), fhex(sc1), v(S[rho])))
    for c in range(2):
        for x in range(2):
            for rho in range(2):
                d = D + 8*rho + 4*c + 2*x
                A('v_pk_mul_f32 %s, %s, %s op_sel_hi:[1,0]' % (v(d, 2), v(d, 2), v(S[rho], 2)))
            for r in (2*x, 2*x+1):
                cvt(A, U+4*c+r, D+4*c+r, D+8+4*c+r)
            for r in (2*x, 2*x+1):
                if tags: A('v_bfi_b32 %s, %s, %s, %s' % (v(U+4*c+r), v(P.ADR+7), s(46+c), v(U+4*c+r)))
            for r in (2*x, 2*x+1):
                A('ds_write_b32 %s, %s offset:%d' % (v(P.ADR+2), v(U+4*c+r), r*272 + c*2*GP))
    A('s_waitcnt lgkmcnt(0)')
    A('s_barrier')
    for jj in range(4):
        A('ds_read_b128 %s, %s offset:%d' % (v(D+4*jj, 4), v(P.ADR+4), lds + jj*68*16))
    for jj in range(4):
        A('s_waitcnt lgkmcnt(%d)' % (3-jj))
        A('buffer_store_dwordx4 %s, %s, %s, %s offen%s' % (v(D+4*jj, 4), v(P.ADR+3), s(SWS, 4), s(48+jj), st_mod))

class P2:
    C64, S64, N64 = 8, 16, 24
    C32, S32, N32 = 32, 40, 48
    TC1, TS1 = 56, 64
    TC2, TS2 = 72, 80
    F = 88
    D = 120
    ADR = 136
XC = 2048 + 64
WC = 4096 + 64

def p2_addr_loads(A):
    P = P2
    A('v_lshrrev_b32 v5, 2, v0')
    A('v_and_b32 v6, 3, v0')
    A('v_lshlrev_b32 v7, 14, v5')
    A('v_lshl_or_b32 %s, v6, 4, v7' % v(P.ADR))
    A('s_lshl_b32 s52, %s, 6' % s(sB))
    for jj in range(1, 4):
        A('s_add_u32 %s, s52, %d' % (s(52+jj), jj << 20))

def p2_loads(A, mod=''):
    P = P2
    for jj in range(4):
        A('buffer_load_dwordx4 %s, %s, %s, %s offen%s' % (v(P.F+4*jj, 4), v(P.ADR), s(SWS, 4), s(52+jj), mod))

def p2_setup(A, ldsx, ldsw, ldsq, sc2=1.0, sc3=1.0):
    P = P2; T = P.F + 16
    A('v_bfe_u32 v5, v0, 1, 1')
    A('v_and_b32 v6, 1, v0')
    A('v_lshlrev_b32 v6, 3, v6')
    A('v_bfe_u32 v7, v0, 2, 4')
    A('v_lshl_or_b32 v7, v7, 4, v6')
    A('s_and_b32 s36, %s, 1' % s(sW))
    A('s_mul_i32 s36, s36, %d' % (2*XC))
    A('s_lshr_b32 s37, %s, 1' % s(sW))
    A('s_lshl_b32 s37, s37, 8')
    A('s_add_u32 s36, s36, s37')
    A('s_add_u32 s36, s36, %d' % ldsx)
    A('v_mul_u32_u24 %s, %d, v5' % (v(P.ADR+1), XC))
    A('v_add3_u32 %s, %s, v7, s36' % (v(P.ADR+1), v(P.ADR+1)))
    A('s_lshl_b32 s36, %s, 8' % s(sW))
    A('s_add_u32 s36, s36, %d' % ldsw)
    A('v_mul_u32_u24 %s, %d, v5' % (v(P.ADR+2), WC))
    A('v_add3_u32 %s, %s, v7, s36' % (v(P.ADR+2), v(P.ADR+2)))
    A('v_and_b32 v5, 63, v0')
    A('v_lshlrev_b32 %s, 4, v5' % v(P.ADR+3))
    A('v_lshlrev_b32 %s, 4, v0' % v(P.ADR+4))
    A('v_lshrrev_b32 v5, 1, %s' % v(vQ))
    A('v_and_b32 v6, 1, %s' % v(vQ))
    A('v_lshlrev_b32 v7, 4, %s' % v(vN))
    A('v_lshl_or_b32 v7, v5, 8, v7')
    A('v_lshl_or_b32 v7, v6, 3, v7')
    A('s_lshl_b32 s36, %s, 9' % s(sW))
    A('s_add_u32 s36, s36, %d' % ldsq)
    A('v_add_u32 %s, s36, v7' % v(P.ADR+5))
    A('v_lshlrev_b32 v7, 5, %s' % v(vN))
    A('v_lshl_or_b32 v7, v5, 10, v7')
    A('v_lshl_or_b32 %s, v6, 4, v7' % v(P.ADR+6))
    A('s_lshl_b32 s56, %s, 13' % s(sB))
    A('s_lshl_b32 s36, %s, 11' % s(sW))
    A('s_add_u32 s56, s56, s36')
    A('s_add_u32 s56, s56, %d' % Y_OFF)
    SG = P.D; J = P.D + 1; W16 = P.D + 2
    A('v_and_b32 v5, 1, %s' % v(vN))
    A('v_mul_u32_u24 v5, 0x8000, v5')
    A('v_lshl_or_b32 %s, v5, 16, v5' % v(SG))
    A('s_lshl_b32 s36, %s, 4' % s(sW))
    A('v_cvt_f32_u32 %s, s36' % v(W16))
    A('v_add_f32 %s, %s, %s' % (v(J), v(W16), v(vNF)))
    A('v_mul_f32 v7, %s, %s' % (fhex(1/64), v(J)))
    A('v_mul_f32 v5, %s, %s' % (v(J), v(vQF)))
    A('v_mul_f32 v6, %s, v5' % fhex(1/8))
    sincos_chain(A, 6, 7, 8, [T+i for i in range(8)], [T+8+i for i in range(8)])
    for j in range(4):
        cvt(A, P.C64+j, T+2*j, T+2*j+1)
        cvt(A, P.S64+j, T+8+2*j, T+8+2*j+1)
        cvt(A, P.N64+j, T+8+2*j, T+8+2*j+1, True, True)
    for j in range(4):
        for base in (P.C64, P.S64, P.N64):
            A('v_xor_b32 %s, %s, %s' % (v(base+4+j), v(SG), v(base+j)))
    A('v_mul_f32 v7, %s, %s' % (fhex(1/2048), v(J)))
    A('v_mul_f32 v6, %s, v5' % fhex(4/2048))
    sincos_chain(A, 6, 7, 4, [P.TC1+r for r in range(4)], [P.TS1+r for r in range(4)])
    A('v_fmac_f32 v6, %s, v7' % fhex(13.0))
    sincos_chain(A, 6, 7, 4, [P.TC1+4+r for r in range(4)], [P.TS1+4+r for r in range(4)])
    A('v_mul_f32 v7, %s, %s' % (fhex(1/32), v(vNF)))
    A('v_mul_f32 v6, 4.0, v7')
    A('v_mul_f32 v6, v6, %s' % v(vQF))
    sincos_chain(A, 6, 7, 4, [T+i for i in range(4)], [T+4+i for i in range(4)])
    for j in range(2):
        for t in range(2):
            cvt(A, P.C32+4*t+j, T+2*j, T+2*j+1, False, t == 1)
            cvt(A, P.S32+4*t+j, T+4+2*j, T+4+2*j+1, False, t == 1)
            cvt(A, P.N32+4*t+j, T+4+2*j, T+4+2*j+1, True, t == 0)
    for j in range(2):
        for t in range(2):
            for base in (P.C32, P.S32, P.N32):
                A('v_xor_b32 %s, %s, %s' % (v(base+4*t+2+j), v(SG), v(base+4*t+j)))
    A('v_fma_f32 v5, %s, 4.0, %s' % (v(vQF), v(W16)))
    for t in range(2):
        A('v_mul_f32 v7, %s, %s' % (fhex(1/2048), v(vNF)))
        if t:
            A('v_add_f32 v7, %s, v7' % fhex(16/2048))
        A('v_mul_f32 v6, v5, v7')
        sincos_chain(A, 6, 7, 4, [P.TC2+4*t+r for r in range(4)], [P.TS2+4*t+r for r in range(4)])
    for base, sc in ((P.TC1, sc2), (P.TC2, sc3)):
        if sc != 1.0:
            for e in range(16):
                A('v_mul_f32 %s, %s, %s' % (v(base+e), fhex(sc), v(base+e)))

def cmul(A, ore, oim, xr, xi, c, sn, conj):
    neg = ' neg_lo:[1,0,0] neg_hi:[1,0,0]'
    A('v_pk_mul_f32 %s, %s, %s' % (v(ore, 2), v(xr, 2), v(c, 2)))
    A('v_pk_mul_f32 %s, %s, %s' % (v(oim, 2), v(xi, 2), v(c, 2)))
    A('v_pk_fma_f32 %s, %s, %s, %s%s' % (v(ore, 2), v(xi, 2), v(sn, 2), v(ore, 2), '' if conj else neg))
    A('v_pk_fma_f32 %s, %s, %s, %s%s' % (v(oim, 2), v(xr, 2), v(sn, 2), v(oim, 2), neg if conj else ''))

def p2_stage(A, vm_first=3):
    P = P2
    for jj in range(4):
        if vm_first is not None:
            A('s_waitcnt vmcnt(%d)' % (vm_first - jj))
        A('ds_write_b64 %s, %s offset:%d' % (v(P.ADR+1), v(P.F+4*jj, 2), (jj >> 1)*1024 + (jj & 1)*512))
        A('ds_write_b64 %s, %s offset:%d' % (v(P.ADR+2), v(P.F+4*jj+2, 2), jj*1024))
    A('s_waitcnt lgkmcnt(0)')
    A('s_barrier')

def p2_compute(A, ldsx, ldsw, ldsq, st_mod=''):
    P = P2; F = P.F; D = P.D
    fr = lambda t, c, oh: F + 16*t + 8*c + 4*oh
    for t in range(2):
        for oh in range(2):
            for c in range(2):
                A('ds_read_b128 %s, %s offset:%d' % (v(fr(t, c, oh), 4), v(P.ADR+3), ldsx + t*2*XC + c*XC + oh*1024))
    k = 0
    for t in range(2):
        dre, dim = D+8*t, D+8*t+4
        for oh in range(2):
            k += 1
            A('s_waitcnt lgkmcnt(%d)' % (9 - 2*k))
            mfma(A, dre, fr(t, 0, oh), P.C64+4*oh, dre if oh else None)
            mfma(A, dim, fr(t, 0, oh), P.N64+4*oh, dim if oh else None)
            A('s_waitcnt lgkmcnt(%d)' % (8 - 2*k))
            mfma(A, dre, fr(t, 1, oh), P.S64+4*oh, dre)
            mfma(A, dim, fr(t, 1, oh), P.C64+4*oh, dim)
    WP = F + 24
    for c in range(2):
        A('ds_read_b128 %s, %s offset:%d' % (v(WP+4*c, 4), v(P.ADR+4), ldsw + c*WC))
    T = F; UR, UI = F + 16, F + 20
    def twiddle_pack(cb, sb, conj):
        for t in range(2):
            for x in range(2):
                o = T + 8*t + 4*x
                cmul(A, o, o+2, D+8*t+2*x, D+8*t+4+2*x, cb+4*t+2*x, sb+4*t+2*x, conj)
            for x in range(2):
                o = T + 8*t + 4*x
                cvt(A, UR+2*t+x, o, o+1)
                cvt(A, UI+2*t+x, o+2, o+3)
    twiddle_pack(P.TC1, P.TS1, True)
    for t in range(2):
        dre, dim = D+8*t, D+8*t+4
        mfma(A, dre, P.C32+4*t, UR)
        mfma(A, dim, P.C32+4*t, UI)
        mfma(A, dre, P.S32+4*t, UI, dre)
        mfma(A, dim, P.N32+4*t, UR, dim)
    A('s_waitcnt lgkmcnt(0)')
    for c in range(2):
        for j in range(4):
            b = (P.TC1, P.TS1)[c] + 2*j
            A('v_lshlrev_b32 %s, 16, %s' % (v(b), v(WP+4*c+j)))
            A('v_and_b32 %s, 0xffff0000, %s' % (v(b+1), v(WP+4*c+j)))
    twiddle_pack(P.TC1, P.TS1, False)
    for t in range(2):
        dre, dim = D+8*t, D+8*t+4
        mfma(A, dre, UR, P.C32+4*t)
        mfma(A, dim, UI, P.C32+4*t)
        mfma(A, dre, UI, P.N32+4*t, dre)
        mfma(A, dim, UR, P.S32+4*t, dim)
    twiddle_pack(P.TC2, P.TS2, False)
    for t in range(2):
        for c in range(2):
            A('ds_write_b64 %s, %s offset:%d' % (v(P.ADR+5), v((UR, UI)[c]+2*t, 2), (2*t+c)*2048))
    A('s_waitcnt lgkmcnt(0)')
    A('s_barrier')
    for t in range(2):
        for oh in range(2):
            for c in range(2):
                A('ds_read_b128 %s, %s offset:%d' % (v(fr(t, c, oh), 4), v(P.ADR+3), ldsq + (2*t+c)*2048 + oh*1024))
    k = 0
    for t in range(2):
        dre, dim = D+8*t, D+8*t+4
        for oh in range(2):
            k += 1
            A('s_waitcnt lgkmcnt(%d)' % (9 - 2*k))
            mfma(A, dre, P.C64+4*oh, fr(t, 0, oh), dre if oh else None)
            mfma(A, dim, P.S64+4*oh, fr(t, 0, oh), dim if oh else None)
            A('s_waitcnt lgkmcnt(%d)' % (8 - 2*k))
            mfma(A, dre, P.N64+4*oh, fr(t, 1, oh), dre)
            mfma(A, dim, P.C64+4*oh, fr(t, 1, oh), dim)
    O = P.TC1
    for t in range(2):
        for r in range(4):
            cvt(A, O+4*t+r, D+8*t+r, D+8*t+4+r)
        A('buffer_store_dwordx4 %s, %s, %s, s56 offen offset:%d%s' % (v(O+4*t, 4), v(P.ADR+6), s(SWS, 4), t*512, st_mod))

class P3:
    BRE, BIM, BSR, BSI = 8, 12, 16, 20
    TC, TS = 24, 28
    CA = 32
    X = 40
    L = 48
    H = 56
    D = 72
    T = 104
    ADR = 120

def row_base(A, dst):
    A('s_lshr_b32 %s, %s, 5' % (s(dst), s(sB)))
    A('s_lshl_b32 %s, %s, 8' % (s(dst), s(dst)))
    A('s_and_b32 s37, %s, 31' % s(sB))
    A('s_or_b32 %s, %s, s37' % (s(dst), s(dst)))
    A('s_lshl_b32 s37, %s, 6' % s(sW))
    A('s_add_u32 %s, %s, s37' % (s(dst), s(dst)))
    A('s_lshl_b32 %s, %s, 10' % (s(dst), s(dst)))

def p3_addr_loads(A):
    P = P3
    A('v_lshrrev_b32 v5, 1, v0')
    A('v_and_b32 v6, 1, v0')
    A('v_lshlrev_b32 v7, 13, v5')
    A('v_lshl_or_b32 %s, v6, 4, v7' % v(P.ADR))
    A('v_lshlrev_b32 v5, 2, v5')
    A('v_lshl_or_b32 %s, v6, 12, v5' % v(P.ADR+1))
    A('s_lshl_b32 s52, %s, 5' % s(sB))
    A('s_add_u32 s52, s52, %d' % Y_OFF)
    A('s_add_u32 s53, s52, %d' % (128*8192))

def p3_loads(A, mod=''):
    P = P3
    for jj in range(2):
        A('buffer_load_dwordx4 %s, %s, %s, %s offen%s' % (v(P.L+4*jj, 4), v(P.ADR), s(SWS, 4), s(52+jj), mod))

def p3_xloads(A):
    P = P3
    row_base(A, 54)
    A('s_add_u32 s55, s54, 0x8000')
    A('v_lshlrev_b32 v5, 5, %s' % v(vN))
    A('v_lshl_or_b32 %s, %s, 3, v5' % (v(P.ADR+2), v(vQ)))
    for rho in range(2):
        for t in range(2):
            A('buffer_load_dwordx2 %s, %s, %s, %s offen offset:%d' % (v(P.X+4*rho+2*t, 2), v(P.ADR+2), s(SX, 4), s(54+rho), t*512))

def p3_setup(A, ldsy, sc4):
    P = P3; T = P.D
    A('v_mul_f32 v5, %s, %s' % (v(vNF), v(vQF)))
    A('v_mul_f32 v6, %s, v5' % fhex(4/16))
    A('v_mul_f32 v7, %s, %s' % (fhex(1/16), v(vNF)))
    sincos_chain(A, 6, 7, 4, [T+e for e in range(4)], [T+4+e for e in range(4)])
    A('v_lshlrev_b32 v6, 30, %s' % v(vQ))
    A('v_and_b32 v6, 0x80000000, v6')
    for e in range(4):
        cvt(A, P.BRE+e, T+e, T+4+e, False, True)
        cvt(A, P.BIM+e, T+4+e, T+e)
    for e in range(4):
        A('v_xor_b32 %s, v6, %s' % (v(P.BRE+e), v(P.BRE+e)))
        A('v_xor_b32 %s, v6, %s' % (v(P.BIM+e), v(P.BIM+e)))
    A('v_mul_f32 v6, %s, v5' % fhex(4/16))
    A('v_mul_f32 %s, %s, %s' % (v(T+8), fhex(15/32), v(vNF)))
    A('v_sub_f32 %s, v6, %s' % (v(T+8), v(T+8)))
    A('v_cmp_gt_u32 vcc, 2, %s' % v(vQ))
    A('v_cndmask_b32 v6, %s, v6, vcc' % v(T+8))
    sincos_chain(A, 6, 7, 4, [T+e for e in range(4)], [T+4+e for e in range(4)])
    for e in range(4):
        cvt(A, T+8+e, T+e, T+4+e, False, True)
    A('v_lshlrev_b32 v6, 15, %s' % v(vN))
    A('v_and_b32 v6, 0x8000, v6')
    A('v_or_b32 %s, 0x3f00, v6' % v(T+12))
    A('v_cndmask_b32 %s, %s, %s, %s' % (v(T+8), v(T+8), v(T+12), s(sMASK16, 2)))
    for e in range(4):
        A('v_cndmask_b32 %s, 0, %s, vcc' % (v(P.BSR+e), v(T+8+e)))
        A('v_cndmask_b32 %s, %s, 0, vcc' % (v(P.BSI+e), v(T+8+e)))
    A('v_or_b32 v6, 0x3f80, v6')
    A('v_lshlrev_b32 v6, 16, v6')
    A('v_or_b32 %s, 0x3f80, v6' % v(T+12))
    A('v_mul_f32 v6, %s, v5' % fhex(4/32))
    A('v_mul_f32 v7, %s, %s' % (fhex(1/32), v(vNF)))
    sincos_chain(A, 6, 7, 4, [T+e for e in range(4)], [T+4+e for e in range(4)])
    for r in range(4):
        cvt(A, P.CA+r, T+r, T+4+r, False, True)
        cvt(A, P.CA+4+r, T+r, T+4+r, (r & 1) == 1, (r & 1) == 0)
    for t in range(2):
        A('v_cndmask_b32 %s, %s, %s, %s' % (v(P.CA+4*t), v(P.CA+4*t), v(T+12), s(sMASK16, 2)))
    A('v_mul_f32 v6, %s, v5' % fhex(4/512))
    A('v_mul_f32 v7, %s, %s' % (fhex(1/512), v(vNF)))
    sincos_chain(A, 6, 7, 4, [P.TC+e for e in range(4)], [P.TS+e for e in range(4)])
    for e in range(8):
        A('v_mul_f32 %s, %s, %s' % (v(P.TC+e), fhex(sc4), v(P.TC+e)))
    A('v_lshlrev_b32 v5, 2, %s' % v(vN))
    A('v_or_b32 v5, v5, %s' % v(vQ))
    A('s_lshl_b32 s36, %s, 11' % s(sW))
    A('s_add_u32 s36, s36, %d' % ldsy)
    A('v_lshl_add_u32 %s, v5, 4, s36' % v(P.ADR+3))
    A('s_lshl_b32 s36, %s, 3' % s(sB))
    A('s_lshl_b32 s37, %s, 1' % s(sW))
    A('s_add_u32 s36, s36, s37')
    A('s_and_b32 s37, s36, 15')
    A('v_xor_b32 v5, s37, v5')
    A('v_lshlrev_b32 %s, 4, v5' % v(P.ADR+4))
    A('v_xor_b32 %s, 16, %s' % (v(P.ADR+5), v(P.ADR+4)))
    A('s_lshl_b32 s36, s36, 10')
    A('s_add_u32 s56, s36, %d' % G_OFF)
    A('s_add_u32 s57, s36, %d' % HR_OFF)

def p3_xunpack(A):
    P = P3
    for j in range(8):
        A('v_lshlrev_b32 %s, 16, %s' % (v(P.H+2*j), v(P.X+j)))
        A('v_and_b32 %s, 0xffff0000, %s' % (v(P.H+2*j+1), v(P.X+j)))

def p3_stage(A, ldsy):
    P = P3
    assert ldsy % 256 == 0
    o = ldsy // 256
    for jj in range(2):
        for e in (0, 2):
            A('ds_write2st64_b32 %s, %s, %s offset0:%d offset1:%d' % (v(P.ADR+1), v(P.L+4*jj+e), v(P.L+4*jj+e+1), o + 4*e + 2*jj, o + 4*e + 4 + 2*jj))
    A('s_waitcnt lgkmcnt(0)')
    A('s_barrier')

def p3_compute(A, st_mod=''):
    P = P3; D = P.D; T = P.T; H = P.H
    for rho in range(2):
        A('ds_read_b128 %s, %s offset:%d' % (v(P.L+4*rho, 4), v(P.ADR+3), rho*1024))
    for rho in range(2):
        A('s_waitcnt lgkmcnt(%d)' % (1-rho))
        mfma(A, D+16+8*rho, P.L+4*rho, P.BSR)
        mfma(A, D+16+8*rho+4, P.L+4*rho, P.BSI)
        mfma(A, D+8*rho, P.L+4*rho, P.BRE)
        mfma(A, D+8*rho+4, P.L+4*rho, P.BIM)
    for rho in range(2):
        for c in range(2):
            j = 8*rho + 4*c
            A('v_cndmask_b32 %s, %s, %s, %s' % (v(D+j), v(D+j), v(D+16+j), s(sMASK16, 2)))
        for x in range(2):
            o = T + 8*rho + 4*x
            cmul(A, o, o+2, D+8*rho+2*x, D+8*rho+4+2*x, P.TC+2*x, P.TS+2*x, False)
        for r in range(4):
            o = T + 8*rho + 4*(r >> 1) + (r & 1)
            cvt(A, P.L+4*rho+r, o, o+2)
        for t in range(2):
            mfma(A, H+8*rho+4*t, P.L+4*rho, P.CA+4*t, H+8*rho+4*t)
    S = [D, D+2]
    for rho in range(2):
        h = H + 8*rho; d = D + 4 + 4*rho
        A('v_pk_add_f32 %s, %s, %s' % (v(d, 2), v(h, 2), v(h+2, 2)))
        A('v_pk_add_f32 %s, %s, %s' % (v(d+2, 2), v(h+4, 2), v(h+6, 2)))
        A('v_pk_add_f32 %s, %s, %s' % (v(d, 2), v(d, 2), v(d+2, 2)))
        A('v_add_f32 %s, %s, %s' % (v(S[rho]), v(d), v(d+1)))
    HB = P.X
    for j in range(8):
        cvt(A, HB+j, H+2*j, H+2*j+1)
    xreduce(A, S, [D+1, D+3], [1, 2, 4, 8, 16, 32])
    for rho in range(2):
        A('v_mul_f32 %s, %s, %s' % (v(S[rho]), fhex(1/512), v(S[rho])))
    for rho in range(2):
        for j in range(4):
            h = H + 8*rho + 2*j
            A('v_pk_add_f32 %s, %s, %s op_sel_hi:[1,0] neg_lo:[0,1] neg_hi:[0,1]' % (v(h, 2), v(h, 2), v(S[rho], 2)))
    for rho in range(2):
        h = H + 8*rho; d = D + 4 + 4*rho
        A('v_pk_mul_f32 %s, %s, %s' % (v(d, 2), v(h, 2), v(h, 2)))
        for j in range(1, 4):
            A('v_pk_fma_f32 %s, %s, %s, %s' % (v(d, 2), v(h+2*j, 2), v(h+2*j, 2), v(d, 2)))
        A('v_add_f32 %s, %s, %s' % (v(S[rho]), v(d), v(d+1)))
    xreduce(A, S, [D+1, D+3], [1, 2, 4, 8, 16, 32])
    for rho in range(2):
        A('v_mov_b32 %s, %s' % (v(S[rho]+1), fhex(1e-5)))
        A('v_fmac_f32 %s, %s, %s' % (v(S[rho]+1), fhex(1/512), v(S[rho])))
        A('v_rsq_f32 %s, %s' % (v(S[rho]), v(S[rho]+1)))
    for rho in range(2):
        for j in range(4):
            h = H + 8*rho + 2*j
            A('v_pk_mul_f32 %s, %s, %s op_sel_hi:[1,0]' % (v(h, 2), v(h, 2), v(S[rho], 2)))
        for j in range(4):
            cvt(A, P.L+4*rho+j, H+8*rho+2*j, H+8*rho+2*j+1)
        A('buffer_store_dwordx4 %s, %s, %s, s56 offen offset:%d%s' % (v(P.L+4*rho, 4), v(P.ADR+4+rho), s(SWS, 4), rho*1024, st_mod))

def p3_hstore(A, st_mod=''):
    P = P3
    for rho in range(2):
        for t in range(2):
            A('buffer_store_dwordx2 %s, %s, %s, s57 offen offset:%d%s' % (v(P.X+4*rho+2*t, 2), v(P.ADR+2), s(SWS, 4), rho*1024 + t*512, st_mod))

def w1reg(ft, kap):
    i = 4*(16*ft + kap)
    return 144 + i if i < 112 else 256 + 176 + (i - 112)
def w2reg(dt, st):
    return 256 + 4*(4*st + dt)

def w1_addr(A, vo, va):
    A('v_and_b32 v5, 63, v0')
    for u in range(3):
        A('v_add_u32 v6, %d, v5' % (64*u))
        A('v_mul_u32_u24 v7, 0xaab, v6')
        A('v_lshrrev_b32 v7, 16, v7')
        A('v_mul_u32_u24 %s, 24, v7' % v(vo+u))
        A('v_sub_u32 v6, v6, %s' % v(vo+u))
        A('v_and_b32 %s, 6, v7' % v(vo+u))
        A('v_xor_b32 v6, v6, %s' % v(vo+u))
        A('v_mul_u32_u24 v7, 2752, v7')
        A('v_lshl_add_u32 v6, v6, 4, v7')
        A('v_subrev_u32 %s, %d, v6' % (v(vo+u), 1024*u))
    A('v_lshrrev_b32 v6, 2, v5')
    A('v_mul_u32_u24 v7, 384, v6')
    A('v_and_b32 v5, 3, v5')
    A('v_lshl_add_u32 v7, v5, 3, v7')
    A('v_bfe_u32 v6, v6, 1, 2')
    A('s_mul_i32 s36, %s, 3' % s(sW))
    for ft in range(3):
        A('s_add_u32 s37, s36, %d' % ft)
        A('v_xor_b32 v5, s37, v6')
        A('v_lshl_add_u32 %s, v5, 5, v7' % v(va+ft))

def w1_dma(A, vo, z0, z1, lds, row0):
    A('s_and_b32 s36, %s, 7' % s(sB))
    A('s_mul_i32 s36, s36, 384')
    A('s_mul_i32 s37, %s, %d' % (s(sW), 8*2752))
    A('s_add_u32 s36, s36, s37')
    A('s_add_u32 s36, s36, %d' % (32*z0*2752))
    A('s_mul_i32 s37, %s, 3072' % s(sW))
    A('s_add_u32 m0, s37, %d' % (lds + (32*z0 - row0)*384))
    for z in range(z0, z1):
        for u in range(3):
            A('buffer_load_dwordx4 %s, %s, s36 offen offset:%d lds' % (v(vo+u), s(SW1, 4), 1024*u))
        if z + 1 < z1:
            A('s_add_u32 s36, s36, %d' % (32*2752))
            A('s_add_u32 m0, m0, %d' % (32*384))

def w1_read(A, va, tmp, b0, b1, lds, row0):
    cur = 0; regs = [va, va+1, va+2]
    for b in range(b0, b1):
        off = lds + (16*b - row0)*384
        if off - cur > 65535:
            cur = off
            for ft in range(3):
                A('v_add_u32 %s, %d, %s' % (v(tmp+ft), cur, v(va+ft)))
            regs = [tmp, tmp+1, tmp+2]
        for ft in range(3):
            A('ds_read_b64_tr_b16 %s, %s offset:%d' % (R(w1reg(ft, b & 15) + 2*(b >> 4), 2), v(regs[ft]), off - cur))

def w2_addr(A, vo, va, lds, pitch):
    A('v_and_b32 v5, 63, v0')
    A('v_lshrrev_b32 v6, 3, v5')
    A('v_and_b32 v7, 2, v6')
    A('v_xor_b32 v7, v7, v5')
    A('v_and_b32 v7, 7, v7')
    A('v_lshlrev_b32 v7, 4, v7')
    A('v_lshl_or_b32 %s, v6, 10, v7' % v(vo))
    A('v_xor_b32 v7, 64, %s' % v(vo))
    A('v_add_u32 %s, %d, v7' % (v(vo+1), 7168))
    A('v_add_u32 %s, %d, %s' % (v(vo+2), 2*7168, v(vo)))
    A('v_add_u32 %s, %d, v7' % (v(vo+3), 3*7168))
    A('v_bfe_u32 v6, v5, 2, 2')
    A('v_lshl_or_b32 v6, %s, 3, v6' % v(vQ))
    A('v_and_b32 v7, 3, v5')
    A('v_lshlrev_b32 v7, 3, v7')
    A('v_lshl_or_b32 v7, v6, 7, v7')
    A('v_bfe_u32 v6, v5, 3, 2')
    A('v_lshl_or_b32 v7, v6, 5, v7')
    A('s_mul_i32 s36, %s, %d' % (s(sW), pitch))
    A('s_add_u32 s36, s36, %d' % lds)
    assert lds % 128 == 0 and pitch % 128 == 0
    A('v_add_u32 %s, s36, v7' % v(va))
    for dt in range(1, 4):
        A('v_xor_b32 %s, %d, %s' % (v(va+dt), 32*dt, v(va)))

def w2_dma(A, vo, st0, st1, lds, pitch):
    A('s_and_b32 s36, %s, 7' % s(sB))
    A('s_lshl_b32 s36, s36, 7')
    A('s_mul_i32 s37, %s, %d' % (s(sW), 11*32*1024))
    A('s_add_u32 s36, s36, s37')
    A('s_add_u32 s36, s36, %d' % (st0*32*1024))
    A('s_mul_i32 s37, %s, %d' % (s(sW), pitch))
    A('s_add_u32 m0, s37, %d' % lds)
    for st in range(st0, st1):
        for u in range(4):
            A('buffer_load_dwordx4 %s, %s, s36 offen offset:%d lds' % (v(vo+u), s(SW2, 4), 1024*u))
        if st + 1 < st1:
            A('s_add_u32 s36, s36, %d' % (32*1024))
            A('s_add_u32 m0, m0, 4096')

def w2_read(A, va, st0, st1):
    for st in range(st0, st1):
        for dt in range(4):
            for hi in range(2):
                A('ds_read_b64_tr_b16 %s, %s offset:%d' % (R(w2reg(dt, st) + 2*hi, 2), v(va+dt), (st-st0)*4096 + hi*512))

class G1:
    ACC = 8
    BF = 56
    T = 88
    O = 112
    ADR = 124

def g1_setup(A, ldsg):
    G = G1
    for k in range(4):
        A('v_or_b32 v5, %d, %s' % (4*k, v(vQ)))
        A('v_xor_b32 v5, v5, %s' % v(vN))
        A('v_lshlrev_b32 v5, 4, v5')
        A('v_lshl_or_b32 %s, %s, 10, v5' % (v(G.ADR+k), v(vN)))
        if ldsg:
            A('v_add_u32 %s, %d, %s' % (v(G.ADR+k), ldsg, v(G.ADR+k)))
    A('v_and_b32 v5, 63, v0')
    A('v_lshlrev_b32 %s, 4, v5' % v(G.ADR+4))
    A('v_and_b32 v5, 1, %s' % v(vQ))
    A('v_mul_u32_u24 v5, 49152, v5')
    A('v_lshrrev_b32 v6, 1, %s' % v(vQ))
    A('v_lshl_add_u32 v5, v6, 8, v5')
    A('v_lshl_add_u32 %s, %s, 4, v5' % (v(G.ADR+5), v(vN)))
    A('s_lshr_b32 s36, %s, 3' % s(sB))
    A('s_mul_i32 s58, s36, %d' % (4*49152))
    A('s_and_b32 s37, %s, 7' % s(sB))
    A('s_lshl_b32 s37, s37, 2')
    A('s_add_u32 s37, s37, %s' % s(sW))
    A('s_mul_i32 s37, s37, 1536')
    A('s_add_u32 s58, s58, s37')
    A('s_add_u32 s58, s58, %d' % H_OFF)
    A('s_add_u32 s59, s58, %d' % (2*49152))
    A('s_lshl_b32 s36, s36, 16')
    A('s_lshl_b32 s37, %s, 12' % s(sW))
    A('s_add_u32 s36, s36, s37')
    A('s_add_u32 s50, s36, %d' % G_OFF)
    A('s_add_u32 s51, s37, %d' % ldsg)

def g1_dma(A, mod=''):
    G = G1
    A('s_mov_b32 m0, s51')
    A('s_mov_b32 s36, s50')
    for rt in range(4):
        for u in range(4):
            A('buffer_load_dwordx4 %s, %s, s36 offen offset:%d%s lds' % (v(G.ADR+4), s(SWS, 4), 1024*u, mod))
        if rt < 3:
            A('s_add_u32 s36, s36, 16384')
            A('s_add_u32 m0, m0, 16384')

def silu_ops(rt):
    G = G1; ops = []
    for ft in range(3):
        acc = G.ACC + 12*rt + 4*ft; t = G.T + 4*ft
        for x in range(2):
            ops.append('v_pk_mul_f32 %s, %s, s[62:63]' % (v(t+2*x, 2), v(acc+2*x, 2)))
        for r in range(4):
            ops.append('v_exp_f32 %s, %s' % (v(t+r), v(t+r)))
        for x in range(2):
            ops.append('v_pk_add_f32 %s, %s, 1.0 op_sel_hi:[1,0]' % (v(t+2*x, 2), v(t+2*x, 2)))
        for r in range(4):
            ops.append('v_rcp_f32 %s, %s' % (v(t+r), v(t+r)))
        for x in range(2):
            ops.append('v_pk_mul_f32 %s, %s, %s' % (v(t+2*x, 2), v(t+2*x, 2), v(acc+2*x, 2)))
        for x in range(2):
            ops.append('v_cvt_pk_bf16_f32 %s, %s, %s' % (v(G.O+4*ft+2*(rt & 1)+x), v(t+2*x), v(t+2*x+1)))
    return ops

def hstore_ops(j, st_mod):
    G = G1; ops = []
    for ft in range(3):
        o = G.O + 4*ft
        ops.append('v_permlane16_swap_b32 %s, %s' % (v(o), v(o+2)))
        ops.append('v_permlane16_swap_b32 %s, %s' % (v(o+1), v(o+3)))
        ops.append('buffer_store_dwordx4 %s, %s, %s, %s offen offset:%d%s' % (v(o, 4), v(G.ADR+5), s(SWS, 4), s(58+j), ft*512, st_mod))
    return ops

def g1_compute(A, vm_wait, st_mod='', S=lambda A, i: None):
    G = G1
    A('s_mov_b32 s62, %s' % fhex(-1.4426950408889634))
    A('s_mov_b32 s63, s62')
    DEPTH = 6
    fill = []
    for rt in range(4):
        A('s_waitcnt vmcnt(%d)' % vm_wait(rt))
        A('s_barrier')
        rd = lambda k: A('ds_read_b128 %s, %s offset:%d' % (v(G.BF+4*(k & 7), 4), v(G.ADR+(k & 3)), rt*16384 + (k >> 2)*256))
        for k in range(DEPTH): rd(k)
        per = (len(fill) + 44) // 45
        for k in range(16):
            A('s_waitcnt lgkmcnt(%d)' % min(DEPTH-1, 15-k))
            for ft in range(3):
                acc = G.ACC + 12*rt + 4*ft
                mfma(A, acc, w1reg(ft, k), G.BF+4*(k & 7), acc if k else None)
                if ft == 0 and k + DEPTH < 16: rd(k + DEPTH)
                if k >= 1:
                    for _ in range(per):
                        if fill: A(fill.pop(0))
        for op in fill: A(op)
        S(A, rt)
        fill = silu_ops(rt)
        if rt & 1: fill += hstore_ops(rt >> 1, st_mod)
    for op in fill: A(op)

class G2:
    ADR = 8
    HR = 16
    T = 24
    HF = 80
    ACC = 256 + 176

def g2_setup(A, ldsr):
    G = G2
    A('v_and_b32 v5, 63, v0')
    A('v_lshlrev_b32 %s, 4, v5' % v(G.ADR))
    A('s_lshr_b32 s36, %s, 3' % s(sB))
    A('s_mul_i32 s37, s36, %d' % (4*49152))
    A('s_mul_i32 s38, %s, %d' % (s(sW), 11*1024))
    A('s_add_u32 s37, s37, s38')
    A('s_add_u32 s37, s37, %d' % H_OFF)
    for tau in range(4):
        A('s_add_u32 s38, %s, %d' % (s(sW), tau))
        A('s_and_b32 s38, s38, 3')
        A('s_mul_i32 s39, s38, 49152')
        A('s_add_u32 %s, s37, s39' % s(40+tau))
        A('s_mul_i32 s39, s38, 12288')
        A('s_add_u32 s39, s39, %d' % (ldsr + max(tau-1, 0)*4096))
        A('v_add_u32 %s, s39, %s' % (v(G.ADR+1+tau), v(G.ADR)))
    A('s_lshl_b32 s37, s36, 16')
    A('s_lshl_b32 s38, %s, 14' % s(sW))
    A('s_add_u32 s37, s37, s38')
    A('s_and_b32 s38, %s, 7' % s(sB))
    A('s_lshl_b32 s38, s38, 7')
    A('s_add_u32 s37, s37, s38')
    A('s_add_u32 s44, s37, %d' % HR_OFF)
    A('v_lshlrev_b32 v5, 10, %s' % v(vN))
    A('v_lshl_or_b32 %s, %s, 3, v5' % (v(G.ADR+5), v(vQ)))
    A('s_lshr_b32 s37, %s, 5' % s(sB))
    A('s_lshl_b32 s37, s37, 8')
    A('s_and_b32 s39, %s, 24' % s(sB))
    A('s_add_u32 s37, s37, s39')
    A('s_lshl_b32 s39, %s, 1' % s(sW))
    A('s_add_u32 s37, s37, s39')
    A('s_lshl_b32 s37, s37, 10')
    A('s_add_u32 s45, s37, s38')
    A('v_and_b32 v5, 7, %s' % v(vN))
    A('v_lshlrev_b32 v5, 15, v5')
    A('v_lshrrev_b32 v6, 3, %s' % v(vN))
    A('v_lshl_or_b32 v5, v6, 10, v5')
    A('v_and_b32 v6, 1, %s' % v(vQ))
    A('v_lshl_or_b32 v5, v6, 5, v5')
    A('v_lshrrev_b32 v6, 1, %s' % v(vQ))
    A('v_lshl_or_b32 %s, v6, 4, v5' % v(G.ADR+6))

def g2_loads(A, mod=''):
    G = G2
    for st in range(11):
        if st in (4, 8):
            for tau in range(4):
                A('s_add_u32 %s, %s, 4096' % (s(40+tau), s(40+tau)))
        for tau in range(4):
            A('buffer_load_dwordx4 %s, %s, %s, %s offen offset:%d%s' % (v(G.HF+16*st+4*tau, 4), v(G.ADR), s(SWS, 4), s(40+tau), (st & 3)*1024, mod))
    for dt in range(4):
        A('buffer_load_dwordx2 %s, %s, %s, s44 offen offset:%d%s' % (v(G.HR+2*dt, 2), v(G.ADR+5), s(SWS, 4), dt*32, mod))

def g2_compute(A, S=lambda A, i: None):
    G = G2; T = G.T
    for st in range(11):
        for tau in range(4):
            A('s_waitcnt vmcnt(%d)' % (4 + 43 - 4*st - tau))
            for dt in range(4):
                acc = G.ACC + 16*tau + 4*dt
                mfma(A, acc, w2reg(dt, st), G.HF+16*st+4*tau, acc if st else None)
    S(A, 0)
    for tau in range(1, 4):
        for dt in range(4):
            A('ds_write_b128 %s, %s offset:%d' % (v(G.ADR+1+tau), R(G.ACC+16*tau+4*dt, 4), dt*1024))
    S(A, 1)
    S_ = S
    S = G.HF
    for j in range(16):
        A('v_accvgpr_read_b32 %s, %s' % (v(S+j), R(G.ACC+j)))
    A('s_waitcnt vmcnt(0)')
    for j in range(8):
        A('v_lshlrev_b32 %s, 16, %s' % (v(S+16+2*j), v(G.HR+j)))
        A('v_and_b32 %s, 0xffff0000, %s' % (v(S+16+2*j+1), v(G.HR+j)))
    for j in range(8):
        A('v_pk_add_f32 %s, %s, %s' % (v(S+2*j, 2), v(S+2*j, 2), v(S+16+2*j, 2)))
    A('s_waitcnt lgkmcnt(0)')
    A('s_barrier')
    S_(A, 2)
    for dt in range(4):
        for k in range(3):
            A('ds_read_b128 %s, %s offset:%d' % (v(T+12*dt+4*k, 4), v(G.ADR+1), k*4096 + dt*1024))
    O = G.HR
    for dt in range(4):
        A('s_waitcnt lgkmcnt(%d)' % (9 - 3*dt))
        t = T + 12*dt
        for x in range(2):
            A('v_pk_add_f32 %s, %s, %s' % (v(t+2*x, 2), v(t+2*x, 2), v(t+4+2*x, 2)))
            A('v_pk_add_f32 %s, %s, %s' % (v(S+4*dt+2*x, 2), v(S+4*dt+2*x, 2), v(t+8+2*x, 2)))
        for x in range(2):
            A('v_pk_add_f32 %s, %s, %s' % (v(t+2*x, 2), v(t+2*x, 2), v(S+4*dt+2*x, 2)))
        for x in range(2):
            cvt(A, O+2*dt+x, t+2*x, t+2*x+1)
        if dt & 1:
            o = O + 4*(dt >> 1)
            A('v_permlane16_swap_b32 %s, %s' % (v(o), v(o+2)))
            A('v_permlane16_swap_b32 %s, %s' % (v(o+1), v(o+3)))
            A('buffer_store_dwordx4 %s, %s, %s, s45 offen offset:%d' % (v(o, 4), v(G.ADR+6), s(SOUT, 4), (dt >> 1)*64))

CLK = ['s_memrealtime']
def stamp(A, idx):
    A('%s %s' % (CLK[0], s(64 + 2*idx, 2)))
def stamp_dump(A, slot, n):
    A('s_waitcnt vmcnt(0) lgkmcnt(0)')
    stamp(A, n)
    A('s_waitcnt lgkmcnt(0)')
    A('v_mov_b32 v5, 0')
    for i in range(n + 1):
        A('v_writelane_b32 v5, %s, %d' % (s(64 + 2*i), i))
    A('s_lshl_b32 s36, %s, 2' % s(sB))
    A('s_add_u32 s36, s36, %s' % s(sW))
    A('s_lshl_b32 s36, s36, 6')
    A('s_add_u32 s36, s36, %d' % (STAMP_OFF + slot*65536))
    A('v_and_b32 v6, 63, v0')
    A('v_lshlrev_b32 v6, 2, v6')
    A('s_mov_b64 exec, 0xffff')
    A('buffer_store_dword v5, v6, %s, s36 offen' % s(SWS, 4))
```

```python
import sys
from phases import *

HEAD = open('sequential_preLN__spectral_gfnet__dense_activation_silu__prompt.s.ref').read().split('; Override')[0]

ST = 'stamp' in sys.argv
slot = [0]
if 'cyc' in sys.argv: CLK[0] = 's_memtime'
def kernel(name, body, nv=512, acc=256):
    A = Asm()
    A('.globl %s\n.p2align 8\n.type %s,@function\n%s:' % (name, name, name))
    prologue(A, 'L_%s_end' % name, ST)
    body(A)
    if ST:
        stamp_dump(A, slot[0], 11); slot[0] += 1
    A('L_%s_end:' % name)
    A('s_endpgm')
    st = {}
    txt = A.finish(st)
    kd = '''.amdhsa_kernel %s
  .amdhsa_next_free_vgpr %d
  .amdhsa_next_free_sgpr 96
  .amdhsa_accum_offset %d
  .amdhsa_group_segment_fixed_size 0
  .amdhsa_kernarg_size 72
  .amdhsa_user_sgpr_count 2
  .amdhsa_user_sgpr_kernarg_segment_ptr 1
  .amdhsa_system_sgpr_workgroup_id_x 1
.end_amdhsa_kernel
''' % (name, nv, acc)
    print(name, 'nops', st['nops'], file=sys.stderr)
    return txt, kd

def S(A, i):
    if ST: stamp(A, i)
def k1(A):
    p1_loads(A, 0); S(A, 1); p1_consts(A); p1_addrs(A, 16384); S(A, 2); A('s_waitcnt vmcnt(2)'); S(A, 3); p1_compute(A, 0, 16384, 2, 0, 1.0, '', False); S(A, 4); S(A, 5); [S(A, i) for i in range(6, 11)]
def k2(A):
    p2_addr_loads(A); A('s_waitcnt lgkmcnt(0)'); p2_loads(A); S(A, 1)
    p2_setup(A, 0, 8448, 16768); S(A, 2); p2_stage(A); S(A, 3); p2_compute(A, 0, 8448, 16768); S(A, 4); S(A, 5); [S(A, i) for i in range(6, 11)]
def k3(A):
    p3_addr_loads(A); A('s_waitcnt lgkmcnt(0)'); p3_loads(A); p3_xloads(A); S(A, 1)
    p3_setup(A, 0, 2.0**-19); S(A, 2)
    A('s_waitcnt vmcnt(0)'); S(A, 3)
    p3_stage(A, 0); p3_xunpack(A); S(A, 4); p3_compute(A); S(A, 5); p3_hstore(A); [S(A, i) for i in range(6, 11)]
def k4(A):
    w1_addr(A, 132, 136)
    A('s_waitcnt lgkmcnt(0)')
    w1_dma(A, 132, 0, 8, 65536, 0)
    S(A, 1)
    g1_setup(A, 0)
    A('s_waitcnt vmcnt(0)'); A('s_barrier')
    S(A, 2)
    w1_read(A, 136, 140, 0, 16, 65536, 0)
    A('s_waitcnt lgkmcnt(0)'); A('s_barrier')
    S(A, 3)
    w1_dma(A, 132, 8, 16, 65536, 256)
    g1_dma(A)
    A('s_waitcnt vmcnt(16)'); A('s_barrier')
    S(A, 4)
    w1_read(A, 136, 140, 16, 32, 65536, 256)
    A('s_waitcnt lgkmcnt(0)')
    S(A, 5)
    g1_compute(A, lambda rt: [12, 8, 4, 3][rt], '', lambda A, i: S(A, 6+i))
    S(A, 10)
def k5(A):
    w2_addr(A, 72, 76, 0, 32768)
    A('s_waitcnt lgkmcnt(0)')
    w2_dma(A, 72, 0, 8, 0, 32768)
    S(A, 1)
    g2_setup(A, 0)
    A('s_waitcnt vmcnt(0)')
    S(A, 2)
    w2_read(A, 76, 0, 8)
    A('s_waitcnt lgkmcnt(0)')
    S(A, 3)
    w2_dma(A, 72, 8, 11, 0, 32768)
    g2_loads(A)
    A('s_waitcnt vmcnt(48)')
    S(A, 4)
    w2_read(A, 76, 8, 11)
    A('s_waitcnt lgkmcnt(0)'); A('s_barrier')
    S(A, 5)
    g2_compute(A, lambda A, i: S(A, 6+i))
    S(A, 9); S(A, 10)

ks = [('p1_kernel', k1, 16384+4*4416, 128, 128), ('p2_kernel', k2, 24960, 144, 144), ('p3_kernel', k3, 8192, 128, 128),
      ('g1_kernel', k4, 163840, 512, 256), ('g2_kernel', k5, 131072, 512, 256)]
PROBE = [a for a in sys.argv if a.startswith('probe=')]
def kprobe(A):
    slot, off = PROBE[0][6:].split(',')
    A('s_load_dwordx2 s[40:41], s[0:1], %s' % slot)
    A('s_waitcnt lgkmcnt(0)')
    A('s_add_u32 s40, s40, %d' % (int(off) << 20))
    A('s_addc_u32 s41, s41, 0')
    A('s_mov_b32 s42, %d' % (2 << 20))
    A('s_mov_b32 s43, 0x20000')
    A('s_lshl_b32 s36, s2, 9')
    A('v_lshlrev_b32 v5, 3, v0')
    for i in range(16):
        A('buffer_load_dwordx2 v[6:7], v5, s[40:43], s36 offen')
        A('s_add_u32 s36, s36, %d' % (128 << 10))
        A('s_waitcnt vmcnt(0)')
if PROBE: ks.insert(0, ('probe_kernel', kprobe, 0, 16, 16))
extra = int(sys.argv[2]) if len(sys.argv) > 2 else 0
out = HEAD
for n, f, lds, nv, acc in ks:
    out += '; @launch kernel=%s grid=(256,1,1) block=(%d,1,1) lds=%d\n' % (n, 64 if n == 'probe_kernel' else 256, lds)
for i in range(extra):
    out += '; @launch kernel=nop_kernel grid=(256,1,1) block=(256,1,1) lds=0\n'
if extra: ks.append(('nop_kernel', lambda A: None, 0, 16, 16))
out += '.amdgcn_target "amdgcn-amd-amdhsa--gfx950"\n.text\n'
kds = ''
for n, f, lds, nv, acc in ks:
    t, kd = kernel(n, f, nv, acc)
    out += t; kds += '.p2align 6\n' + kd
out += '.section .rodata,"a"\n' + kds
open(sys.argv[1], 'w').write(out)
```

```python
from asmlib import *

GEN_OFF = 0
FL1_OFF = 128 << 10
FL2_OFF = 256 << 10
STAMP_OFF = 512 << 10
XW_OFF = 1 << 20
Y_OFF  = 5 << 20
G_OFF  = 7 << 20
HR_OFF = 9 << 20
H_OFF  = 11 << 20
WS_BYTES = 17 << 20
LOG2E = 1.4426950408889634

sB, sW = 3, 4
SX, SWR, SWI, SW1, SW2, SOUT, SWS = 8, 12, 16, 20, 24, 28, 32
sT = 36
sMASK16 = 60

vTID, vN, vQ, vNF, vQF = 0, 1, 2, 3, 4

MF = 'v_mfma_f32_16x16x32_bf16'
def mfma(A, d, x, y, c=None):
    A('%s %s, %s, %s, %s' % (MF, R(d, 4), R(x, 4), R(y, 4), '0' if c is None else R(c, 4)))

def prologue(A, exit_label, st=False):
    A('s_cmp_ge_u32 s2, 256')
    A('s_cbranch_scc1 %s' % exit_label)
    if st: stamp(A, 0)
    for srd, off in ((SX, 0), (SWR, 8), (SWI, 16), (SW1, 32), (SW2, 40), (SOUT, 48), (SWS, 64)):
        A('s_load_dwordx2 %s, s[0:1], %d' % (s(srd, 2), off))
    A('s_and_b32 s36, s2, 7')
    A('s_lshl_b32 s36, s36, 5')
    A('s_lshr_b32 s37, s2, 3')
    A('s_or_b32 %s, s36, s37' % s(sB))
    A('v_lshrrev_b32 v5, 6, v0')
    A('v_and_b32 %s, 15, v0' % v(vN))
    A('v_readfirstlane_b32 %s, v5' % s(sW))
    A('v_bfe_u32 %s, v0, 4, 2' % v(vQ))
    for srd, nb in ((SX, 2048*1024), (SWR, 2048*514), (SWI, 2048*514), (SW1, 512*2752), (SW2, 1376*1024), (SOUT, 2048*1024), (SWS, WS_BYTES)):
        A('s_mov_b32 %s, %d' % (s(srd+2), nb))
        A('s_mov_b32 %s, 0x00020000' % s(srd+3))
    A('v_cvt_f32_u32 %s, %s' % (v(vNF), v(vN)))
    A('v_cvt_f32_u32 %s, %s' % (v(vQF), v(vQ)))
    A('s_mov_b64 %s, 0xffff' % s(sMASK16, 2))

def sincos_chain(A, ang, step, n, cdst, sdst):
    for i in range(n):
        A('v_cos_f32 %s, %s' % (v(cdst[i]), v(ang)))
        A('v_sin_f32 %s, %s' % (v(sdst[i]), v(ang)))
        if i + 1 < n:
            A('v_add_f32 %s, %s, %s' % (v(ang), v(ang), v(step)))

def cvt(A, d, lo, hi, nlo=False, nhi=False):
    f = lambda r, ng: (('-' if ng else '') + v(r)) if isinstance(r, int) else r
    A('v_cvt_pk_bf16_f32 %s, %s, %s' % (v(d), f(lo, nlo), f(hi, nhi)))

def nu_of(A, dst, k2, t0):
    A('v_lshlrev_b32 %s, 1, %s' % (v(dst), v(k2)))
    A('v_cmp_eq_u32 vcc, 0, %s' % v(k2))
    A('v_subrev_u32 %s, 15, %s' % (v(t0), v(dst)))
    A('v_cndmask_b32 %s, %s, 16, vcc' % (v(dst), v(dst)))
    A('v_cmp_gt_u32 vcc, 8, %s' % v(k2))
    A('v_cndmask_b32 %s, %s, %s, vcc' % (v(dst), v(t0), v(dst)))

def xreduce(A, regs, tmps, steps):
    for st in steps:
        if st in (1, 2, 4, 8):
            mod = {1: 'quad_perm:[1,0,3,2]', 2: 'quad_perm:[2,3,0,1]', 4: 'row_ror:4', 8: 'row_ror:8'}[st]
            for r in regs:
                A('v_add_f32_dpp %s, %s, %s %s row_mask:0xf bank_mask:0xf' % (v(r), v(r), v(r), mod))
        else:
            for r, t in zip(regs, tmps):
                A('v_mov_b32 %s, %s' % (v(t), v(r)))
            for r, t in zip(regs, tmps):
                A('v_permlane%d_swap_b32 %s, %s' % (st, v(r), v(t)))
            for r, t in zip(regs, tmps):
                A('v_add_f32 %s, %s, %s' % (v(r), v(r), v(t)))

GP = 4416
TAGM = 0x60006000
sTAG = 5

def tagbits_s(A, dst, pos_s, tmp):
    A('s_xor_b32 %s, %s, %s' % (s(dst), s(sTAG), pos_s))
    A('s_and_b32 %s, %s, 12' % (s(tmp), s(dst)))
    A('s_lshl_b32 %s, %s, 27' % (s(tmp), s(tmp)))
    A('s_and_b32 %s, %s, 3' % (s(dst), s(dst)))
    A('s_lshl_b32 %s, %s, 13' % (s(dst), s(dst)))
    A('s_or_b32 %s, %s, %s' % (s(dst), s(dst), s(tmp)))
def tagconst(j):
    return ((j & 3) << 13) | ((j & 12) << 27)

class P1:
    X = 8
    WL = 16
    CA, SA = 24, 28
    TC, TS = 32, 36
    BRE, BIM, BSR, BSI = 40, 44, 48, 52
    U = 56
    D = 72
    T = 104
    ADR = 120
    S = 24

def p1_loads(A, ldsxs):
    P = P1
    row_base(A, 36)
    A('s_add_u32 s38, s36, %d' % (0x8000 - 1024))
    A('s_lshl_b32 s39, %s, 12' % s(sW))
    A('s_add_u32 m0, s39, %d' % ldsxs)
    A('v_and_b32 v5, 63, v0')
    A('v_lshlrev_b32 v6, 4, v5')
    A('s_waitcnt lgkmcnt(0)')
    A('buffer_load_dwordx4 v6, %s, s36 offen lds' % s(SX, 4))
    A('buffer_load_dwordx4 v6, %s, s38 offen offset:1024 lds' % s(SX, 4))
    A('v_lshl_add_u32 %s, v5, 3, s39' % v(P.ADR))

def p1_wloads(A, ldsxs):
    P = P1
    A('s_lshr_b32 s37, %s, 6' % s(sB))
    A('s_lshl_b32 s37, s37, 4')
    A('s_and_b32 s38, %s, 15' % s(sB))
    A('s_or_b32 s37, s37, s38')
    A('s_bfe_u32 s38, %s, 0x20004' % s(sB))
    A('s_lshl_b32 s38, s38, 8')
    A('s_or_b32 s37, s37, s38')
    A('s_mul_i32 s37, s37, 514')
    A('s_lshl_b32 s38, %s, 7' % s(sW))
    A('s_add_u32 s37, s37, s38')
    A('s_add_u32 s37, s37, 2')
    A('v_bfe_u32 v6, v0, 3, 2')
    A('v_bfe_u32 v7, v0, 5, 1')
    A('v_lshl_or_b32 v6, v7, 4, v6')
    A('v_mul_u32_u24 v6, %d, v6' % (64*514))
    A('v_and_b32 v7, 7, v0')
    A('v_lshl_add_u32 v6, v7, 4, v6')
    A('s_lshl_b32 s39, %s, 12' % s(sW))
    A('s_add_u32 m0, s39, %d' % (ldsxs + 2048))
    A('buffer_load_dwordx4 v6, %s, s37 offen lds' % s(SWR, 4))
    A('s_add_u32 m0, m0, 1024')
    A('buffer_load_dwordx4 v6, %s, s37 offen lds' % s(SWI, 4))

def p1_consts(A, sc1=1.0):
    P = P1; T = P.T
    A('v_mul_f32 v5, %s, %s' % (v(vNF), v(vQF)))
    A('v_mul_f32 v6, %s, v5' % fhex(4/32))
    A('v_mul_f32 v7, %s, %s' % (fhex(1/32), v(vNF)))
    sincos_chain(A, 6, 7, 4, [T+i for i in range(4)], [T+4+i for i in range(4)])
    A('v_and_b32 v6, 1, %s' % v(vN))
    A('v_mul_u32_u24 v6, 0x8000, v6')
    A('v_lshl_or_b32 v6, v6, 16, v6')
    A('v_mov_b32 v7, 0xbf803f80')
    A('v_cmp_eq_u32 vcc, 0, %s' % v(vN))
    for j in range(2):
        cvt(A, P.CA+j, T+2*j, T+2*j+1)
        cvt(A, P.SA+j, T+4+2*j, T+4+2*j+1, True, True)
    for j in range(2):
        A('v_cndmask_b32 %s, %s, v7, vcc' % (v(P.SA+j), v(P.SA+j)))
    A('v_mov_b32 v7, %s' % fhex(-32.0))
    A('v_cndmask_b32 %s, 0, v7, vcc' % v(P.ADR+6))
    for j in range(2):
        A('v_xor_b32 %s, v6, %s' % (v(P.CA+2+j), v(P.CA+j)))
        A('v_xor_b32 %s, v6, %s' % (v(P.SA+2+j), v(P.SA+j)))
    A('v_mul_f32 v6, %s, v5' % fhex(4/512))
    A('v_mul_f32 v7, %s, %s' % (fhex(1/512), v(vNF)))
    sincos_chain(A, 6, 7, 4, [P.TC+e for e in range(4)], [P.TS+e for e in range(4)])
    A('v_mul_f32 v6, %s, v5' % fhex(4/16))
    A('v_mul_f32 v7, %s, %s' % (fhex(1/16), v(vNF)))
    sincos_chain(A, 6, 7, 4, [T+e for e in range(4)], [T+4+e for e in range(4)])
    A('v_and_b32 v6, 8, %s' % v(vN))
    A('v_mul_u32_u24 v6, 0x1000, v6')
    A('v_lshl_or_b32 v6, v6, 16, v6')
    for e in range(4):
        cvt(A, P.BRE+e, T+e, T+4+e)
        cvt(A, P.BIM+e, T+4+e, T+e, True, False)
    for e in range(4):
        A('v_xor_b32 %s, v6, %s' % (v(P.BIM+e), v(P.BIM+e)))
    nu_of(A, 5, vN, 6)
    A('v_cvt_f32_u32 v5, v5')
    A('v_mul_f32 v7, %s, v5' % fhex(1/32))
    A('v_mul_f32 v6, 4.0, v7')
    A('v_mul_f32 v6, v6, %s' % v(vQF))
    sincos_chain(A, 6, 7, 4, [T+e for e in range(4)], [T+4+e for e in range(4)])
    A('v_and_b32 v6, 8, %s' % v(vN))
    A('v_lshlrev_b32 v6, 1, v6')
    for e in range(4):
        cvt(A, P.BSR+e, T+e, '0')
        cvt(A, P.BSI+e, T+4+e, '0', True)
    for e in range(4):
        A('v_lshlrev_b32 %s, v6, %s' % (v(P.BSR+e), v(P.BSR+e)))
        A('v_lshlrev_b32 %s, v6, %s' % (v(P.BSI+e), v(P.BSI+e)))

def p1_addrs(A, lds):
    P = P1
    A('v_bfe_u32 v5, v0, 2, 2')
    A('v_lshlrev_b32 v5, 7, v5')
    A('v_lshl_or_b32 v5, %s, 5, v5' % v(vQ))
    A('v_and_b32 v6, 3, v0')
    A('v_lshl_or_b32 v5, v6, 3, v5')
    A('s_lshl_b32 s39, %s, 12' % s(sW))
    A('v_add_u32 %s, s39, v5' % v(P.ADR+1))
    A('v_mul_u32_u24 v6, %d, v6' % GP)
    A('v_bfe_u32 v5, v0, 2, 4')
    A('v_lshl_add_u32 v5, v5, 4, v6')
    A('s_mul_i32 s36, %s, 272' % s(sW))
    A('v_add_u32 %s, s36, v5' % v(P.ADR+4))
    A('s_lshr_b32 s36, %s, 1' % s(sW))
    A('s_mul_i32 s36, s36, %d' % GP)
    A('s_and_b32 s37, %s, 1' % s(sW))
    A('s_lshl_b32 s37, s37, 2')
    A('s_add_u32 s36, s36, s37')
    A('s_add_u32 s36, s36, %d' % lds)
    A('v_mul_u32_u24 v5, 68, %s' % v(vQ))
    A('v_add_u32 v5, v5, %s' % v(vN))
    A('v_lshl_add_u32 %s, v5, 4, s36' % v(P.ADR+2))
    A('v_add_u32 v5, 1, v0')
    A('v_and_b32 v6, 31, v5')
    A('v_lshrrev_b32 v5, 5, v5')
    A('v_and_b32 v5, 7, v5')
    A('v_mad_u32_u24 v7, v6, 17, v5')
    A('v_sub_u32 %s, %d, v7' % (v(P.ADR+5), 17*32 + 15))
    A('v_cmp_gt_u32 vcc, 16, v6')
    A('v_add_u32 v5, 8, v5')
    A('v_cndmask_b32 v7, %s, v7, vcc' % v(P.ADR+5))
    A('v_cmp_eq_u32 vcc, 16, v6')
    A('v_lshlrev_b32 %s, 4, v0' % v(P.ADR+3))
    A('v_cndmask_b32 v7, v7, v5, vcc')
    A('v_lshlrev_b32 %s, 4, v7' % v(P.ADR+5))
    A('s_lshl_b32 s48, %s, 14' % s(sB))
    A('s_add_u32 s48, s48, %d' % XW_OFF)
    for jj in range(1, 4):
        A('s_add_u32 %s, s48, %d' % (s(48+jj), jj*4096))

def p1_tags(A):
    tagbits_s(A, 46, s(sW), 36)
    A('s_xor_b32 s47, s46, 0x%x' % tagconst(4))
    A('v_mov_b32 %s, 0x%x' % (v(P1.ADR+7), TAGM))

def interleave(A, main, fill, ratio=1):
    fill = list(fill)
    for op in main:
        A(op)
        for _ in range(ratio):
            if fill: A(fill.pop(0))
    for op in fill: A(op)

class Rec:
    def __init__(self): self.ops = []
    def __call__(self, t): self.ops.append(t)

def p1_compute(A, ldsxs, lds, vm_x, vm_w, sc1, st_mod='', tags=True):
    P = P1; U = P.U; T = P.T; D = P.D; X = P.X
    A('s_waitcnt vmcnt(%d)' % vm_x)
    for rho in range(2):
        for hi in range(2):
            A('ds_read_b64_tr_b16 %s, %s offset:%d' % (v(X+4*rho+2*hi, 2), v(P.ADR), ldsxs + rho*1024 + hi*512))
    for rho in range(2):
        A('s_waitcnt lgkmcnt(%d)' % (2 - 2*rho))
        mfma(A, D+8*rho, X+4*rho, P.CA)
        mfma(A, D+8*rho+4, X+4*rho, P.SA)
    for j in range(8):
        A('v_lshlrev_b32 %s, 16, %s' % (v(U+2*j), v(X+j)))
        A('v_and_b32 %s, 0xffff0000, %s' % (v(U+2*j+1), v(X+j)))
    S = [P.S, P.S+2]
    for rho in range(2):
        h = U + 8*rho; d = T + 4*rho
        A('v_pk_add_f32 %s, %s, %s' % (v(d, 2), v(h, 2), v(h+2, 2)))
        A('v_pk_add_f32 %s, %s, %s' % (v(d+2, 2), v(h+4, 2), v(h+6, 2)))
        A('v_pk_add_f32 %s, %s, %s' % (v(d, 2), v(d, 2), v(d+2, 2)))
        A('v_add_f32 %s, %s, %s' % (v(S[rho]), v(d), v(d+1)))
    xreduce(A, S, [P.S+1, P.S+3], [1, 2, 4, 8, 16, 32])
    for rho in range(2):
        A('v_mul_f32 %s, %s, %s' % (v(S[rho]), fhex(1/512), v(S[rho])))
    for rho in range(2):
        A('v_mul_f32 %s, %s, %s' % (v(S[rho]+1), v(S[rho]), v(P.ADR+6)))
    for rho in range(2):
        for x in range(2):
            A('v_pk_add_f32 %s, %s, %s op_sel:[0,1] op_sel_hi:[1,1]' % (v(D+8*rho+2*x, 2), v(D+8*rho+2*x, 2), v(S[rho], 2)))
        for x in range(2):
            o = T + 8*rho + 4*x
            cmul(A, o, o+2, D+8*rho+2*x, D+8*rho+4+2*x, P.TC+2*x, P.TS+2*x, True)
        for r in range(4):
            o = T + 8*rho + 4*(r >> 1) + (r & 1)
            cvt(A, X+4*rho+r, o, o+2)
    M = Rec()
    for rho in range(2):
        mfma(M, D+16+8*rho, X+4*rho, P.BSR)
        mfma(M, D+16+8*rho+4, X+4*rho, P.BSI)
        mfma(M, D+8*rho, X+4*rho, P.BRE)
        mfma(M, D+8*rho+4, X+4*rho, P.BIM)
    V = Rec()
    for rho in range(2):
        for j in range(4):
            h = U + 8*rho + 2*j
            V('v_pk_add_f32 %s, %s, %s op_sel_hi:[1,0] neg_lo:[0,1] neg_hi:[0,1]' % (v(h, 2), v(h, 2), v(S[rho], 2)))
    for j in range(4):
        for rho in range(2):
            h = U + 8*rho; d = T + 4*rho
            if j == 0: V('v_pk_mul_f32 %s, %s, %s' % (v(d, 2), v(h, 2), v(h, 2)))
            else: V('v_pk_fma_f32 %s, %s, %s, %s' % (v(d, 2), v(h+2*j, 2), v(h+2*j, 2), v(d, 2)))
    for rho in range(2):
        V('v_add_f32 %s, %s, %s' % (v(S[rho]), v(T+4*rho), v(T+4*rho+1)))
    interleave(A, M.ops, V.ops, 1)
    xreduce(A, S, [P.S+1, P.S+3], [1, 2, 4, 8, 16, 32])
    for rho in range(2):
        A('v_mov_b32 %s, %s' % (v(S[rho]+1), fhex(1e-5)))
        A('v_fmac_f32 %s, %s, %s' % (v(S[rho]+1), fhex(1/512), v(S[rho])))
        A('v_rsq_f32 %s, %s' % (v(S[rho]), v(S[rho]+1)))
    for j in range(4):
        A('v_cndmask_b32 %s, %s, %s, %s' % (v(D+4*j), v(D+4*j), v(D+16+4*j), s(sMASK16, 2)))
    if sc1 != 1.0:
        for rho in range(2):
            A('v_mul_f32 %s, %s, %s' % (v(S[rho]), fhex(sc1), v(S[rho])))
    for c in range(2):
        if c == 1:
            A('s_waitcnt vmcnt(%d)' % vm_w)
            for g in range(4):
                A('ds_read_b64_tr_b16 %s, %s offset:%d' % (v(P.WL+2*g, 2), v(P.ADR+1), ldsxs + 2048 + g*512))
        for x in range(2):
            for rho in range(2):
                d = D + 8*rho + 4*c + 2*x
                A('v_pk_mul_f32 %s, %s, %s op_sel_hi:[1,0]' % (v(d, 2), v(d, 2), v(S[rho], 2)))
            for r in (2*x, 2*x+1):
                cvt(A, U+4*c+r, D+4*c+r, D+8+4*c+r)
            for r in (2*x, 2*x+1):
                if tags: A('v_bfi_b32 %s, %s, %s, %s' % (v(U+4*c+r), v(P.ADR+7), s(46+c), v(U+4*c+r)))
            for r in (2*x, 2*x+1):
                A('ds_write_b32 %s, %s offset:%d' % (v(P.ADR+2), v(U+4*c+r), r*272 + c*2*GP))
    A('s_waitcnt lgkmcnt(4)')
    for g in range(4):
        A('ds_write_b64 %s, %s offset:%d' % (v(P.ADR+5), v(P.WL+2*g, 2), lds + g*GP + 8))
    A('s_waitcnt lgkmcnt(0)')
    A('s_barrier')
    for jj in range(4):
        A('ds_read_b128 %s, %s offset:%d' % (v(D+4*jj, 4), v(P.ADR+4), lds + jj*68*16))
    for jj in range(4):
        A('s_waitcnt lgkmcnt(%d)' % (3-jj))
        A('buffer_store_dwordx4 %s, %s, %s, %s offen%s' % (v(D+4*jj, 4), v(P.ADR+3), s(SWS, 4), s(48+jj), st_mod))

class P2:
    C64, S64, N64 = 8, 16, 24
    C32, S32, N32 = 32, 40, 48
    TC1, TS1 = 56, 64
    TC2, TS2 = 72, 80
    F = 88
    D = 144
    ADR = 120
    TG = 160
XC = 2048 + 64
WC = 4096 + 64

def p2_addr_loads(A):
    P = P2
    A('v_lshrrev_b32 v5, 2, v0')
    A('v_and_b32 v6, 3, v0')
    A('v_lshlrev_b32 v7, 14, v5')
    A('v_lshl_or_b32 %s, v6, 4, v7' % v(P.ADR))
    A('s_lshl_b32 s52, %s, 6' % s(sB))
    A('s_add_u32 s52, s52, %d' % XW_OFF)
    for jj in range(1, 4):
        A('s_add_u32 %s, s52, %d' % (s(52+jj), jj << 20))

def p2_loads(A, mod=''):
    P = P2
    for jj in range(4):
        A('buffer_load_dwordx4 %s, %s, %s, %s offen%s' % (v(P.F+4*jj, 4), v(P.ADR), s(SWS, 4), s(52+jj), mod))

def p2_setup(A, ldsx, ldsw, ldsq, sc2=1.0, sc3=1.0):
    P = P2; T = P.F + 16
    A('v_bfe_u32 v5, v0, 1, 1')
    A('v_and_b32 v6, 1, v0')
    A('v_lshlrev_b32 v6, 3, v6')
    A('v_bfe_u32 v7, v0, 2, 4')
    A('v_lshl_or_b32 v7, v7, 4, v6')
    A('s_and_b32 s36, %s, 1' % s(sW))
    A('s_mul_i32 s36, s36, %d' % (2*XC))
    A('s_lshr_b32 s37, %s, 1' % s(sW))
    A('s_lshl_b32 s37, s37, 8')
    A('s_add_u32 s36, s36, s37')
    A('s_add_u32 s36, s36, %d' % ldsx)
    A('v_mul_u32_u24 %s, %d, v5' % (v(P.ADR+1), XC))
    A('v_add3_u32 %s, %s, v7, s36' % (v(P.ADR+1), v(P.ADR+1)))
    A('s_lshl_b32 s36, %s, 8' % s(sW))
    A('s_add_u32 s36, s36, %d' % ldsw)
    A('v_mul_u32_u24 %s, %d, v5' % (v(P.ADR+2), WC))
    A('v_add3_u32 %s, %s, v7, s36' % (v(P.ADR+2), v(P.ADR+2)))
    A('v_and_b32 v5, 63, v0')
    A('v_lshlrev_b32 %s, 4, v5' % v(P.ADR+3))
    A('v_lshlrev_b32 %s, 4, v0' % v(P.ADR+4))
    A('v_lshrrev_b32 v5, 1, %s' % v(vQ))
    A('v_and_b32 v6, 1, %s' % v(vQ))
    A('v_lshlrev_b32 v7, 4, %s' % v(vN))
    A('v_lshl_or_b32 v7, v5, 8, v7')
    A('v_lshl_or_b32 v7, v6, 3, v7')
    A('s_lshl_b32 s36, %s, 9' % s(sW))
    A('s_add_u32 s36, s36, %d' % ldsq)
    A('v_add_u32 %s, s36, v7' % v(P.ADR+5))
    A('v_lshlrev_b32 v7, 5, %s' % v(vN))
    A('v_lshl_or_b32 v7, v5, 10, v7')
    A('v_lshl_or_b32 %s, v6, 4, v7' % v(P.ADR+6))
    A('s_lshl_b32 s56, %s, 13' % s(sB))
    A('s_lshl_b32 s36, %s, 11' % s(sW))
    A('s_add_u32 s56, s56, s36')
    A('s_add_u32 s56, s56, %d' % Y_OFF)
    SG = P.D; J = P.D + 1; W16 = P.D + 2
    A('v_and_b32 v5, 1, %s' % v(vN))
    A('v_mul_u32_u24 v5, 0x8000, v5')
    A('v_lshl_or_b32 %s, v5, 16, v5' % v(SG))
    A('s_lshl_b32 s36, %s, 4' % s(sW))
    A('v_cvt_f32_u32 %s, s36' % v(W16))
    A('v_add_f32 %s, %s, %s' % (v(J), v(W16), v(vNF)))
    A('v_mul_f32 v7, %s, %s' % (fhex(1/64), v(J)))
    A('v_mul_f32 v5, %s, %s' % (v(J), v(vQF)))
    A('v_mul_f32 v6, %s, v5' % fhex(1/8))
    sincos_chain(A, 6, 7, 8, [T+i for i in range(8)], [T+8+i for i in range(8)])
    for j in range(4):
        cvt(A, P.C64+j, T+2*j, T+2*j+1)
        cvt(A, P.S64+j, T+8+2*j, T+8+2*j+1)
        cvt(A, P.N64+j, T+8+2*j, T+8+2*j+1, True, True)
    for j in range(4):
        for base in (P.C64, P.S64, P.N64):
            A('v_xor_b32 %s, %s, %s' % (v(base+4+j), v(SG), v(base+j)))
    A('v_mul_f32 v7, %s, %s' % (fhex(1/2048), v(J)))
    A('v_mul_f32 v6, %s, v5' % fhex(4/2048))
    sincos_chain(A, 6, 7, 4, [P.TC1+r for r in range(4)], [P.TS1+r for r in range(4)])
    A('v_fmac_f32 v6, %s, v7' % fhex(13.0))
    sincos_chain(A, 6, 7, 4, [P.TC1+4+r for r in range(4)], [P.TS1+4+r for r in range(4)])
    A('v_mul_f32 v7, %s, %s' % (fhex(1/32), v(vNF)))
    A('v_mul_f32 v6, 4.0, v7')
    A('v_mul_f32 v6, v6, %s' % v(vQF))
    sincos_chain(A, 6, 7, 4, [T+i for i in range(4)], [T+4+i for i in range(4)])
    for j in range(2):
        for t in range(2):
            cvt(A, P.C32+4*t+j, T+2*j, T+2*j+1, False, t == 1)
            cvt(A, P.S32+4*t+j, T+4+2*j, T+4+2*j+1, False, t == 1)
            cvt(A, P.N32+4*t+j, T+4+2*j, T+4+2*j+1, True, t == 0)
    for j in range(2):
        for t in range(2):
            for base in (P.C32, P.S32, P.N32):
                A('v_xor_b32 %s, %s, %s' % (v(base+4*t+2+j), v(SG), v(base+4*t+j)))
    A('v_fma_f32 v5, %s, 4.0, %s' % (v(vQF), v(W16)))
    for t in range(2):
        A('v_mul_f32 v7, %s, %s' % (fhex(1/2048), v(vNF)))
        if t:
            A('v_add_f32 v7, %s, v7' % fhex(16/2048))
        A('v_mul_f32 v6, v5, v7')
        sincos_chain(A, 6, 7, 4, [P.TC2+4*t+r for r in range(4)], [P.TS2+4*t+r for r in range(4)])
    for base, sc in ((P.TC1, sc2), (P.TC2, sc3)):
        if sc != 1.0:
            for e in range(16):
                A('v_mul_f32 %s, %s, %s' % (v(base+e), fhex(sc), v(base+e)))

SPIN = 20000
def poll_begin(A, name):
    A('s_movk_i32 s47, %d' % SPIN)
    A('L_%s:' % name)
def poll_end(A, name, acc):
    A('v_cmp_ne_u32 vcc, 0, %s' % v(acc))
    A('s_sub_u32 s47, s47, 1')
    A('s_cselect_b64 vcc, 0, vcc')
    A('s_and_b64 exec, exec, vcc')
    A('s_cbranch_execnz L_%s' % name)
    A('s_mov_b64 exec, -1')

def p2_tags(A):
    P = P2
    tagbits_s(A, 36, '0', 37)
    A('v_and_b32 v5, 1, v0')
    A('v_lshlrev_b32 v5, 14, v5')
    A('v_and_b32 v6, 2, v0')
    A('v_lshl_or_b32 v5, v6, 28, v5')
    A('v_xor_b32 %s, s36, v5' % v(P.ADR+7))
    A('v_xor_b32 %s, 0x%x, %s' % (v(P.ADR+8), tagconst(1), v(P.ADR+7)))
    A('v_and_b32 v5, 1, %s' % v(vQ))
    A('v_lshlrev_b32 v5, 29, v5')
    A('v_xor_b32 %s, s36, v5' % v(P.TG))
    for r in range(1, 4):
        A('v_xor_b32 %s, 0x%x, %s' % (v(P.TG+r), tagconst(r), v(P.TG)))
    A('s_mov_b32 s46, 0x%x' % TAGM)

def p2_poll(A):
    P = P2; F = P.F
    poll_begin(A, 'h1')
    p2_loads(A, ' sc1')
    for jj in range(4):
        A('s_waitcnt vmcnt(%d)' % (3-jj))
        for dw in range(2):
            A('v_xor_b32 %s, %s, %s' % (v(F+4*jj+dw), v(P.ADR+7+dw), v(F+4*jj+dw)))
        if jj == 0: A('v_or_b32 v5, %s, %s' % (v(F), v(F+1)))
        else: A('v_or3_b32 v5, v5, %s, %s' % (v(F+4*jj), v(F+4*jj+1)))
    A('v_and_b32 v5, s46, v5')
    A('v_or_b32_dpp v5, v5, v5 quad_perm:[1,0,3,2] row_mask:0xf bank_mask:0xf')
    A('v_or_b32_dpp v5, v5, v5 quad_perm:[2,3,0,1] row_mask:0xf bank_mask:0xf')
    poll_end(A, 'h1', 5)

def gen_update(A, name):
    A('s_or_b32 s36, %s, %s' % (s(sB), s(sW)))
    A('s_cbranch_scc1 L_%s' % name)
    A('v_mov_b32 v5, %s' % s(sTAG))
    A('v_mov_b32 v6, 0')
    A('buffer_store_dword v5, v6, %s, 0 offen offset:%d' % (s(SWS, 4), GEN_OFF))
    A('L_%s:' % name)

def cmul(A, ore, oim, xr, xi, c, sn, conj):
    neg = ' neg_lo:[1,0,0] neg_hi:[1,0,0]'
    A('v_pk_mul_f32 %s, %s, %s' % (v(ore, 2), v(xr, 2), v(c, 2)))
    A('v_pk_mul_f32 %s, %s, %s' % (v(oim, 2), v(xi, 2), v(c, 2)))
    A('v_pk_fma_f32 %s, %s, %s, %s%s' % (v(ore, 2), v(xi, 2), v(sn, 2), v(ore, 2), '' if conj else neg))
    A('v_pk_fma_f32 %s, %s, %s, %s%s' % (v(oim, 2), v(xr, 2), v(sn, 2), v(oim, 2), neg if conj else ''))

def p2_stage(A, vm_first=3):
    P = P2
    for jj in range(4):
        if vm_first is not None:
            A('s_waitcnt vmcnt(%d)' % (vm_first - jj))
        A('ds_write_b64 %s, %s offset:%d' % (v(P.ADR+1), v(P.F+4*jj, 2), (jj >> 1)*1024 + (jj & 1)*512))
        A('ds_write_b64 %s, %s offset:%d' % (v(P.ADR+2), v(P.F+4*jj+2, 2), jj*1024))
    A('s_waitcnt lgkmcnt(0)')
    A('s_barrier')

def p2_compute(A, ldsx, ldsw, ldsq, st_mod='', tags=True):
    P = P2; F = P.F; D = P.D
    fr = lambda t, c, oh: F + 16*t + 8*c + 4*oh
    for t in range(2):
        for oh in range(2):
            for c in range(2):
                A('ds_read_b128 %s, %s offset:%d' % (v(fr(t, c, oh), 4), v(P.ADR+3), ldsx + t*2*XC + c*XC + oh*1024))
    k = 0
    for t in range(2):
        dre, dim = D+8*t, D+8*t+4
        for oh in range(2):
            k += 1
            A('s_waitcnt lgkmcnt(%d)' % (9 - 2*k))
            mfma(A, dre, fr(t, 0, oh), P.C64+4*oh, dre if oh else None)
            mfma(A, dim, fr(t, 0, oh), P.N64+4*oh, dim if oh else None)
            A('s_waitcnt lgkmcnt(%d)' % (8 - 2*k))
            mfma(A, dre, fr(t, 1, oh), P.S64+4*oh, dre)
            mfma(A, dim, fr(t, 1, oh), P.C64+4*oh, dim)
    WP = F + 24
    for c in range(2):
        A('ds_read_b128 %s, %s offset:%d' % (v(WP+4*c, 4), v(P.ADR+4), ldsw + c*WC))
    T = F; UR, UI = F + 16, F + 20
    def twiddle_pack(cb, sb, conj):
        for t in range(2):
            for x in range(2):
                o = T + 8*t + 4*x
                cmul(A, o, o+2, D+8*t+2*x, D+8*t+4+2*x, cb+4*t+2*x, sb+4*t+2*x, conj)
            for x in range(2):
                o = T + 8*t + 4*x
                cvt(A, UR+2*t+x, o, o+1)
                cvt(A, UI+2*t+x, o+2, o+3)
    twiddle_pack(P.TC1, P.TS1, True)
    for t in range(2):
        dre, dim = D+8*t, D+8*t+4
        mfma(A, dre, P.C32+4*t, UR)
        mfma(A, dim, P.C32+4*t, UI)
        mfma(A, dre, P.S32+4*t, UI, dre)
        mfma(A, dim, P.N32+4*t, UR, dim)
    A('s_waitcnt lgkmcnt(0)')
    for c in range(2):
        for j in range(4):
            b = (P.TC1, P.TS1)[c] + 2*j
            A('v_lshlrev_b32 %s, 16, %s' % (v(b), v(WP+4*c+j)))
            A('v_and_b32 %s, 0xffff0000, %s' % (v(b+1), v(WP+4*c+j)))
    twiddle_pack(P.TC1, P.TS1, False)
    for t in range(2):
        dre, dim = D+8*t, D+8*t+4
        mfma(A, dre, UR, P.C32+4*t)
        mfma(A, dim, UI, P.C32+4*t)
        mfma(A, dre, UI, P.N32+4*t, dre)
        mfma(A, dim, UR, P.S32+4*t, dim)
    twiddle_pack(P.TC2, P.TS2, False)
    for t in range(2):
        for c in range(2):
            A('ds_write_b64 %s, %s offset:%d' % (v(P.ADR+5), v((UR, UI)[c]+2*t, 2), (2*t+c)*2048))
    A('s_waitcnt lgkmcnt(0)')
    A('s_barrier')
    for t in range(2):
        for oh in range(2):
            for c in range(2):
                A('ds_read_b128 %s, %s offset:%d' % (v(fr(t, c, oh), 4), v(P.ADR+3), ldsq + (2*t+c)*2048 + oh*1024))
    k = 0
    for t in range(2):
        dre, dim = D+8*t, D+8*t+4
        for oh in range(2):
            k += 1
            A('s_waitcnt lgkmcnt(%d)' % (9 - 2*k))
            mfma(A, dre, P.C64+4*oh, fr(t, 0, oh), dre if oh else None)
            mfma(A, dim, P.S64+4*oh, fr(t, 0, oh), dim if oh else None)
            A('s_waitcnt lgkmcnt(%d)' % (8 - 2*k))
            mfma(A, dre, P.N64+4*oh, fr(t, 1, oh), dre)
            mfma(A, dim, P.C64+4*oh, fr(t, 1, oh), dim)
    O = P.TC1
    for t in range(2):
        for r in range(4):
            cvt(A, O+4*t+r, D+8*t+r, D+8*t+4+r)
        if tags:
            for r in range(4):
                A('v_bfi_b32 %s, s46, %s, %s' % (v(O+4*t+r), v(P.TG+r), v(O+4*t+r)))
        A('buffer_store_dwordx4 %s, %s, %s, s56 offen offset:%d%s' % (v(O+4*t, 4), v(P.ADR+6), s(SWS, 4), t*512, st_mod))

class P3:
    BRE, BIM, BSR, BSI = 8, 12, 16, 20
    TC, TS = 24, 28
    CA = 32
    X = 40
    L = 48
    H = 56
    D = 72
    T = 104
    ADR = 120

def row_base(A, dst):
    A('s_lshr_b32 %s, %s, 5' % (s(dst), s(sB)))
    A('s_lshl_b32 %s, %s, 8' % (s(dst), s(dst)))
    A('s_and_b32 s37, %s, 31' % s(sB))
    A('s_or_b32 %s, %s, s37' % (s(dst), s(dst)))
    A('s_lshl_b32 s37, %s, 6' % s(sW))
    A('s_add_u32 %s, %s, s37' % (s(dst), s(dst)))
    A('s_lshl_b32 %s, %s, 10' % (s(dst), s(dst)))

def p3_addr_loads(A):
    P = P3
    A('v_lshrrev_b32 v5, 1, v0')
    A('v_and_b32 v6, 1, v0')
    A('v_lshlrev_b32 v7, 13, v5')
    A('v_lshl_or_b32 %s, v6, 4, v7' % v(P.ADR))
    A('v_lshlrev_b32 v5, 2, v5')
    A('v_lshl_or_b32 %s, v6, 12, v5' % v(P.ADR+1))
    A('s_lshl_b32 s52, %s, 5' % s(sB))
    A('s_add_u32 s52, s52, %d' % Y_OFF)
    A('s_add_u32 s53, s52, %d' % (128*8192))

def p3_loads(A, mod=''):
    P = P3
    for jj in range(2):
        A('buffer_load_dwordx4 %s, %s, %s, %s offen%s' % (v(P.L+4*jj, 4), v(P.ADR), s(SWS, 4), s(52+jj), mod))

def p3_tags(A):
    P = P3
    tagbits_s(A, 36, '0', 37)
    A('v_and_b32 v5, 1, v0')
    A('v_lshlrev_b32 v5, 29, v5')
    A('v_xor_b32 %s, s36, v5' % v(P.T))
    for e in range(1, 4):
        A('v_xor_b32 %s, 0x%x, %s' % (v(P.T+e), tagconst(e), v(P.T)))

def p3_poll(A):
    P = P3; L = P.L
    poll_begin(A, 'h2')
    p3_loads(A, ' sc1')
    for jj in range(2):
        A('s_waitcnt vmcnt(%d)' % (1-jj))
        for e in range(4):
            A('v_xor_b32 %s, %s, %s' % (v(L+4*jj+e), v(P.T+e), v(L+4*jj+e)))
        if jj == 0: A('v_or_b32 v5, %s, %s' % (v(L), v(L+1)))
        else: A('v_or3_b32 v5, v5, %s, %s' % (v(L+4), v(L+5)))
        A('v_or3_b32 v5, v5, %s, %s' % (v(L+4*jj+2), v(L+4*jj+3)))
    A('v_and_b32 v5, s46, v5')
    A('v_or_b32_dpp v5, v5, v5 quad_perm:[1,0,3,2] row_mask:0xf bank_mask:0xf')
    poll_end(A, 'h2', 5)

def p3_xloads(A):
    P = P3
    row_base(A, 54)
    A('s_add_u32 s55, s54, 0x8000')
    A('v_lshlrev_b32 v5, 5, %s' % v(vN))
    A('v_lshl_or_b32 %s, %s, 3, v5' % (v(P.ADR+2), v(vQ)))
    for rho in range(2):
        for t in range(2):
            A('buffer_load_dwordx2 %s, %s, %s, %s offen offset:%d' % (v(P.X+4*rho+2*t, 2), v(P.ADR+2), s(SX, 4), s(54+rho), t*512))

def p3_setup(A, ldsy, sc4):
    P = P3; T = P.D
    A('v_mul_f32 v5, %s, %s' % (v(vNF), v(vQF)))
    A('v_mul_f32 v6, %s, v5' % fhex(4/16))
    A('v_mul_f32 v7, %s, %s' % (fhex(1/16), v(vNF)))
    sincos_chain(A, 6, 7, 4, [T+e for e in range(4)], [T+4+e for e in range(4)])
    A('v_lshlrev_b32 v6, 30, %s' % v(vQ))
    A('v_and_b32 v6, 0x80000000, v6')
    for e in range(4):
        cvt(A, P.BRE+e, T+e, T+4+e, False, True)
        cvt(A, P.BIM+e, T+4+e, T+e)
    for e in range(4):
        A('v_xor_b32 %s, v6, %s' % (v(P.BRE+e), v(P.BRE+e)))
        A('v_xor_b32 %s, v6, %s' % (v(P.BIM+e), v(P.BIM+e)))
    A('v_mul_f32 v6, %s, v5' % fhex(4/16))
    A('v_mul_f32 %s, %s, %s' % (v(T+8), fhex(15/32), v(vNF)))
    A('v_sub_f32 %s, v6, %s' % (v(T+8), v(T+8)))
    A('v_cmp_gt_u32 vcc, 2, %s' % v(vQ))
    A('v_cndmask_b32 v6, %s, v6, vcc' % v(T+8))
    sincos_chain(A, 6, 7, 4, [T+e for e in range(4)], [T+4+e for e in range(4)])
    for e in range(4):
        cvt(A, T+8+e, T+e, T+4+e, False, True)
    A('v_lshlrev_b32 v6, 15, %s' % v(vN))
    A('v_and_b32 v6, 0x8000, v6')
    A('v_or_b32 %s, 0x3f00, v6' % v(T+12))
    A('v_cndmask_b32 %s, %s, %s, %s' % (v(T+8), v(T+8), v(T+12), s(sMASK16, 2)))
    for e in range(4):
        A('v_cndmask_b32 %s, 0, %s, vcc' % (v(P.BSR+e), v(T+8+e)))
        A('v_cndmask_b32 %s, %s, 0, vcc' % (v(P.BSI+e), v(T+8+e)))
    A('v_or_b32 v6, 0x3f80, v6')
    A('v_lshlrev_b32 v6, 16, v6')
    A('v_or_b32 %s, 0x3f80, v6' % v(T+12))
    A('v_mul_f32 v6, %s, v5' % fhex(4/32))
    A('v_mul_f32 v7, %s, %s' % (fhex(1/32), v(vNF)))
    sincos_chain(A, 6, 7, 4, [T+e for e in range(4)], [T+4+e for e in range(4)])
    for r in range(4):
        cvt(A, P.CA+r, T+r, T+4+r, False, True)
        cvt(A, P.CA+4+r, T+r, T+4+r, (r & 1) == 1, (r & 1) == 0)
    for t in range(2):
        A('v_cndmask_b32 %s, %s, %s, %s' % (v(P.CA+4*t), v(P.CA+4*t), v(T+12), s(sMASK16, 2)))
    A('v_mul_f32 v6, %s, v5' % fhex(4/512))
    A('v_mul_f32 v7, %s, %s' % (fhex(1/512), v(vNF)))
    sincos_chain(A, 6, 7, 4, [P.TC+e for e in range(4)], [P.TS+e for e in range(4)])
    for e in range(8):
        A('v_mul_f32 %s, %s, %s' % (v(P.TC+e), fhex(sc4), v(P.TC+e)))
    A('v_lshlrev_b32 v5, 2, %s' % v(vN))
    A('v_or_b32 v5, v5, %s' % v(vQ))
    A('s_lshl_b32 s36, %s, 11' % s(sW))
    A('s_add_u32 s36, s36, %d' % ldsy)
    A('v_lshl_add_u32 %s, v5, 4, s36' % v(P.ADR+3))
    A('s_lshl_b32 s36, %s, 3' % s(sB))
    A('s_lshl_b32 s37, %s, 1' % s(sW))
    A('s_add_u32 s36, s36, s37')
    A('s_and_b32 s37, s36, 15')
    A('v_xor_b32 v5, s37, v5')
    A('v_lshlrev_b32 %s, 4, v5' % v(P.ADR+4))
    A('v_xor_b32 %s, 16, %s' % (v(P.ADR+5), v(P.ADR+4)))
    A('s_lshl_b32 s36, s36, 10')
    A('s_add_u32 s56, s36, %d' % G_OFF)
    A('s_add_u32 s57, s36, %d' % HR_OFF)
    A('v_and_b32 v5, 1, %s' % v(vQ))
    A('v_lshlrev_b32 v5, 9, v5')
    A('v_lshl_or_b32 v5, %s, 5, v5' % v(vN))
    A('v_lshrrev_b32 v6, 1, %s' % v(vQ))
    A('v_lshl_or_b32 %s, v6, 4, v5' % v(P.ADR+6))

def p3_xunpack(A):
    P = P3
    for j in range(8):
        A('v_lshlrev_b32 %s, 16, %s' % (v(P.H+2*j), v(P.X+j)))
        A('v_and_b32 %s, 0xffff0000, %s' % (v(P.H+2*j+1), v(P.X+j)))

def p3_stage(A, ldsy):
    P = P3
    assert ldsy % 256 == 0
    o = ldsy // 256
    for jj in range(2):
        for e in (0, 2):
            A('ds_write2st64_b32 %s, %s, %s offset0:%d offset1:%d' % (v(P.ADR+1), v(P.L+4*jj+e), v(P.L+4*jj+e+1), o + 4*e + 2*jj, o + 4*e + 4 + 2*jj))
    A('s_waitcnt lgkmcnt(0)')
    A('s_barrier')

def p3_compute(A, st_mod=''):
    P = P3; D = P.D; T = P.T; H = P.H
    for rho in range(2):
        A('ds_read_b128 %s, %s offset:%d' % (v(P.L+4*rho, 4), v(P.ADR+3), rho*1024))
    for rho in range(2):
        A('s_waitcnt lgkmcnt(%d)' % (1-rho))
        mfma(A, D+16+8*rho, P.L+4*rho, P.BSR)
        mfma(A, D+16+8*rho+4, P.L+4*rho, P.BSI)
        mfma(A, D+8*rho, P.L+4*rho, P.BRE)
        mfma(A, D+8*rho+4, P.L+4*rho, P.BIM)
    for rho in range(2):
        for c in range(2):
            j = 8*rho + 4*c
            A('v_cndmask_b32 %s, %s, %s, %s' % (v(D+j), v(D+j), v(D+16+j), s(sMASK16, 2)))
        for x in range(2):
            o = T + 8*rho + 4*x
            cmul(A, o, o+2, D+8*rho+2*x, D+8*rho+4+2*x, P.TC+2*x, P.TS+2*x, False)
        for r in range(4):
            o = T + 8*rho + 4*(r >> 1) + (r & 1)
            cvt(A, P.L+4*rho+r, o, o+2)
        for t in range(2):
            mfma(A, H+8*rho+4*t, P.L+4*rho, P.CA+4*t, H+8*rho+4*t)
    S = [D, D+2]
    for rho in range(2):
        h = H + 8*rho; d = D + 4 + 4*rho
        A('v_pk_add_f32 %s, %s, %s' % (v(d, 2), v(h, 2), v(h+2, 2)))
        A('v_pk_add_f32 %s, %s, %s' % (v(d+2, 2), v(h+4, 2), v(h+6, 2)))
        A('v_pk_add_f32 %s, %s, %s' % (v(d, 2), v(d, 2), v(d+2, 2)))
        A('v_add_f32 %s, %s, %s' % (v(S[rho]), v(d), v(d+1)))
    HB = P.X
    for j in range(8):
        cvt(A, HB+j, H+2*j, H+2*j+1)
    M = Rec(); xreduce(M, S, [D+1, D+3], [1, 2, 4, 8])
    ops = []
    for rho in range(2):
        o = HB + 4*rho
        ops += ['v_permlane16_swap_b32 %s, %s' % (v(o), v(o+2)), 'v_permlane16_swap_b32 %s, %s' % (v(o+1), v(o+3))]
    for i, op in enumerate(M.ops):
        A(op)
        if i & 1: A(ops.pop(0))
    for rho in range(2):
        A('buffer_store_dwordx4 %s, %s, %s, s57 offen offset:%d%s' % (v(HB+4*rho, 4), v(P.ADR+6), s(SWS, 4), rho*1024, st_mod))
    xreduce(A, S, [D+1, D+3], [16, 32])
    for rho in range(2):
        A('v_mul_f32 %s, %s, %s' % (v(S[rho]), fhex(1/512), v(S[rho])))
    for rho in range(2):
        for j in range(4):
            h = H + 8*rho + 2*j
            A('v_pk_add_f32 %s, %s, %s op_sel_hi:[1,0] neg_lo:[0,1] neg_hi:[0,1]' % (v(h, 2), v(h, 2), v(S[rho], 2)))
    for rho in range(2):
        h = H + 8*rho; d = D + 4 + 4*rho
        A('v_pk_mul_f32 %s, %s, %s' % (v(d, 2), v(h, 2), v(h, 2)))
        for j in range(1, 4):
            A('v_pk_fma_f32 %s, %s, %s, %s' % (v(d, 2), v(h+2*j, 2), v(h+2*j, 2), v(d, 2)))
        A('v_add_f32 %s, %s, %s' % (v(S[rho]), v(d), v(d+1)))
    xreduce(A, S, [D+1, D+3], [1, 2, 4, 8, 16, 32])
    for rho in range(2):
        A('v_mov_b32 %s, %s' % (v(S[rho]+1), fhex(1e-5/LOG2E**2)))
        A('v_fmac_f32 %s, %s, %s' % (v(S[rho]+1), fhex(1/512/LOG2E**2), v(S[rho])))
        A('v_rsq_f32 %s, %s' % (v(S[rho]), v(S[rho]+1)))
    for rho in range(2):
        for j in range(4):
            h = H + 8*rho + 2*j
            A('v_pk_mul_f32 %s, %s, %s op_sel_hi:[1,0]' % (v(h, 2), v(h, 2), v(S[rho], 2)))
        for j in range(4):
            cvt(A, P.L+4*rho+j, H+8*rho+2*j, H+8*rho+2*j+1)
        A('buffer_store_dwordx4 %s, %s, %s, s56 offen offset:%d%s' % (v(P.L+4*rho, 4), v(P.ADR+4+rho), s(SWS, 4), rho*1024, st_mod))

def flag_set(A, soff, tmp, imm=0):
    A('v_mov_b32 %s, %s' % (v(tmp), s(sTAG)))
    A('s_mov_b64 exec, 1')
    A('buffer_store_dword %s, off, %s, %s offset:%d sc1' % (v(tmp), s(SWS, 4), s(soff), imm))
    A('s_mov_b64 exec, -1')

def flag_poll(A, name, vadr, imm=0):
    poll_begin(A, name)
    A('buffer_load_dword v5, %s, %s, 0 offen offset:%d sc1' % (v(vadr), s(SWS, 4), imm))
    A('s_waitcnt vmcnt(0)')
    A('v_xor_b32 v5, %s, v5' % s(sTAG))
    poll_end(A, name, 5)

W1O, W1A, W2O, W2A = 130, 133, 136, 140
def w1reg(ft, kap):
    i = 4*(3*kap + ft)
    return 256 + 176 + i if i < 80 else 252 - (i - 80)
def w2reg(dt, st):
    return 256 + 4*(4*st + dt)

def w1_addr(A):
    vo, va = W1O, W1A
    A('v_and_b32 v5, 63, v0')
    for u in range(3):
        A('v_add_u32 v6, %d, v5' % (64*u))
        A('v_mul_u32_u24 v7, 0xaab, v6')
        A('v_lshrrev_b32 v7, 16, v7')
        A('v_mul_u32_u24 %s, 24, v7' % v(vo+u))
        A('v_sub_u32 v6, v6, %s' % v(vo+u))
        A('v_and_b32 %s, 6, v7' % v(vo+u))
        A('v_xor_b32 v6, v6, %s' % v(vo+u))
        A('v_mul_u32_u24 v7, 2752, v7')
        A('v_lshl_add_u32 v6, v6, 4, v7')
        A('v_subrev_u32 %s, %d, v6' % (v(vo+u), 1024*u))
    A('s_and_b32 s6, %s, 7' % s(sB))
    A('s_mul_i32 s6, s6, 384')
    A('s_lshr_b32 s36, %s, 1' % s(sW))
    A('s_mul_i32 s36, s36, %d' % (256*2752))
    A('s_add_u32 s6, s6, s36')
    A('s_and_b32 s36, %s, 1' % s(sW))
    A('s_mul_i32 s36, s36, %d' % (8*2752))
    A('s_add_u32 s6, s6, s36')

def w1_addr_rd(A, base):
    va = W1A
    A('v_and_b32 v5, 63, v0')
    A('v_lshrrev_b32 v6, 2, v5')
    A('v_mul_u32_u24 v7, 384, v6')
    A('v_and_b32 v5, 3, v5')
    A('v_lshl_add_u32 v7, v5, 3, v7')
    A('v_add_u32 v7, %d, v7' % base)
    A('v_bfe_u32 v6, v6, 1, 2')
    A('s_mul_i32 s36, %s, 3' % s(sW))
    for ft in range(3):
        A('s_add_u32 s37, s36, %d' % ft)
        A('v_xor_b32 v5, s37, v6')
        A('v_lshl_add_u32 %s, v5, 5, v7' % v(va+ft))

def w1_dma(A, k0, k1, lds):
    A('s_add_u32 s36, s6, %d' % (16*k0*2752))
    A('s_mul_i32 s37, %s, 3072' % s(sW))
    A('s_add_u32 m0, s37, %d' % lds)
    for k in range(k0, k1):
        for u in range(3):
            A('buffer_load_dwordx4 %s, %s, s36 offen offset:%d lds' % (v(W1O+u), s(SW1, 4), 1024*u))
        if k + 1 < k1:
            A('s_add_u32 s36, s36, %d' % (16*2752))
            A('s_add_u32 m0, m0, 12288')

def w1_read(A, k0, k1, lds, base):
    cur = base; regs = [W1A, W1A+1, W1A+2]
    for k in range(k0, k1):
        off = lds + (k - k0)*12288
        if off + 6144 - cur > 65535:
            for ft in range(3):
                A('v_add_u32 %s, %d, %s' % (v(5+ft), off - base, v(W1A+ft)))
            cur = off; regs = [5, 6, 7]
        for hi in range(2):
            for ft in range(3):
                A('ds_read_b64_tr_b16 %s, %s offset:%d' % (R(w1reg(ft, k) + 2*hi, 2), v(regs[ft]), off + hi*6144 - cur))

def w2_addr(A):
    vo = W2O
    A('v_and_b32 v5, 63, v0')
    A('v_lshrrev_b32 v6, 3, v5')
    A('v_and_b32 v7, 2, v6')
    A('v_xor_b32 v7, v7, v5')
    A('v_and_b32 v7, 7, v7')
    A('v_lshlrev_b32 v7, 4, v7')
    A('v_lshl_or_b32 %s, v6, 10, v7' % v(vo))
    A('v_xor_b32 v7, 64, %s' % v(vo))
    A('v_add_u32 %s, %d, v7' % (v(vo+1), 7168))
    A('v_add_u32 %s, %d, %s' % (v(vo+2), 2*7168, v(vo)))
    A('v_add_u32 %s, %d, v7' % (v(vo+3), 3*7168))
    A('s_and_b32 s7, %s, 7' % s(sB))
    A('s_lshl_b32 s7, s7, 7')
    A('s_mul_i32 s36, %s, %d' % (s(sW), 11*32*1024))
    A('s_add_u32 s7, s7, s36')

def w2_addr_rd(A, lds, pitch):
    va = W2A
    A('v_and_b32 v5, 63, v0')
    A('v_bfe_u32 v6, v5, 2, 2')
    A('v_lshl_or_b32 v6, %s, 3, v6' % v(vQ))
    A('v_and_b32 v7, 3, v5')
    A('v_lshlrev_b32 v7, 3, v7')
    A('v_lshl_or_b32 v7, v6, 7, v7')
    A('v_bfe_u32 v6, v5, 3, 2')
    A('v_xor_b32 v6, %s, v6' % s(sW))
    A('v_lshl_or_b32 v7, v6, 5, v7')
    A('s_mul_i32 s36, %s, %d' % (s(sW), pitch))
    A('s_add_u32 s36, s36, %d' % lds)
    assert lds % 128 == 0 and pitch % 128 == 0
    A('v_add_u32 %s, s36, v7' % v(va))
    for dt in range(1, 4):
        A('v_xor_b32 %s, %d, %s' % (v(va+dt), 32*dt, v(va)))

def w2_dma(A, st0, st1, lds, pitch):
    A('s_add_u32 s36, s7, %d' % (st0*32*1024))
    A('s_mul_i32 s37, %s, %d' % (s(sW), pitch))
    A('s_add_u32 m0, s37, %d' % lds)
    for st in range(st0, st1):
        for u in range(4):
            A('buffer_load_dwordx4 %s, %s, s36 offen offset:%d lds' % (v(W2O+u), s(SW2, 4), 1024*u))
        if st + 1 < st1:
            A('s_add_u32 s36, s36, %d' % (32*1024))
            A('s_add_u32 m0, m0, 4096')

def w2_read(A, st0, st1, off0=0):
    for st in range(st0, st1):
        for dt in range(4):
            for hi in range(2):
                A('ds_read_b64_tr_b16 %s, %s offset:%d' % (R(w2reg(dt, st) + 2*hi, 2), v(W2A+dt), off0 + (st-st0)*4096 + hi*512))

class G1:
    ACC = 16
    BF = 64
    T = 96
    O = 108
    ADR = 120

def flag_addr(A):
    A('s_lshl_b32 s36, %s, 2' % s(sB))
    A('s_add_u32 s36, s36, %s' % s(sW))
    A('s_lshl_b32 s37, s36, 7')
    A('s_add_u32 s58, s37, %d' % FL1_OFF)
    A('s_lshl_b32 s37, s36, 8')
    A('s_add_u32 s59, s37, %d' % FL2_OFF)

def g1_setup(A, ldsg):
    G = G1
    for k in range(4):
        A('v_or_b32 v5, %d, %s' % (4*k, v(vQ)))
        A('v_xor_b32 v5, v5, %s' % v(vN))
        A('v_lshlrev_b32 v5, 4, v5')
        A('v_lshl_or_b32 %s, %s, 10, v5' % (v(G.ADR+k), v(vN)))
        if ldsg:
            A('v_add_u32 %s, %d, %s' % (v(G.ADR+k), ldsg, v(G.ADR+k)))
    A('v_and_b32 v5, 63, v0')
    A('v_lshlrev_b32 %s, 4, v5' % v(G.ADR+4))
    A('v_and_b32 v5, 1, %s' % v(vQ))
    A('v_mul_u32_u24 v5, 49152, v5')
    A('v_lshrrev_b32 v6, 1, %s' % v(vQ))
    A('v_lshl_add_u32 v5, v6, 8, v5')
    A('v_lshl_add_u32 %s, %s, 4, v5' % (v(G.ADR+5), v(vN)))
    A('s_lshr_b32 s36, %s, 3' % s(sB))
    A('s_mul_i32 s48, s36, %d' % (4*49152))
    A('s_and_b32 s37, %s, 7' % s(sB))
    A('s_lshl_b32 s37, s37, 2')
    A('s_add_u32 s37, s37, %s' % s(sW))
    A('s_mul_i32 s37, s37, 1536')
    A('s_add_u32 s48, s48, s37')
    A('s_add_u32 s48, s48, %d' % H_OFF)
    A('s_add_u32 s49, s48, %d' % (2*49152))
    A('s_lshl_b32 s37, s36, 4')
    A('s_add_u32 s37, s37, %s' % s(sW))
    A('s_lshl_b32 s37, s37, 8')
    A('s_add_u32 s37, s37, %d' % FL1_OFF)
    A('v_and_b32 v5, 6, v0')
    A('v_lshlrev_b32 v5, 9, v5')
    A('v_and_b32 v6, 1, v0')
    A('v_lshl_or_b32 v5, v6, 7, v5')
    A('v_add_u32 %s, s37, v5' % v(G.ADR+6))
    A('s_lshl_b32 s36, s36, 16')
    A('s_lshl_b32 s37, %s, 12' % s(sW))
    A('s_add_u32 s36, s36, s37')
    A('s_add_u32 s50, s36, %d' % G_OFF)
    A('s_add_u32 s51, s37, %d' % ldsg)

def g1_dma(A, mod=''):
    G = G1
    A('s_mov_b32 m0, s51')
    A('s_mov_b32 s36, s50')
    for rt in range(4):
        for u in range(4):
            A('buffer_load_dwordx4 %s, %s, s36 offen offset:%d%s lds' % (v(G.ADR+4), s(SWS, 4), 1024*u, mod))
        if rt < 3:
            A('s_add_u32 s36, s36, 16384')
            A('s_add_u32 m0, m0, 16384')

def silu_ops(rt):
    G = G1; ops = []
    for ft in range(3):
        acc = G.ACC + 12*rt + 4*ft; t = G.T + 4*ft
        for r in range(4):
            ops.append('v_exp_f32 %s, -%s' % (v(t+r), v(acc+r)))
        for r in range(4):
            ops.append('v_add_f32 %s, 1.0, %s' % (v(t+r), v(t+r)))
        for r in range(4):
            ops.append('v_rcp_f32 %s, %s' % (v(t+r), v(t+r)))
        for r in range(4):
            ops.append('v_mul_f32 %s, %s, %s' % (v(t+r), v(t+r), v(acc+r)))
        for x in range(2):
            ops.append('v_cvt_pk_bf16_f32 %s, %s, %s' % (v(G.O+4*ft+2*(rt & 1)+x), v(t+2*x), v(t+2*x+1)))
    return ops

def hstore_ops(j, st_mod):
    G = G1; ops = []
    for ft in range(3):
        o = G.O + 4*ft
        ops.append('v_permlane16_swap_b32 %s, %s' % (v(o), v(o+2)))
        ops.append('v_permlane16_swap_b32 %s, %s' % (v(o+1), v(o+3)))
    for ft in range(3):
        o = G.O + 4*ft
        ops.append('buffer_store_dwordx4 %s, %s, %s, %s offen offset:%d%s' % (v(o, 4), v(G.ADR+5), s(SWS, 4), s(48+j), ft*512, st_mod))
    return ops

def op_cost(op):
    return 8 if any(op.startswith(t) for t in TRANS) else 4

def g1_compute(A, st_mod='', first_fill=(), flags=True, S=lambda A, i: None):
    G = G1
    DEPTH = 6
    vm_young = [0]
    def rd(K):
        rt, k = K >> 4, K & 15
        if k == 0:
            A('s_waitcnt vmcnt(%d)' % min(63, 12 - 4*rt + vm_young[0]))
            A('s_barrier')
        A('ds_read_b128 %s, %s offset:%d' % (v(G.BF+4*(K & 7), 4), v(G.ADR+(k & 3)), rt*16384 + (k >> 2)*256))
    def emit(op):
        A(op)
        if op.startswith('buffer_'): vm_young[0] += 1
    for K in range(DEPTH): rd(K)
    fill = list(first_fill)
    for K in range(64):
        rt, k = K >> 4, K & 15
        budget = 0
        if K % 2 == 0:
            A('s_waitcnt lgkmcnt(%d)' % max(0, min(DEPTH-2, 62-K)))
        for ft in range(3):
            acc = G.ACC + 12*rt + 4*ft
            mfma(A, acc, w1reg(ft, k), G.BF+4*(K & 7), acc if k else None)
            budget += 8
            if ft == 0 and K + DEPTH < 64:
                rd(K + DEPTH); budget -= 4
            if ft == 2 and K % 2 == 1: budget -= 4
            if k >= 1 or rt == 0:
                left = (15 - k)*3 + (2 - ft)
                while fill and (budget >= op_cost(fill[0]) or sum(map(op_cost, fill)) > 8*left):
                    budget -= op_cost(fill[0]); emit(fill.pop(0))
                    if rt == 0: break
        if k == 15:
            for op in fill: emit(op)
            S(A, rt)
            fill = silu_ops(rt)
            if rt & 1: fill += hstore_ops(rt >> 1, st_mod)
    for op in fill[:-3]: A(op)
    if flags:
        A('s_waitcnt vmcnt(0)')
        flag_set(A, 59, 5, 0)
    for op in fill[-3:]: A(op)

class G2:
    ADR = 8
    HR = 16
    T = 24
    HF = 80
    ACC = 256 + 176

def g2_setup(A, ldsr):
    G = G2
    A('v_and_b32 v5, 63, v0')
    A('v_lshlrev_b32 %s, 4, v5' % v(G.ADR))
    A('s_lshr_b32 s36, %s, 3' % s(sB))
    A('s_mul_i32 s37, s36, %d' % (4*49152))
    A('s_mul_i32 s38, %s, %d' % (s(sW), 11*1024))
    A('s_add_u32 s37, s37, s38')
    for rt in range(4):
        A('s_add_u32 %s, s37, %d' % (s(40+rt), H_OFF + rt*49152))
    for dl in range(4):
        A('s_xor_b32 s38, %s, %d' % (s(sW), dl))
        A('s_mul_i32 s39, s38, 12288')
        A('s_add_u32 s39, s39, %d' % (ldsr + max(dl-1, 0)*4096))
        A('v_add_u32 %s, s39, %s' % (v(G.ADR+1+dl), v(G.ADR)))
    A('s_mul_i32 s37, %s, 22' % s(sW))
    A('s_mul_i32 s37, s37, 0x5556')
    A('s_lshr_b32 s37, s37, 16')
    A('s_lshl_b32 s38, s36, 5')
    A('s_add_u32 s37, s37, s38')
    A('s_lshl_b32 s37, s37, 8')
    A('s_add_u32 s37, s37, %d' % FL2_OFF)
    A('v_and_b32 v5, 7, v0')
    A('v_lshl_add_u32 %s, v5, 8, s37' % v(G.ADR+7))
    A('s_lshl_b32 s37, s36, 16')
    A('s_and_b32 s38, %s, 7' % s(sB))
    A('s_lshl_b32 s38, s38, 2')
    A('s_add_u32 s38, s38, %s' % s(sW))
    A('s_lshl_b32 s38, s38, 5')
    A('s_add_u32 s37, s37, s38')
    for rt in range(4):
        A('s_add_u32 %s, s37, %d' % (s(52+rt), HR_OFF + rt*16384))
    A('v_lshlrev_b32 v5, 10, %s' % v(vN))
    A('v_lshl_or_b32 %s, %s, 3, v5' % (v(G.ADR+5), v(vQ)))
    A('s_lshr_b32 s37, %s, 5' % s(sB))
    A('s_lshl_b32 s37, s37, 8')
    A('s_and_b32 s39, %s, 24' % s(sB))
    A('s_add_u32 s37, s37, s39')
    A('s_lshl_b32 s37, s37, 10')
    A('s_add_u32 s44, s37, s38')
    A('s_add_u32 s45, s44, 4096')
    A('v_and_b32 v5, 7, %s' % v(vN))
    A('v_lshlrev_b32 v5, 15, v5')
    A('v_lshrrev_b32 v6, 3, %s' % v(vN))
    A('v_lshl_or_b32 v5, v6, 10, v5')
    A('v_and_b32 v6, 1, %s' % v(vQ))
    A('v_lshl_or_b32 v5, v6, 11, v5')
    A('v_lshrrev_b32 v6, 1, %s' % v(vQ))
    A('v_lshl_or_b32 %s, v6, 4, v5' % v(G.ADR+6))

def g2_load_ops(j, mod=''):
    G = G2; ops = []
    for st in range(11):
        if st in (4, 8):
            for e in range(2):
                ops.append('s_add_u32 %s, %s, 4096' % (s(40+2*j+e), s(40+2*j+e)))
        for e in range(2):
            ops.append('buffer_load_dwordx4 %s, %s, %s, %s offen offset:%d%s' % (v(G.HF+88*j+8*st+4*e, 4), v(G.ADR), s(SWS, 4), s(40+2*j+e), (st & 3)*1024, mod))
    return ops

def g2_res_loads(A, mod=''):
    G = G2
    for rt in range(4):
        A('buffer_load_dwordx2 %s, %s, %s, %s offen%s' % (v(G.HR+2*rt, 2), v(G.ADR+5), s(SWS, 4), s(52+rt), mod))

def g2_mfma(A, j, young, fill=()):
    G = G2; fill = list(fill)
    for st in range(11):
        for e in range(2):
            A('s_waitcnt vmcnt(%d)' % (young + 21 - 2*st - e))
            for dl in range(4):
                acc = G.ACC + 16*(2*j+e) + 4*dl
                mfma(A, acc, w2reg(dl, st), G.HF+88*j+8*st+4*e, acc if st else None)
            if st >= 1 and fill: A(fill.pop(0))
    for op in fill: A(op)

def g2_red_writes(j):
    G = G2
    return ['ds_write_b128 %s, %s offset:%d' % (v(G.ADR+1+dl), R(G.ACC+16*rt+4*dl, 4), rt*1024) for rt in (2*j, 2*j+1) for dl in range(1, 4)]

def g2_finish(A, S_=lambda A, i: None):
    G = G2; T = G.T
    for op in g2_red_writes(1): A(op)
    S = G.HF
    for rt in range(4):
        for r in range(4):
            A('v_accvgpr_read_b32 %s, %s' % (v(S+4*rt+r), R(G.ACC+16*rt+r)))
    for j in range(8):
        A('v_lshlrev_b32 %s, 16, %s' % (v(S+16+2*j), v(G.HR+j)))
        A('v_and_b32 %s, 0xffff0000, %s' % (v(S+16+2*j+1), v(G.HR+j)))
    A('s_mov_b32 s62, %s' % fhex(1/LOG2E))
    A('s_mov_b32 s63, s62')
    A('s_waitcnt lgkmcnt(0)')
    A('s_barrier')
    S_(A, 0)
    for rt in range(4):
        for k in range(3):
            A('ds_read_b128 %s, %s offset:%d' % (v(T+12*rt+4*k, 4), v(G.ADR+1), k*4096 + rt*1024))
    O = G.HR
    for rt in range(4):
        A('s_waitcnt lgkmcnt(%d)' % (9 - 3*rt))
        t = T + 12*rt
        for x in range(2):
            A('v_pk_add_f32 %s, %s, %s' % (v(t+2*x, 2), v(t+2*x, 2), v(t+4+2*x, 2)))
            A('v_pk_add_f32 %s, %s, %s' % (v(S+4*rt+2*x, 2), v(S+4*rt+2*x, 2), v(t+8+2*x, 2)))
        for x in range(2):
            A('v_pk_add_f32 %s, %s, %s' % (v(t+2*x, 2), v(t+2*x, 2), v(S+4*rt+2*x, 2)))
        for x in range(2):
            A('v_pk_fma_f32 %s, %s, s[62:63], %s' % (v(t+2*x, 2), v(t+2*x, 2), v(S+16+4*rt+2*x, 2)))
        for x in range(2):
            cvt(A, O+2*rt+x, t+2*x, t+2*x+1)
        if rt & 1:
            o = O + 4*(rt >> 1)
            A('v_permlane16_swap_b32 %s, %s' % (v(o), v(o+2)))
            A('v_permlane16_swap_b32 %s, %s' % (v(o+1), v(o+3)))
            A('buffer_store_dwordx4 %s, %s, %s, %s offen' % (v(o, 4), v(G.ADR+6), s(SOUT, 4), s(44 + (rt >> 1))))

CLK = ['s_memrealtime']
def stamp(A, idx):
    A('%s %s' % (CLK[0], s(64 + 2*idx, 2)))
def stamp_dump(A, slot, n):
    A('s_waitcnt vmcnt(0) lgkmcnt(0)')
    stamp(A, n)
    A('s_waitcnt lgkmcnt(0)')
    A('v_mov_b32 v5, 0')
    for i in range(n + 1):
        A('v_writelane_b32 v5, %s, %d' % (s(64 + 2*i), i))
    A('s_lshl_b32 s36, %s, 2' % s(sB))
    A('s_add_u32 s36, s36, %s' % s(sW))
    A('s_lshl_b32 s36, s36, 6')
    A('s_add_u32 s36, s36, %d' % (STAMP_OFF + slot*65536))
    A('v_and_b32 v6, 63, v0')
    A('v_lshlrev_b32 v6, 2, v6')
    A('s_mov_b64 exec, 0xffff')
    A('buffer_store_dword v5, v6, %s, s36 offen' % s(SWS, 4))
```

```python
import sys
from phases import *
NAME = 'sequential_preLN__spectral_gfnet__dense_activation_silu__prompt_kernel'
HEAD = open('sequential_preLN__spectral_gfnet__dense_activation_silu__prompt.s.ref').read().split('; Override')[0]
ST = 'stamp' in sys.argv
if 'cyc' in sys.argv: CLK[0] = 's_memtime'
opt = dict(a.split('=') for a in sys.argv if '=' in a)
def S(A, i):
    if ST: stamp(A, i)

SC1, SCY = 2.0**-73, 2.0**-104
STG = 36864
A = Asm()
A('.globl %s\n.p2align 8\n.type %s,@function\n%s:' % (NAME, NAME, NAME))
prologue(A, 'L_end', ST)
if opt.get('pf', '1') == '1':
    A('s_bfe_u32 s36, s2, 0x20003')
    A('s_cmp_lg_u32 s36, %s' % s(sW))
    A('s_cbranch_scc1 L_nopf')
    A('s_getpc_b64 s[40:41]')
    A('L_pc:')
    A('s_mov_b32 s42, L_code_end-L_pc')
    A('s_mov_b32 s43, 0x20000')
    A('v_lshlrev_b32 v5, 7, v0')
    A('buffer_load_dword v129, v5, s[40:43], 0 offen')
    A('L_nopf:')
p1_loads(A, 0)
A('s_load_dword %s, %s, %d' % (s(sTAG), s(SWS, 2), GEN_OFF))
p1_consts(A)
p1_wloads(A, 0)
w1_addr(A)
NA, NB, NC = int(opt.get('na', 5)), int(opt.get('nb', 5)), int(opt.get('nc', 3))
w1_dma(A, 0, NA, STG)
p1_addrs(A, 16384)
A('s_waitcnt lgkmcnt(0)')
A('s_add_u32 %s, %s, 0x9e3779b1' % (s(sTAG), s(sTAG)))
p1_tags(A)
S(A, 1)
p1_compute(A, 0, 16384, 2 + 3*NA, 3*NA, SC1, ' sc1')
S(A, 2)
w1_dma(A, NA, NA+NB, STG + NA*12288)
p2_addr_loads(A); p2_setup(A, 0, 8448, 16768, 1/SC1, SCY); p2_tags(A)
w1_addr_rd(A, STG)
A('s_waitcnt vmcnt(0)'); A('s_barrier')
w1_read(A, 0, NA+NB, STG, STG)
S(A, 3)
p2_poll(A)
S(A, 4)
p2_stage(A, None)
K1 = NA + NB
if NC: w1_dma(A, K1, K1+NC, STG)
p2_compute(A, 0, 8448, 16768, ' sc1')
S(A, 5)
if K1 + NC < 16: w1_dma(A, K1+NC, 16, STG + NC*12288)
W2D = STG + (16-K1)*12288
ND = min(int(opt.get('nd', 3)), (163840 - W2D)//16384)
w2_addr(A)
w2_dma(A, 0, ND, W2D, ND*4096)
gen_update(A, 'gen')
p3_xloads(A)
p3_addr_loads(A); p3_setup(A, 0, 2.0**-19/SCY); p3_tags(A); flag_addr(A)
w2_addr_rd(A, W2D, ND*4096)
A('s_waitcnt vmcnt(0)'); A('s_barrier')
w1_read(A, K1, 16, STG, STG)
w2_read(A, 0, ND)
p3_xunpack(A)
S(A, 6)
p3_poll(A)
S(A, 7)
p3_stage(A, 0)
NE = int(opt.get('ne', 3))
w2_dma(A, ND, ND+NE, 65536, 24576)
p3_compute(A, ' sc1')
S(A, 8)
g1_setup(A, 0); w2_addr_rd(A, 65536, 24576)
A('s_waitcnt vmcnt(0)')
flag_set(A, 58, 5)
w2_read(A, ND, ND+NE)
g2_setup(A, 0)
A('s_waitcnt lgkmcnt(0)'); A('s_barrier')
flag_poll(A, 'l1', G1.ADR+6)
g1_dma(A, ' sc1')
S(A, 9)
F = Rec(); w2_dma(F, ND+NE, 11, 65536, 24576)
g1_compute(A, ' sc1', F.ops)
S(A, 10)
w2_read(A, ND+NE, 11)
flag_poll(A, 'l2a', G2.ADR+7, 0)
flag_set(A, 59, 5, 128)
g2_res_loads(A, ' sc1')
for op in g2_load_ops(0, ' sc1'): A(op)
A('s_waitcnt lgkmcnt(0)'); A('s_barrier')
S(A, 11)
g2_mfma(A, 0, 0)
flag_poll(A, 'l2b', G2.ADR+7, 128)
for op in g2_load_ops(1, ' sc1'): A(op)
S(A, 12)
g2_mfma(A, 1, 0, g2_red_writes(0))
S(A, 13)
g2_finish(A)
S(A, 14)
if ST: stamp_dump(A, 0, 15)
A('L_end:')
A('s_endpgm')
A('L_code_end:')
st = {}
txt = A.finish(st)
print('nops', st['nops'], file=sys.stderr)
out = HEAD + '; @launch grid=(256,1,1) block=(256,1,1) lds=163840\n.amdgcn_target "amdgcn-amd-amdhsa--gfx950"\n.text\n' + txt
out += '''.section .rodata,"a"
.p2align 6
.amdhsa_kernel %s
  .amdhsa_next_free_vgpr 512
  .amdhsa_next_free_sgpr 96
  .amdhsa_accum_offset 256
  .amdhsa_group_segment_fixed_size 0
  .amdhsa_kernarg_size 72
  .amdhsa_user_sgpr_count 2
  .amdhsa_user_sgpr_kernarg_segment_ptr 1
  .amdhsa_system_sgpr_workgroup_id_x 1
.end_amdhsa_kernel
''' % NAME
open(sys.argv[1], 'w').write(out)
```

```python
import sys
from phases import *
NAME = 'sequential_preLN__spectral_gfnet__dense_activation_silu__prompt_kernel'
HEAD = open('sequential_preLN__spectral_gfnet__dense_activation_silu__prompt.s.ref').read().split('; Override')[0]
ST = 'stamp' in sys.argv
if 'cyc' in sys.argv: CLK[0] = 's_memtime'
opt = dict(a.split('=') for a in sys.argv if '=' in a)
def S(A, i):
    if ST: stamp(A, i)

SC1, SCY = 2.0**-73, 2.0**-104
STG = 36864
A = Asm()
A('.globl %s\n.p2align 8\n.type %s,@function\n%s:' % (NAME, NAME, NAME))
prologue(A, 'L_end', ST or 'fix' in opt)
if opt.get('pf', '1') == '1':
    A('s_bfe_u32 s36, s2, 0x20003')
    A('s_cmp_lg_u32 s36, %s' % s(sW))
    A('s_cbranch_scc1 L_nopf')
    A('s_getpc_b64 s[40:41]')
    A('L_pc:')
    A('s_mov_b32 s42, L_code_end-L_pc')
    A('s_mov_b32 s43, 0x20000')
    A('v_lshlrev_b32 v5, 7, v0')
    A('buffer_load_dword v129, v5, s[40:43], 0 offen')
    A('L_nopf:')
p1_loads(A, 0)
A('s_load_dword %s, %s, %d' % (s(sTAG), s(SWS, 2), GEN_OFF))
p1_consts(A)
p1_wloads(A, 0)
w1_addr(A)
NA, NB, NC = int(opt.get('na', 5)), int(opt.get('nb', 5)), int(opt.get('nc', 3))
w1_dma(A, 0, NA, STG)
p1_addrs(A, 16384)
A('s_waitcnt lgkmcnt(0)')
A('s_add_u32 %s, %s, 0x9e3779b1' % (s(sTAG), s(sTAG)))
p1_tags(A)
S(A, 1)
p1_compute(A, 0, 16384, 2 + 3*NA, 3*NA, SC1, ' sc1')
S(A, 2)
w1_dma(A, NA, NA+NB, STG + NA*12288)
p2_addr_loads(A); p2_setup(A, 0, 8448, 16768, 1/SC1, SCY); p2_tags(A)
w1_addr_rd(A, STG)
A('s_waitcnt vmcnt(0)'); A('s_barrier')
w1_read(A, 0, NA+NB, STG, STG)
S(A, 3)
p2_poll(A)
S(A, 4)
p2_stage(A, None)
K1 = NA + NB
if NC: w1_dma(A, K1, K1+NC, STG)
p2_compute(A, 0, 8448, 16768, ' sc1')
S(A, 5)
if K1 + NC < 16: w1_dma(A, K1+NC, 16, STG + NC*12288)
W2D = STG + (16-K1)*12288
ND = min(int(opt.get('nd', 3)), (163840 - W2D)//16384)
w2_addr(A)
w2_dma(A, 0, ND, W2D, ND*4096)
gen_update(A, 'gen')
p3_xloads(A)
p3_addr_loads(A); p3_setup(A, 0, 2.0**-19/SCY); p3_tags(A); flag_addr(A)
w2_addr_rd(A, W2D, ND*4096)
A('s_waitcnt vmcnt(0)'); A('s_barrier')
w1_read(A, K1, 16, STG, STG)
w2_read(A, 0, ND)
p3_xunpack(A)
S(A, 6)
p3_poll(A)
S(A, 7)
p3_stage(A, 0)
NE = int(opt.get('ne', 3))
w2_dma(A, ND, ND+NE, 65536, 24576)
p3_compute(A, ' sc1')
S(A, 8)
g1_setup(A, 0); w2_addr_rd(A, 65536, 24576)
A('s_waitcnt vmcnt(0)')
flag_set(A, 58, 5)
w2_read(A, ND, ND+NE)
g2_setup(A, 0)
A('s_waitcnt lgkmcnt(0)'); A('s_barrier')
flag_poll(A, 'l1', G1.ADR+6)
g1_dma(A, ' sc1')
S(A, 9)
F = Rec(); w2_dma(F, ND+NE, 11, 65536, 24576)
g1_compute(A, ' sc1', F.ops)
S(A, 10)
w2_read(A, ND+NE, 11)
flag_poll(A, 'l2a', G2.ADR+7, 0)
flag_set(A, 59, 5, 128)
g2_res_loads(A, ' sc1')
for op in g2_load_ops(0, ' sc1'): A(op)
A('s_waitcnt lgkmcnt(0)'); A('s_barrier')
S(A, 11)
g2_mfma(A, 0, 0)
flag_poll(A, 'l2b', G2.ADR+7, 128)
for op in g2_load_ops(1, ' sc1'): A(op)
S(A, 12)
g2_mfma(A, 1, 0, g2_red_writes(0))
S(A, 13)
g2_finish(A)
S(A, 14)
if ST: stamp_dump(A, 0, 15)
if 'fix' in opt:
    A('L_fix:')
    A('s_memrealtime s[66:67]')
    A('s_waitcnt lgkmcnt(0)')
    A('s_sub_u32 s66, s66, s64')
    A('s_cmp_lt_u32 s66, %d' % (int(opt['fix'])*100))
    A('s_cbranch_scc1 L_fix')
A('L_end:')
A('s_endpgm')
A('L_code_end:')
st = {}
txt = A.finish(st)
print('nops', st['nops'], file=sys.stderr)
out = HEAD + '; @launch grid=(256,1,1) block=(256,1,1) lds=163840\n.amdgcn_target "amdgcn-amd-amdhsa--gfx950"\n.text\n' + txt
out += '''.section .rodata,"a"
.p2align 6
.amdhsa_kernel %s
  .amdhsa_next_free_vgpr 512
  .amdhsa_next_free_sgpr 96
  .amdhsa_accum_offset 256
  .amdhsa_group_segment_fixed_size 0
  .amdhsa_kernarg_size 72
  .amdhsa_user_sgpr_count 2
  .amdhsa_user_sgpr_kernarg_segment_ptr 1
  .amdhsa_system_sgpr_workgroup_id_x 1
.end_amdhsa_kernel
''' % NAME
open(sys.argv[1], 'w').write(out)
```

```python
import re, struct

def f2u(x):
    return struct.unpack('<I', struct.pack('<f', x))[0]
def fhex(x):
    return '0x%08x' % f2u(x)

def v(n, c=1):
    return 'v%d' % n if c == 1 else 'v[%d:%d]' % (n, n + c - 1)
def a(n, c=1):
    return 'a%d' % n if c == 1 else 'a[%d:%d]' % (n, n + c - 1)
def s(n, c=1):
    return 's%d' % n if c == 1 else 's[%d:%d]' % (n, n + c - 1)
def R(n, c=1):
    return v(n, c) if n < 256 else a(n - 256, c)

TRANS = ('v_exp_f32', 'v_log_f32', 'v_rcp_f32', 'v_rsq_f32', 'v_sqrt_f32', 'v_sin_f32', 'v_cos_f32')
REG_RE = re.compile(r'^-?\|?(?:abs\()?([vas])(?:(\d+)|\[(\d+):(\d+)\])\)?\|?$')

def regs_of(op):
    op = op.strip()
    if op in ('vcc',):
        return [('s', 106), ('s', 107)]
    if op == 'vcc_lo': return [('s', 106)]
    if op == 'vcc_hi': return [('s', 107)]
    if op == 'exec': return [('s', 126), ('s', 127)]
    if op == 'exec_lo': return [('s', 126)]
    if op == 'exec_hi': return [('s', 127)]
    if op == 'm0': return [('s', 124)]
    m = REG_RE.match(op)
    if not m:
        return []
    k = m.group(1)
    if m.group(2) is not None:
        return [(k, int(m.group(2)))]
    return [(k, i) for i in range(int(m.group(3)), int(m.group(4)) + 1)]

class Ins:
    def __init__(self, text):
        self.text = text
        t = text.split(';')[0].strip()
        self.label = t.endswith(':')
        self.directive = t.startswith('.')
        self.empty = (t == '')
        self.mn = ''
        self.w = []; self.r = []
        self.states = 0
        if self.label or self.directive or self.empty:
            return
        parts = t.split(None, 1)
        mn = parts[0]; self.mn = mn
        rest = parts[1] if len(parts) > 1 else ''
        ops = []; depth = 0; cur = ''
        for ch in rest:
            if ch in '[(': depth += 1
            if ch in '])': depth -= 1
            if ch == ',' and depth == 0:
                ops.append(cur.strip()); cur = ''
            else:
                cur += ch
        if cur.strip(): ops.append(cur.strip())
        mods = ''
        if ops:
            sp = ops[-1].split(None, 1)
            ops[-1] = sp[0]
            mods = sp[1] if len(sp) > 1 else ''
        self.ops = ops; self.mods = mods
        self.states = 1
        self.mfma = mn.startswith('v_mfma')
        self.valu = mn.startswith('v_') and not self.mfma
        self.trans = any(mn.startswith(x) for x in TRANS)
        self.dot = mn.startswith('v_dot')
        self.dpp = '_dpp' in mn or any(k in mods for k in ('row_', 'quad_perm'))
        self.perml = mn.startswith('v_permlane')
        self.rdlane = mn.startswith('v_readlane') or mn.startswith('v_readfirstlane')
        self.vmem = mn.startswith('buffer_') or mn.startswith('global_')
        self.ds = mn.startswith('ds_')
        self.salu = mn.startswith('s_')
        self.ldsdma = self.vmem and (' lds' in (' ' + mods) or 'load_lds' in mn)
        self.widestore = self.vmem and 'store' in mn and ('x4' in mn or 'x3' in mn)
        self.branch = mn.startswith('s_cbranch') or mn == 's_branch'
        R_ = [regs_of(o) for o in ops]
        if mn == 's_nop':
            self.states = int(ops[0], 0) + 1
        elif self.mfma:
            self.w = R_[0]; self.ra = R_[1]; self.rb = R_[2]; self.rc = R_[3]
            self.r = R_[1] + R_[2] + R_[3]
            self.passes = 8 if '32x32' in mn else 4
        elif self.valu:
            if self.perml:
                self.w = R_[0] + R_[1]; self.r = R_[0] + R_[1]
            elif mn.startswith('v_cmp'):
                self.w = R_[0]; self.r = sum(R_[1:], [])
            elif '_co_' in mn:
                self.w = R_[0] + R_[1]; self.r = sum(R_[2:], [])
            else:
                self.w = R_[0]; self.r = sum(R_[1:], [])
                if mn.startswith('v_fmac') or mn.startswith('v_dot2c') or self.dpp or mn.startswith('v_writelane'):
                    self.r = self.r + R_[0]
        elif self.vmem:
            if self.ldsdma:
                self.r = sum(R_, []) + [('s', 124)]
            elif 'load' in mn:
                self.w = R_[0]; self.r = sum(R_[1:], [])
            elif 'store' in mn or 'atomic' in mn:
                self.r = sum(R_, [])
                self.data = R_[0] if mn.startswith('buffer_') else R_[1]
        elif self.ds:
            if 'read' in mn or 'permute' in mn or 'swizzle' in mn:
                self.w = R_[0]; self.r = sum(R_[1:], [])
            else:
                self.r = sum(R_, [])
        elif self.salu:
            if mn.startswith('s_cmp') or mn.startswith('s_waitcnt') or self.branch or mn in ('s_barrier', 's_endpgm', 's_sleep', 's_setprio', 's_bitcmp0_b32', 's_bitcmp1_b32'):
                self.r = sum(R_, [])
            else:
                self.w = R_[0] if R_ else []; self.r = sum(R_[1:], [])
                if 'saveexec' in mn: self.w = self.w + [('s', 126), ('s', 127)]

def need(p, c):
    n = 0
    pw = set(p.w); cr = set(c.r); cw = set(c.w)
    if p.mfma:
        big = p.passes == 8
        if c.mfma:
            if pw & (set(c.ra) | set(c.rb)): n = max(n, 12 if big else 8)
            if pw & set(c.rc):
                if not (p.w == c.rc and p.passes == c.passes): n = max(n, 10 if big else 6)
            elif pw & cw:
                n = max(n, 10 if big else 6)
        elif c.valu or c.vmem or c.ds:
            if pw & (cr | cw): n = max(n, 12 if big else 8)
        if (c.valu) and set(p.rc) & cw: n = max(n, 7 if big else 3)
    elif p.valu:
        pv = set(x for x in pw if x[0] != 's'); ps = pw - pv
        if c.mfma and pv & cr: n = max(n, 2)
        if c.mfma and p.mn.startswith('v_pk_') and re.search(r'op_sel:\[[01,]*1', p.mods): n = max(n, 2)
        if p.trans and c.valu and pv & cr: n = max(n, 1)
        if p.dot and (c.valu or c.mfma) and pv & (cr | cw):
            same_c = (c.mn == p.mn and c.valu and not (pv & set(regs_of(c.ops[1]) + regs_of(c.ops[2]))))
            if not same_c: n = max(n, 3)
        if p.dot and (c.vmem or c.ds) and pv & cr: n = max(n, 3)
        if c.valu and (c.dpp or c.perml) and pv & cr: n = max(n, 2)
        if c.valu and c.rdlane and pv & cr: n = max(n, 1)
        if ps:
            if c.valu and ps & cr: n = max(n, 4 if c.rdlane else 2)
            if c.valu and c.mn.startswith('v_cndmask') and len(c.ops) == 4 and ps & set(regs_of(c.ops[3])): n = max(n, 2)
            if c.vmem and ps & cr: n = max(n, 5)
            if c.salu and ps & cr: n = max(n, 1)
    elif p.vmem:
        if p.widestore and set(p.data) & cw: n = max(n, 2)
    elif p.salu:
        if ('s', 124) in pw and (c.vmem and c.ldsdma): n = max(n, 1)
    return n

class Asm:
    def __init__(self):
        self.lines = []
    def __call__(self, text):
        for ln in text.split('\n'):
            self.lines.append(ln.strip())
    def resolve(self):
        nv = nl = 0; mv = {}; ml = {}; out = []
        for ln in self.lines:
            if ln.startswith('@'):
                op, name = ln.split()
                if op == '@mv': mv[name] = nv
                elif op == '@ml': ml[name] = nl
                elif op == '@wv': out.append('s_waitcnt vmcnt(%d)' % min(63, nv - mv[name]))
                elif op == '@wl': out.append('s_waitcnt lgkmcnt(%d)' % min(15, nl - ml[name]))
                elif op == '@nop': pass
                else: raise ValueError(ln)
                continue
            if ln.startswith('x_'):
                out.append(ln[2:]); continue
            if ln.startswith('buffer_') or ln.startswith('global_'): nv += 1
            if ln.startswith('ds_'): nl += 1
            out.append(ln)
        return out
    def finish(self, stats=None):
        out = []; window = []
        nops = 0
        for ln in self.resolve():
            i = Ins(ln)
            if i.label or i.directive or i.empty:
                out.append(ln if (i.label or i.directive) else ln)
                continue
            req = 0; dist = 0
            for p in reversed(window):
                k = need(p, i) - dist
                if k > req: req = k
                dist += p.states
                if dist >= 14: break
            while req > 0:
                k = min(req, 16)
                nop = Ins('s_nop %d' % (k - 1)); out.append('    s_nop %d' % (k - 1)); window.append(nop); req -= k; nops += k
            out.append('    ' + ln)
            window.append(i)
            if i.mn == 's_endpgm': window = []
            if len(window) > 20: window = window[-20:]
        if stats is not None: stats['nops'] = nops
        return '\n'.join(out) + '\n'

class Rec:
    def __init__(self): self.ops = []
    def __call__(self, t): self.ops.append(t)

def est_cost(op):
    if op.startswith('@m') or op.startswith('@nop') or op.endswith(':'): return 0
    if op.startswith('v_mfma'): return 16
    if op.startswith(' v_mfma'): return 8
    if any(op.startswith(t) for t in TRANS): return 8
    return 4

def groups_of(ops):
    gs = []; cur = []
    for op in ops:
        cur.append(op)
        if op.startswith('buffer_') or op.startswith('ds_'):
            gs.append(cur); cur = []
    if cur:
        if gs: gs[-1] += cur
        else: gs.append(cur)
    return gs

def sprinkle(A, base, groups, gap, start=0, flush=True):
    groups = list(groups); acc = gap - start
    for i, op in enumerate(base):
        A(op)
        acc += est_cost(op)
        nxt = base[i+1] if i + 1 < len(base) else ''
        if groups and acc >= gap and not nxt.startswith('@m'):
            for g in groups.pop(0): A(g)
            acc = 0
    if flush:
        for grp in groups:
            for g in grp: A(g)
        groups = []
    return groups

def after_mfma(A, base, groups, per, skip=0):
    groups = list(groups); n = 0
    for op in base:
        A(op)
        if op.startswith('v_mfma'):
            n += 1
            if n > skip:
                for _ in range(per):
                    if groups:
                        for g in groups.pop(0): A(g)
    return groups
```

```python
from asmlib import *

GEN_OFF = 0
FL1_OFF = 128 << 10
FL2_OFF = 256 << 10
STAMP_OFF = 512 << 10
XW_OFF = 1 << 20
Y_OFF  = 5 << 20
G_OFF  = 7 << 20
HR_OFF = 9 << 20
H_OFF  = 11 << 20
WS_BYTES = 17 << 20
LOG2E = 1.4426950408889634

sB, sW = 3, 4
SX, SWR, SWI, SW1, SW2, SOUT, SWS = 8, 12, 16, 20, 24, 28, 32
sT = 36
sMASK16 = 60

vTID, vN, vQ, vNF, vQF = 0, 1, 2, 3, 4

MF = 'v_mfma_f32_16x16x32_bf16'
def mfma(A, d, x, y, c=None):
    A('%s %s, %s, %s, %s' % (MF, R(d, 4), R(x, 4), R(y, 4), '0' if c is None else R(c, 4)))

def prologue(A, exit_label, st=False):
    A('s_cmp_ge_u32 s2, 256')
    A('s_cbranch_scc1 %s' % exit_label)
    if st: stamp(A, 0)
    for srd, off in ((SX, 0), (SWR, 8), (SWI, 16), (SW1, 32), (SW2, 40), (SOUT, 48), (SWS, 64)):
        A('s_load_dwordx2 %s, s[0:1], %d' % (s(srd, 2), off))
    A('s_and_b32 s36, s2, 7')
    A('s_lshl_b32 s36, s36, 5')
    A('s_lshr_b32 s37, s2, 3')
    A('s_or_b32 %s, s36, s37' % s(sB))
    A('v_lshrrev_b32 v5, 6, v0')
    A('v_and_b32 %s, 15, v0' % v(vN))
    A('v_readfirstlane_b32 %s, v5' % s(sW))
    A('v_bfe_u32 %s, v0, 4, 2' % v(vQ))
    for srd, nb in ((SX, 2048*1024), (SWR, 2048*514), (SWI, 2048*514), (SW1, 512*2752), (SW2, 1376*1024), (SOUT, 2048*1024), (SWS, WS_BYTES)):
        A('s_mov_b32 %s, %d' % (s(srd+2), nb))
        A('s_mov_b32 %s, 0x00020000' % s(srd+3))
    A('v_cvt_f32_u32 %s, %s' % (v(vNF), v(vN)))
    A('v_cvt_f32_u32 %s, %s' % (v(vQF), v(vQ)))
    A('s_mov_b64 %s, 0xffff' % s(sMASK16, 2))

def sincos_chain(A, ang, step, n, cdst, sdst):
    for i in range(n):
        A('v_cos_f32 %s, %s' % (v(cdst[i]), v(ang)))
        A('v_sin_f32 %s, %s' % (v(sdst[i]), v(ang)))
        if i + 1 < n:
            A('v_add_f32 %s, %s, %s' % (v(ang), v(ang), v(step)))

def cvt(A, d, lo, hi, nlo=False, nhi=False):
    f = lambda r, ng: (('-' if ng else '') + v(r)) if isinstance(r, int) else r
    A('v_cvt_pk_bf16_f32 %s, %s, %s' % (v(d), f(lo, nlo), f(hi, nhi)))

def nu_of(A, dst, k2, t0):
    A('v_lshlrev_b32 %s, 1, %s' % (v(dst), v(k2)))
    A('v_cmp_eq_u32 vcc, 0, %s' % v(k2))
    A('v_subrev_u32 %s, 15, %s' % (v(t0), v(dst)))
    A('v_cndmask_b32 %s, %s, 16, vcc' % (v(dst), v(dst)))
    A('v_cmp_gt_u32 vcc, 8, %s' % v(k2))
    A('v_cndmask_b32 %s, %s, %s, vcc' % (v(dst), v(t0), v(dst)))

def xreduce(A, regs, tmps, steps):
    for st in steps:
        if st in (1, 2, 4, 8):
            mod = {1: 'quad_perm:[1,0,3,2]', 2: 'quad_perm:[2,3,0,1]', 4: 'row_ror:4', 8: 'row_ror:8'}[st]
            for r in regs:
                A('v_add_f32_dpp %s, %s, %s %s row_mask:0xf bank_mask:0xf' % (v(r), v(r), v(r), mod))
        else:
            for r, t in zip(regs, tmps):
                A('v_mov_b32 %s, %s' % (v(t), v(r)))
            for r, t in zip(regs, tmps):
                A('v_permlane%d_swap_b32 %s, %s' % (st, v(r), v(t)))
            for r, t in zip(regs, tmps):
                A('v_add_f32 %s, %s, %s' % (v(r), v(r), v(t)))

GP = 4416
TAGM = 0x60006000
sTAG = 5

def tagbits_s(A, dst, pos_s, tmp):
    A('s_xor_b32 %s, %s, %s' % (s(dst), s(sTAG), pos_s))
    A('s_and_b32 %s, %s, 12' % (s(tmp), s(dst)))
    A('s_lshl_b32 %s, %s, 27' % (s(tmp), s(tmp)))
    A('s_and_b32 %s, %s, 3' % (s(dst), s(dst)))
    A('s_lshl_b32 %s, %s, 13' % (s(dst), s(dst)))
    A('s_or_b32 %s, %s, %s' % (s(dst), s(dst), s(tmp)))
def tagconst(j):
    return ((j & 3) << 13) | ((j & 12) << 27)

class P1:
    X = 8
    WL = 16
    CA, SA = 24, 28
    TC, TS = 32, 36
    BRE, BIM, BSR, BSI = 40, 44, 48, 52
    U = 56
    D = 72
    T = 104
    ADR = 120
    W256 = 144
    S = 24

def p1_loads(A, ldsxs):
    P = P1
    row_base(A, 36)
    A('s_add_u32 s38, s36, %d' % (0x8000 - 1024))
    A('s_lshl_b32 s39, %s, 12' % s(sW))
    A('s_add_u32 m0, s39, %d' % ldsxs)
    A('v_and_b32 v5, 63, v0')
    A('v_lshlrev_b32 v6, 4, v5')
    A('s_waitcnt lgkmcnt(0)')
    A('buffer_load_dwordx4 v6, %s, s36 offen lds' % s(SX, 4))
    A('buffer_load_dwordx4 v6, %s, s38 offen offset:1024 lds' % s(SX, 4))
    A('@mv x')
    A('v_lshl_add_u32 %s, v5, 3, s39' % v(P.ADR))

def p1_wloads(A, ldsxs):
    P = P1
    A('s_lshr_b32 s37, %s, 6' % s(sB))
    A('s_lshl_b32 s37, s37, 4')
    A('s_and_b32 s38, %s, 15' % s(sB))
    A('s_or_b32 s37, s37, s38')
    A('s_bfe_u32 s38, %s, 0x20004' % s(sB))
    A('s_lshl_b32 s38, s38, 8')
    A('s_or_b32 s37, s37, s38')
    A('s_mul_i32 s37, s37, 514')
    A('v_bfe_u32 v6, v0, 3, 2')
    A('v_bfe_u32 v7, v0, 5, 1')
    A('v_lshl_or_b32 v6, v7, 4, v6')
    A('v_mul_u32_u24 v6, %d, v6' % (64*514))
    A('s_and_b32 s40, %s, 1' % s(sB))
    A('s_or_b32 s41, s40, %s' % s(sW))
    A('s_cbranch_scc1 L_w256')
    A('x_buffer_load_ushort %s, v6, %s, s37 offen offset:512' % (v(P.W256), s(SWR, 4)))
    A('x_buffer_load_ushort %s, v6, %s, s37 offen offset:512' % (v(P.W256+1), s(SWI, 4)))
    A('L_w256:')
    A('s_lshl_b32 s38, %s, 6' % s(sW))
    A('s_add_u32 s38, s38, s40')
    A('s_lshl_b32 s38, s38, 1')
    A('s_add_u32 s37, s37, s38')
    A('v_and_b32 v7, 7, v0')
    A('v_lshl_add_u32 v6, v7, 4, v6')
    A('s_lshl_b32 s39, %s, 12' % s(sW))
    A('s_add_u32 m0, s39, %d' % (ldsxs + 2048))
    A('buffer_load_dwordx4 v6, %s, s37 offen lds' % s(SWR, 4))
    A('s_add_u32 m0, m0, 1024')
    A('buffer_load_dwordx4 v6, %s, s37 offen lds' % s(SWI, 4))
    A('@mv w')

def p1_consts(A, sc1=1.0):
    P = P1; T = P.T
    A('v_mul_f32 v5, %s, %s' % (v(vNF), v(vQF)))
    A('v_mul_f32 v6, %s, v5' % fhex(4/32))
    A('v_mul_f32 v7, %s, %s' % (fhex(1/32), v(vNF)))
    sincos_chain(A, 6, 7, 4, [T+i for i in range(4)], [T+4+i for i in range(4)])
    A('v_and_b32 v6, 1, %s' % v(vN))
    A('v_mul_u32_u24 v6, 0x8000, v6')
    A('v_lshl_or_b32 v6, v6, 16, v6')
    A('v_mov_b32 v7, 0xbf803f80')
    A('v_cmp_eq_u32 vcc, 0, %s' % v(vN))
    for j in range(2):
        cvt(A, P.CA+j, T+2*j, T+2*j+1)
        cvt(A, P.SA+j, T+4+2*j, T+4+2*j+1, True, True)
    for j in range(2):
        A('v_cndmask_b32 %s, %s, v7, vcc' % (v(P.SA+j), v(P.SA+j)))
    A('v_mov_b32 v7, %s' % fhex(-32.0))
    A('v_cndmask_b32 %s, 0, v7, vcc' % v(P.ADR+6))
    for j in range(2):
        A('v_xor_b32 %s, v6, %s' % (v(P.CA+2+j), v(P.CA+j)))
        A('v_xor_b32 %s, v6, %s' % (v(P.SA+2+j), v(P.SA+j)))
    A('v_mul_f32 v6, %s, v5' % fhex(4/512))
    A('v_mul_f32 v7, %s, %s' % (fhex(1/512), v(vNF)))
    sincos_chain(A, 6, 7, 4, [P.TC+e for e in range(4)], [P.TS+e for e in range(4)])
    A('v_mul_f32 v6, %s, v5' % fhex(4/16))
    A('v_mul_f32 v7, %s, %s' % (fhex(1/16), v(vNF)))
    sincos_chain(A, 6, 7, 4, [T+e for e in range(4)], [T+4+e for e in range(4)])
    A('v_and_b32 v6, 8, %s' % v(vN))
    A('v_mul_u32_u24 v6, 0x1000, v6')
    A('v_lshl_or_b32 v6, v6, 16, v6')
    for e in range(4):
        cvt(A, P.BRE+e, T+e, T+4+e)
        cvt(A, P.BIM+e, T+4+e, T+e, True, False)
    for e in range(4):
        A('v_xor_b32 %s, v6, %s' % (v(P.BIM+e), v(P.BIM+e)))
    nu_of(A, 5, vN, 6)
    A('v_cvt_f32_u32 v5, v5')
    A('v_mul_f32 v7, %s, v5' % fhex(1/32))
    A('v_mul_f32 v6, 4.0, v7')
    A('v_mul_f32 v6, v6, %s' % v(vQF))
    sincos_chain(A, 6, 7, 4, [T+e for e in range(4)], [T+4+e for e in range(4)])
    A('v_and_b32 v6, 8, %s' % v(vN))
    A('v_lshlrev_b32 v6, 1, v6')
    for e in range(4):
        cvt(A, P.BSR+e, T+e, '0')
        cvt(A, P.BSI+e, T+4+e, '0', True)
    for e in range(4):
        A('v_lshlrev_b32 %s, v6, %s' % (v(P.BSR+e), v(P.BSR+e)))
        A('v_lshlrev_b32 %s, v6, %s' % (v(P.BSI+e), v(P.BSI+e)))

def p1_addrs(A, lds):
    P = P1
    A('v_bfe_u32 v5, v0, 2, 2')
    A('v_lshlrev_b32 v5, 7, v5')
    A('v_lshl_or_b32 v5, %s, 5, v5' % v(vQ))
    A('v_and_b32 v6, 3, v0')
    A('v_lshl_or_b32 v5, v6, 3, v5')
    A('s_lshl_b32 s39, %s, 12' % s(sW))
    A('v_add_u32 %s, s39, v5' % v(P.ADR+1))
    A('v_mul_u32_u24 v6, %d, v6' % GP)
    A('v_bfe_u32 v5, v0, 2, 4')
    A('v_lshl_add_u32 v5, v5, 4, v6')
    A('s_mul_i32 s36, %s, 272' % s(sW))
    A('v_add_u32 %s, s36, v5' % v(P.ADR+4))
    A('s_lshr_b32 s36, %s, 1' % s(sW))
    A('s_mul_i32 s36, s36, %d' % GP)
    A('s_and_b32 s37, %s, 1' % s(sW))
    A('s_lshl_b32 s37, s37, 2')
    A('s_add_u32 s36, s36, s37')
    A('s_add_u32 s36, s36, %d' % lds)
    A('v_mul_u32_u24 v5, 68, %s' % v(vQ))
    A('v_add_u32 v5, v5, %s' % v(vN))
    A('v_lshl_add_u32 %s, v5, 4, s36' % v(P.ADR+2))
    A('v_bfe_u32 v5, v0, 5, 1')
    A('v_mul_u32_u24 v5, %d, v5' % GP)
    A('v_bfe_u32 v6, v0, 3, 2')
    A('v_lshl_add_u32 %s, v6, 1, v5' % v(P.W256+2))
    A('v_add_u32 v5, s40, v0')
    A('v_and_b32 v6, 31, v5')
    A('v_lshrrev_b32 v5, 5, v5')
    A('v_and_b32 v5, 7, v5')
    A('v_mad_u32_u24 v7, v6, 17, v5')
    A('v_sub_u32 %s, %d, v7' % (v(P.ADR+5), 17*32 + 15))
    A('v_cmp_gt_u32 vcc, 16, v6')
    A('v_add_u32 v5, 8, v5')
    A('v_cndmask_b32 v7, %s, v7, vcc' % v(P.ADR+5))
    A('v_cmp_eq_u32 vcc, 16, v6')
    A('v_lshlrev_b32 %s, 4, v0' % v(P.ADR+3))
    A('v_cndmask_b32 v7, v7, v5, vcc')
    A('v_lshlrev_b32 %s, 4, v7' % v(P.ADR+5))
    A('s_lshl_b32 s48, %s, 14' % s(sB))
    A('s_add_u32 s48, s48, %d' % XW_OFF)
    for jj in range(1, 4):
        A('s_add_u32 %s, s48, %d' % (s(48+jj), jj*4096))

def p1_tags(A):
    tagbits_s(A, 46, s(sW), 36)
    A('s_xor_b32 s47, s46, 0x%x' % tagconst(4))
    A('v_mov_b32 %s, 0x%x' % (v(P1.ADR+7), TAGM))

def interleave(A, main, fill, ratio=1):
    fill = list(fill)
    for op in main:
        A(op)
        for _ in range(ratio):
            if fill: A(fill.pop(0))
    for op in fill: A(op)

def p1_compute(A, ldsxs, lds, sc1, st_mod='', tags=True):
    P = P1; U = P.U; T = P.T; D = P.D; X = P.X
    A('@wv x')
    for rho in range(2):
        for hi in range(2):
            A('ds_read_b64_tr_b16 %s, %s offset:%d' % (v(X+4*rho+2*hi, 2), v(P.ADR), ldsxs + rho*1024 + hi*512))
    for rho in range(2):
        A('s_waitcnt lgkmcnt(%d)' % (2 - 2*rho))
        mfma(A, D+8*rho, X+4*rho, P.CA)
        mfma(A, D+8*rho+4, X+4*rho, P.SA)
    for j in range(8):
        A('v_lshlrev_b32 %s, 16, %s' % (v(U+2*j), v(X+j)))
        A('v_and_b32 %s, 0xffff0000, %s' % (v(U+2*j+1), v(X+j)))
    S = [P.S, P.S+2]
    for rho in range(2):
        h = U + 8*rho; d = T + 4*rho
        A('v_pk_add_f32 %s, %s, %s' % (v(d, 2), v(h, 2), v(h+2, 2)))
        A('v_pk_add_f32 %s, %s, %s' % (v(d+2, 2), v(h+4, 2), v(h+6, 2)))
        A('v_pk_add_f32 %s, %s, %s' % (v(d, 2), v(d, 2), v(d+2, 2)))
        A('v_add_f32 %s, %s, %s' % (v(S[rho]), v(d), v(d+1)))
    xreduce(A, S, [P.S+1, P.S+3], [1, 2, 4, 8, 16, 32])
    for rho in range(2):
        A('v_mul_f32 %s, %s, %s' % (v(S[rho]), fhex(1/512), v(S[rho])))
    for rho in range(2):
        A('v_mul_f32 %s, %s, %s' % (v(S[rho]+1), v(S[rho]), v(P.ADR+6)))
    for rho in range(2):
        for x in range(2):
            A('v_pk_add_f32 %s, %s, %s op_sel:[0,1] op_sel_hi:[1,1]' % (v(D+8*rho+2*x, 2), v(D+8*rho+2*x, 2), v(S[rho], 2)))
        for x in range(2):
            o = T + 8*rho + 4*x
            cmul(A, o, o+2, D+8*rho+2*x, D+8*rho+4+2*x, P.TC+2*x, P.TS+2*x, True)
        for r in range(4):
            o = T + 8*rho + 4*(r >> 1) + (r & 1)
            cvt(A, X+4*rho+r, o, o+2)
    M = Rec()
    for rho in range(2):
        mfma(M, D+16+8*rho, X+4*rho, P.BSR)
        mfma(M, D+16+8*rho+4, X+4*rho, P.BSI)
        mfma(M, D+8*rho, X+4*rho, P.BRE)
        mfma(M, D+8*rho+4, X+4*rho, P.BIM)
    V = Rec()
    for rho in range(2):
        for j in range(4):
            h = U + 8*rho + 2*j
            V('v_pk_add_f32 %s, %s, %s op_sel_hi:[1,0] neg_lo:[0,1] neg_hi:[0,1]' % (v(h, 2), v(h, 2), v(S[rho], 2)))
    for j in range(4):
        for rho in range(2):
            h = U + 8*rho; d = T + 4*rho
            if j == 0: V('v_pk_mul_f32 %s, %s, %s' % (v(d, 2), v(h, 2), v(h, 2)))
            else: V('v_pk_fma_f32 %s, %s, %s, %s' % (v(d, 2), v(h+2*j, 2), v(h+2*j, 2), v(d, 2)))
    for rho in range(2):
        V('v_add_f32 %s, %s, %s' % (v(S[rho]), v(T+4*rho), v(T+4*rho+1)))
    interleave(A, M.ops, V.ops, 1)
    xreduce(A, S, [P.S+1, P.S+3], [1, 2, 4, 8, 16, 32])
    for rho in range(2):
        A('v_mov_b32 %s, %s' % (v(S[rho]+1), fhex(1e-5)))
        A('v_fmac_f32 %s, %s, %s' % (v(S[rho]+1), fhex(1/512), v(S[rho])))
        A('v_rsq_f32 %s, %s' % (v(S[rho]), v(S[rho]+1)))
    for j in range(4):
        A('v_cndmask_b32 %s, %s, %s, %s' % (v(D+4*j), v(D+4*j), v(D+16+4*j), s(sMASK16, 2)))
    if sc1 != 1.0:
        for rho in range(2):
            A('v_mul_f32 %s, %s, %s' % (v(S[rho]), fhex(sc1), v(S[rho])))
    for c in range(2):
        if c == 1:
            A('@wv w')
            for g in range(4):
                A('ds_read_b64_tr_b16 %s, %s offset:%d' % (v(P.WL+2*g, 2), v(P.ADR+1), ldsxs + 2048 + g*512))
        for x in range(2):
            for rho in range(2):
                d = D + 8*rho + 4*c + 2*x
                A('v_pk_mul_f32 %s, %s, %s op_sel_hi:[1,0]' % (v(d, 2), v(d, 2), v(S[rho], 2)))
            for r in (2*x, 2*x+1):
                cvt(A, U+4*c+r, D+4*c+r, D+8+4*c+r)
            for r in (2*x, 2*x+1):
                if tags: A('v_bfi_b32 %s, %s, %s, %s' % (v(U+4*c+r), v(P.ADR+7), s(46+c), v(U+4*c+r)))
            for r in (2*x, 2*x+1):
                A('ds_write_b32 %s, %s offset:%d' % (v(P.ADR+2), v(U+4*c+r), r*272 + c*2*GP))
    A('s_waitcnt lgkmcnt(4)')
    for g in range(4):
        A('ds_write_b64 %s, %s offset:%d' % (v(P.ADR+5), v(P.WL+2*g, 2), lds + g*GP + 8))
    A('s_cmp_lg_u32 s41, 0\ns_cbranch_scc1 L_w256b\n' + '\n'.join('x_ds_write_b16 %s, %s offset:%d' % (v(P.W256+2), v(P.W256+c), lds + 2*c*GP + 8) for c in range(2)) + '\nL_w256b:')
    A('s_waitcnt lgkmcnt(0)')
    A('s_barrier')
    for jj in range(4):
        A('ds_read_b128 %s, %s offset:%d' % (v(D+4*jj, 4), v(P.ADR+4), lds + jj*68*16))
    for jj in range(4):
        A('s_waitcnt lgkmcnt(%d)' % (3-jj))
        A('buffer_store_dwordx4 %s, %s, %s, %s offen%s' % (v(D+4*jj, 4), v(P.ADR+3), s(SWS, 4), s(48+jj), st_mod))

class P2:
    C64, S64, N64 = 8, 16, 24
    C32, S32, N32 = 32, 40, 48
    TC1, TS1 = 56, 64
    TC2, TS2 = 72, 80
    F = 88
    D = 144
    ADR = 120
    TG = 160
    WP = 164
XC = 2048 + 64
WC = 4096 + 64

def p2_addr_loads(A):
    P = P2
    A('v_lshrrev_b32 v5, 2, v0')
    A('v_and_b32 v6, 3, v0')
    A('v_lshlrev_b32 v7, 14, v5')
    A('v_lshl_or_b32 %s, v6, 4, v7' % v(P.ADR))
    A('s_lshl_b32 s52, %s, 6' % s(sB))
    A('s_add_u32 s52, s52, %d' % XW_OFF)
    for jj in range(1, 4):
        A('s_add_u32 %s, s52, %d' % (s(52+jj), jj << 20))

def p2_loads(A, mod=''):
    P = P2
    for jj in range(4):
        A('buffer_load_dwordx4 %s, %s, %s, %s offen%s' % (v(P.F+4*jj, 4), v(P.ADR), s(SWS, 4), s(52+jj), mod))

def p2_setup(A, ldsx, ldsw, ldsq, sc2=1.0, sc3=1.0):
    P = P2; T = P.F + 16
    A('v_bfe_u32 v5, v0, 1, 1')
    A('v_and_b32 v6, 1, v0')
    A('v_lshlrev_b32 v6, 3, v6')
    A('v_bfe_u32 v7, v0, 2, 4')
    A('v_lshl_or_b32 v7, v7, 4, v6')
    A('s_and_b32 s36, %s, 1' % s(sW))
    A('s_mul_i32 s36, s36, %d' % (2*XC))
    A('s_lshr_b32 s37, %s, 1' % s(sW))
    A('s_lshl_b32 s37, s37, 8')
    A('s_add_u32 s36, s36, s37')
    A('s_add_u32 s36, s36, %d' % ldsx)
    A('v_mul_u32_u24 %s, %d, v5' % (v(P.ADR+1), XC))
    A('v_add3_u32 %s, %s, v7, s36' % (v(P.ADR+1), v(P.ADR+1)))
    A('s_lshl_b32 s36, %s, 8' % s(sW))
    A('s_add_u32 s36, s36, %d' % ldsw)
    A('v_mul_u32_u24 %s, %d, v5' % (v(P.ADR+2), WC))
    A('v_add3_u32 %s, %s, v7, s36' % (v(P.ADR+2), v(P.ADR+2)))
    A('v_and_b32 v5, 63, v0')
    A('v_lshlrev_b32 %s, 4, v5' % v(P.ADR+3))
    A('v_lshlrev_b32 %s, 4, v0' % v(P.ADR+4))
    A('v_lshrrev_b32 v5, 1, %s' % v(vQ))
    A('v_and_b32 v6, 1, %s' % v(vQ))
    A('v_lshlrev_b32 v7, 4, %s' % v(vN))
    A('v_lshl_or_b32 v7, v5, 8, v7')
    A('v_lshl_or_b32 v7, v6, 3, v7')
    A('s_lshl_b32 s36, %s, 9' % s(sW))
    A('s_add_u32 s36, s36, %d' % ldsq)
    A('v_add_u32 %s, s36, v7' % v(P.ADR+5))
    A('v_lshlrev_b32 v7, 5, %s' % v(vN))
    A('v_lshl_or_b32 v7, v5, 10, v7')
    A('v_lshl_or_b32 %s, v6, 4, v7' % v(P.ADR+6))
    A('s_lshl_b32 s56, %s, 13' % s(sB))
    A('s_lshl_b32 s36, %s, 11' % s(sW))
    A('s_add_u32 s56, s56, s36')
    A('s_add_u32 s56, s56, %d' % Y_OFF)
    SG = P.D; J = P.D + 1; W16 = P.D + 2
    A('v_and_b32 v5, 1, %s' % v(vN))
    A('v_mul_u32_u24 v5, 0x8000, v5')
    A('v_lshl_or_b32 %s, v5, 16, v5' % v(SG))
    A('s_lshl_b32 s36, %s, 4' % s(sW))
    A('v_cvt_f32_u32 %s, s36' % v(W16))
    A('v_add_f32 %s, %s, %s' % (v(J), v(W16), v(vNF)))
    A('v_mul_f32 v7, %s, %s' % (fhex(1/64), v(J)))
    A('v_mul_f32 v5, %s, %s' % (v(J), v(vQF)))
    A('v_mul_f32 v6, %s, v5' % fhex(1/8))
    sincos_chain(A, 6, 7, 8, [T+i for i in range(8)], [T+8+i for i in range(8)])
    for j in range(4):
        cvt(A, P.C64+j, T+2*j, T+2*j+1)
        cvt(A, P.S64+j, T+8+2*j, T+8+2*j+1)
        cvt(A, P.N64+j, T+8+2*j, T+8+2*j+1, True, True)
    for j in range(4):
        for base in (P.C64, P.S64, P.N64):
            A('v_xor_b32 %s, %s, %s' % (v(base+4+j), v(SG), v(base+j)))
    A('v_mul_f32 v7, %s, %s' % (fhex(1/2048), v(J)))
    A('v_mul_f32 v6, %s, v5' % fhex(4/2048))
    sincos_chain(A, 6, 7, 4, [P.TC1+r for r in range(4)], [P.TS1+r for r in range(4)])
    A('v_fmac_f32 v6, %s, v7' % fhex(13.0))
    sincos_chain(A, 6, 7, 4, [P.TC1+4+r for r in range(4)], [P.TS1+4+r for r in range(4)])
    A('v_mul_f32 v7, %s, %s' % (fhex(1/32), v(vNF)))
    A('v_mul_f32 v6, 4.0, v7')
    A('v_mul_f32 v6, v6, %s' % v(vQF))
    sincos_chain(A, 6, 7, 4, [T+i for i in range(4)], [T+4+i for i in range(4)])
    for j in range(2):
        for t in range(2):
            cvt(A, P.C32+4*t+j, T+2*j, T+2*j+1, False, t == 1)
            cvt(A, P.S32+4*t+j, T+4+2*j, T+4+2*j+1, False, t == 1)
            cvt(A, P.N32+4*t+j, T+4+2*j, T+4+2*j+1, True, t == 0)
    for j in range(2):
        for t in range(2):
            for base in (P.C32, P.S32, P.N32):
                A('v_xor_b32 %s, %s, %s' % (v(base+4*t+2+j), v(SG), v(base+4*t+j)))
    A('v_fma_f32 v5, %s, 4.0, %s' % (v(vQF), v(W16)))
    for t in range(2):
        A('v_mul_f32 v7, %s, %s' % (fhex(1/2048), v(vNF)))
        if t:
            A('v_add_f32 v7, %s, v7' % fhex(16/2048))
        A('v_mul_f32 v6, v5, v7')
        sincos_chain(A, 6, 7, 4, [P.TC2+4*t+r for r in range(4)], [P.TS2+4*t+r for r in range(4)])
    for base, sc in ((P.TC1, sc2), (P.TC2, sc3)):
        if sc != 1.0:
            for e in range(16):
                A('v_mul_f32 %s, %s, %s' % (v(base+e), fhex(sc), v(base+e)))

SPIN = 20000
CNT = [0]
DLY = [0]
HMOD = [' sc1']
def poll_begin(A, name):
    A('s_movk_i32 s47, %d' % SPIN)
    A('L_%s:' % name)
    if CNT[0]: A('s_add_u32 s2, s2, %d' % (0x10000 if name == 'h1' else 0x1000000))
def poll_end(A, name, acc):
    A('v_cmp_ne_u32 vcc, 0, %s' % v(acc))
    A('s_sub_u32 s47, s47, 1')
    A('s_cselect_b64 vcc, 0, vcc')
    A('s_and_b64 exec, exec, vcc')
    A('s_cbranch_execnz L_%s' % name)
    A('s_mov_b64 exec, -1')

def p2_tags(A):
    P = P2
    tagbits_s(A, 36, '0', 37)
    A('v_and_b32 v5, 1, v0')
    A('v_lshlrev_b32 v5, 14, v5')
    A('v_and_b32 v6, 2, v0')
    A('v_lshl_or_b32 v5, v6, 28, v5')
    A('v_xor_b32 %s, s36, v5' % v(P.ADR+7))
    A('v_xor_b32 %s, 0x%x, %s' % (v(P.ADR+8), tagconst(1), v(P.ADR+7)))
    A('v_and_b32 v5, 1, %s' % v(vQ))
    A('v_lshlrev_b32 v5, 29, v5')
    A('v_xor_b32 %s, s36, v5' % v(P.TG))
    for r in range(1, 4):
        A('v_xor_b32 %s, 0x%x, %s' % (v(P.TG+r), tagconst(r), v(P.TG)))
    A('s_mov_b32 s46, 0x%x' % TAGM)

def p2_poll(A, bg=()):
    P = P2; F = P.F
    def check(first):
        for jj in range(4):
            A('@wv h1_%d' % jj if first else 's_waitcnt vmcnt(%d)' % (3-jj))
            for dw in range(2):
                A('v_xor_b32 %s, %s, %s' % (v(F+4*jj+dw), v(P.ADR+7+dw), v(F+4*jj+dw)))
            if jj == 0: A('v_or_b32 v5, %s, %s' % (v(F), v(F+1)))
            else: A('v_or3_b32 v5, v5, %s, %s' % (v(F+4*jj), v(F+4*jj+1)))
        A('v_and_b32 v5, s46, v5')
        A('v_or_b32_dpp v5, v5, v5 quad_perm:[1,0,3,2] row_mask:0xf bank_mask:0xf')
        A('v_or_b32_dpp v5, v5, v5 quad_perm:[2,3,0,1] row_mask:0xf bank_mask:0xf')
    if bg is None:
        A('L_h1slow:')
        A('s_mov_b64 exec, vcc')
        poll_begin(A, 'h1')
        R_ = Rec(); p2_loads(R_, ' sc1')
        for op in R_.ops: A('x_' + op)
        check(False)
        poll_end(A, 'h1', 5)
        A('s_branch L_h1back')
        return
    R_ = Rec(); p2_loads(R_, ' sc1')
    for jj, op in enumerate(R_.ops):
        A(op); A('@mv h1_%d' % jj)
    for g_ in bg:
        for op in g_: A(op)
    check(True)
    A('v_cmp_ne_u32 vcc, 0, v5')
    A('s_cbranch_vccnz L_h1slow')
    A('L_h1back:')

def gen_update(A, name):
    A('s_or_b32 s36, %s, %s' % (s(sB), s(sW)))
    A('s_cbranch_scc1 L_%s' % name)
    A('v_mov_b32 v5, %s' % s(sTAG))
    A('v_mov_b32 v6, 0')
    A('x_buffer_store_dword v5, v6, %s, 0 offen offset:%d' % (s(SWS, 4), GEN_OFF))
    A('L_%s:' % name)

def cmul(A, ore, oim, xr, xi, c, sn, conj):
    neg = ' neg_lo:[1,0,0] neg_hi:[1,0,0]'
    A('v_pk_mul_f32 %s, %s, %s' % (v(ore, 2), v(xr, 2), v(c, 2)))
    A('v_pk_mul_f32 %s, %s, %s' % (v(oim, 2), v(xi, 2), v(c, 2)))
    A('v_pk_fma_f32 %s, %s, %s, %s%s' % (v(ore, 2), v(xi, 2), v(sn, 2), v(ore, 2), '' if conj else neg))
    A('v_pk_fma_f32 %s, %s, %s, %s%s' % (v(oim, 2), v(xr, 2), v(sn, 2), v(oim, 2), neg if conj else ''))

def p2_stage(A, vm_first=3):
    P = P2
    for jj in range(4):
        if vm_first is not None:
            A('s_waitcnt vmcnt(%d)' % (vm_first - jj))
        A('ds_write_b64 %s, %s offset:%d' % (v(P.ADR+1), v(P.F+4*jj, 2), (jj >> 1)*1024 + (jj & 1)*512))
        A('ds_write_b64 %s, %s offset:%d' % (v(P.ADR+2), v(P.F+4*jj+2, 2), jj*1024))
    A('s_waitcnt lgkmcnt(0)')
    A('s_barrier')

def p2_compute_a(A, ldsx, ldsw, ldsq):
    P = P2; F = P.F; D = P.D
    fr = lambda t, c, oh: F + 16*t + 8*c + 4*oh
    for t in range(2):
        for oh in range(2):
            for c in range(2):
                A('ds_read_b128 %s, %s offset:%d' % (v(fr(t, c, oh), 4), v(P.ADR+3), ldsx + t*2*XC + c*XC + oh*1024))
                A('@ml x%d%d%d' % (t, oh, c))
    WP = P.WP
    for c in range(2):
        A('ds_read_b128 %s, %s offset:%d' % (v(WP+4*c, 4), v(P.ADR+4), ldsw + c*WC))
    A('@ml wp')
    for t in range(2):
        dre, dim = D+8*t, D+8*t+4
        for oh in range(2):
            A('@wl x%d%d0' % (t, oh))
            mfma(A, dre, fr(t, 0, oh), P.C64+4*oh, dre if oh else None)
            mfma(A, dim, fr(t, 0, oh), P.N64+4*oh, dim if oh else None)
            A('@wl x%d%d1' % (t, oh))
            mfma(A, dre, fr(t, 1, oh), P.S64+4*oh, dre)
            mfma(A, dim, fr(t, 1, oh), P.C64+4*oh, dim)
    T = F; UR, UI = F + 16, F + 20
    def twiddle_pack(cb, sb, conj):
        for t in range(2):
            for x in range(2):
                o = T + 8*t + 4*x
                cmul(A, o, o+2, D+8*t+2*x, D+8*t+4+2*x, cb+4*t+2*x, sb+4*t+2*x, conj)
            for x in range(2):
                o = T + 8*t + 4*x
                cvt(A, UR+2*t+x, o, o+1)
                cvt(A, UI+2*t+x, o+2, o+3)
    twiddle_pack(P.TC1, P.TS1, True)
    for t in range(2):
        dre, dim = D+8*t, D+8*t+4
        mfma(A, dre, P.C32+4*t, UR)
        mfma(A, dim, P.C32+4*t, UI)
        mfma(A, dre, P.S32+4*t, UI, dre)
        mfma(A, dim, P.N32+4*t, UR, dim)
    A('@wl wp')
    for c in range(2):
        for j in range(4):
            b = (P.TC1, P.TS1)[c] + 2*j
            A('v_lshlrev_b32 %s, 16, %s' % (v(b), v(WP+4*c+j)))
            A('v_and_b32 %s, 0xffff0000, %s' % (v(b+1), v(WP+4*c+j)))
    twiddle_pack(P.TC1, P.TS1, False)
    for t in range(2):
        dre, dim = D+8*t, D+8*t+4
        mfma(A, dre, UR, P.C32+4*t)
        mfma(A, dim, UI, P.C32+4*t)
        mfma(A, dre, UI, P.N32+4*t, dre)
        mfma(A, dim, UR, P.S32+4*t, dim)
    twiddle_pack(P.TC2, P.TS2, False)
    for t in range(2):
        for c in range(2):
            A('ds_write_b64 %s, %s offset:%d' % (v(P.ADR+5), v((UR, UI)[c]+2*t, 2), (2*t+c)*2048))

def p2_compute_b(A, ldsq, st_mod='', tags=True):
    P = P2; F = P.F; D = P.D
    fr = lambda t, c, oh: F + 16*t + 8*c + 4*oh
    for t in range(2):
        for oh in range(2):
            for c in range(2):
                A('ds_read_b128 %s, %s offset:%d' % (v(fr(t, c, oh), 4), v(P.ADR+3), ldsq + (2*t+c)*2048 + oh*1024))
                A('@ml q%d%d%d' % (t, oh, c))
    for t in range(2):
        dre, dim = D+8*t, D+8*t+4
        for oh in range(2):
            A('@wl q%d%d0' % (t, oh))
            mfma(A, dre, P.C64+4*oh, fr(t, 0, oh), dre if oh else None)
            mfma(A, dim, P.S64+4*oh, fr(t, 0, oh), dim if oh else None)
            A('@wl q%d%d1' % (t, oh))
            mfma(A, dre, P.N64+4*oh, fr(t, 1, oh), dre)
            mfma(A, dim, P.C64+4*oh, fr(t, 1, oh), dim)
    O = P.TC1
    for t in range(2):
        for r in range(4):
            cvt(A, O+4*t+r, D+8*t+r, D+8*t+4+r)
        if tags:
            for r in range(4):
                A('v_bfi_b32 %s, s46, %s, %s' % (v(O+4*t+r), v(P.TG+r), v(O+4*t+r)))
        A('buffer_store_dwordx4 %s, %s, %s, s56 offen offset:%d%s' % (v(O+4*t, 4), v(P.ADR+6), s(SWS, 4), t*512, st_mod))

class P3:
    BRE, BIM, BSR, BSI = 8, 12, 16, 20
    TC, TS = 24, 28
    CA = 32
    X = 40
    L = 48
    H = 56
    D = 72
    T = 104
    ADR = 120

def row_base(A, dst):
    A('s_lshr_b32 %s, %s, 5' % (s(dst), s(sB)))
    A('s_lshl_b32 %s, %s, 8' % (s(dst), s(dst)))
    A('s_and_b32 s37, %s, 31' % s(sB))
    A('s_or_b32 %s, %s, s37' % (s(dst), s(dst)))
    A('s_lshl_b32 s37, %s, 6' % s(sW))
    A('s_add_u32 %s, %s, s37' % (s(dst), s(dst)))
    A('s_lshl_b32 %s, %s, 10' % (s(dst), s(dst)))

def p3_addr_loads(A):
    P = P3
    A('v_lshrrev_b32 v5, 1, v0')
    A('v_and_b32 v6, 1, v0')
    A('v_lshlrev_b32 v7, 13, v5')
    A('v_lshl_or_b32 %s, v6, 4, v7' % v(P.ADR))
    A('v_lshlrev_b32 v5, 2, v5')
    A('v_lshl_or_b32 %s, v6, 12, v5' % v(P.ADR+1))
    A('s_lshl_b32 s52, %s, 5' % s(sB))
    A('s_add_u32 s52, s52, %d' % Y_OFF)
    A('s_add_u32 s53, s52, %d' % (128*8192))

def p3_loads(A, mod=''):
    P = P3
    for jj in range(2):
        A('buffer_load_dwordx4 %s, %s, %s, %s offen%s' % (v(P.L+4*jj, 4), v(P.ADR), s(SWS, 4), s(52+jj), mod))

def p3_tags(A):
    P = P3
    tagbits_s(A, 36, '0', 37)
    A('v_and_b32 v5, 1, v0')
    A('v_lshlrev_b32 v5, 29, v5')
    A('v_xor_b32 %s, s36, v5' % v(P.T))
    for e in range(1, 4):
        A('v_xor_b32 %s, 0x%x, %s' % (v(P.T+e), tagconst(e), v(P.T)))

def p3_poll(A, bg=()):
    P = P3; L = P.L
    def check(first):
        for jj in range(2):
            A('@wv h2_%d' % jj if first else 's_waitcnt vmcnt(%d)' % (1-jj))
            for e in range(4):
                A('v_xor_b32 %s, %s, %s' % (v(L+4*jj+e), v(P.T+e), v(L+4*jj+e)))
            if jj == 0: A('v_or_b32 v5, %s, %s' % (v(L), v(L+1)))
            else: A('v_or3_b32 v5, v5, %s, %s' % (v(L+4), v(L+5)))
            A('v_or3_b32 v5, v5, %s, %s' % (v(L+4*jj+2), v(L+4*jj+3)))
        A('v_and_b32 v5, s46, v5')
        A('v_or_b32_dpp v5, v5, v5 quad_perm:[1,0,3,2] row_mask:0xf bank_mask:0xf')
    if bg is None:
        A('L_h2slow:')
        A('s_mov_b64 exec, vcc')
        poll_begin(A, 'h2')
        R_ = Rec(); p3_loads(R_, ' sc1')
        for op in R_.ops: A('x_' + op)
        check(False)
        poll_end(A, 'h2', 5)
        A('s_branch L_h2back')
        return
    R_ = Rec(); p3_loads(R_, ' sc1')
    for jj, op in enumerate(R_.ops):
        A(op); A('@mv h2_%d' % jj)
    for g_ in bg:
        for op in g_: A(op)
    check(True)
    A('v_cmp_ne_u32 vcc, 0, v5')
    A('s_cbranch_vccnz L_h2slow')
    A('L_h2back:')

XK = 184
def p1_keep_x(A, ldsxs):
    A('v_lshlrev_b32 v5, 5, %s' % v(vN))
    A('v_lshl_or_b32 v5, %s, 3, v5' % v(vQ))
    A('s_lshl_b32 s36, %s, 12' % s(sW))
    A('v_add_u32 v5, s36, v5')
    for rho in range(2):
        for t in range(2):
            A('ds_read_b64 %s, v5 offset:%d' % (v(XK+4*rho+2*t, 2), ldsxs + rho*1024 + t*512))

def p3_setup(A, ldsy, sc4):
    P = P3; T = P.D
    A('v_mul_f32 v5, %s, %s' % (v(vNF), v(vQF)))
    A('v_mul_f32 v6, %s, v5' % fhex(4/16))
    A('v_mul_f32 v7, %s, %s' % (fhex(1/16), v(vNF)))
    sincos_chain(A, 6, 7, 4, [T+e for e in range(4)], [T+4+e for e in range(4)])
    A('v_lshlrev_b32 v6, 30, %s' % v(vQ))
    A('v_and_b32 v6, 0x80000000, v6')
    for e in range(4):
        cvt(A, P.BRE+e, T+e, T+4+e, False, True)
        cvt(A, P.BIM+e, T+4+e, T+e)
    for e in range(4):
        A('v_xor_b32 %s, v6, %s' % (v(P.BRE+e), v(P.BRE+e)))
        A('v_xor_b32 %s, v6, %s' % (v(P.BIM+e), v(P.BIM+e)))
    A('v_mul_f32 v6, %s, v5' % fhex(4/16))
    A('v_mul_f32 %s, %s, %s' % (v(T+8), fhex(15/32), v(vNF)))
    A('v_sub_f32 %s, v6, %s' % (v(T+8), v(T+8)))
    A('v_cmp_gt_u32 vcc, 2, %s' % v(vQ))
    A('v_cndmask_b32 v6, %s, v6, vcc' % v(T+8))
    sincos_chain(A, 6, 7, 4, [T+e for e in range(4)], [T+4+e for e in range(4)])
    for e in range(4):
        cvt(A, T+8+e, T+e, T+4+e, False, True)
    A('v_lshlrev_b32 v6, 15, %s' % v(vN))
    A('v_and_b32 v6, 0x8000, v6')
    A('v_or_b32 %s, 0x3f00, v6' % v(T+12))
    A('v_cndmask_b32 %s, %s, %s, %s' % (v(T+8), v(T+8), v(T+12), s(sMASK16, 2)))
    for e in range(4):
        A('v_cndmask_b32 %s, 0, %s, vcc' % (v(P.BSR+e), v(T+8+e)))
        A('v_cndmask_b32 %s, %s, 0, vcc' % (v(P.BSI+e), v(T+8+e)))
    A('v_or_b32 v6, 0x3f80, v6')
    A('v_lshlrev_b32 v6, 16, v6')
    A('v_or_b32 %s, 0x3f80, v6' % v(T+12))
    A('v_mul_f32 v6, %s, v5' % fhex(4/32))
    A('v_mul_f32 v7, %s, %s' % (fhex(1/32), v(vNF)))
    sincos_chain(A, 6, 7, 4, [T+e for e in range(4)], [T+4+e for e in range(4)])
    for r in range(4):
        cvt(A, P.CA+r, T+r, T+4+r, False, True)
        cvt(A, P.CA+4+r, T+r, T+4+r, (r & 1) == 1, (r & 1) == 0)
    for t in range(2):
        A('v_cndmask_b32 %s, %s, %s, %s' % (v(P.CA+4*t), v(P.CA+4*t), v(T+12), s(sMASK16, 2)))
    A('v_mul_f32 v6, %s, v5' % fhex(4/512))
    A('v_mul_f32 v7, %s, %s' % (fhex(1/512), v(vNF)))
    sincos_chain(A, 6, 7, 4, [P.TC+e for e in range(4)], [P.TS+e for e in range(4)])
    for e in range(8):
        A('v_mul_f32 %s, %s, %s' % (v(P.TC+e), fhex(sc4), v(P.TC+e)))
    A('v_lshlrev_b32 v5, 2, %s' % v(vN))
    A('v_or_b32 v5, v5, %s' % v(vQ))
    A('s_lshl_b32 s36, %s, 11' % s(sW))
    A('s_add_u32 s36, s36, %d' % ldsy)
    A('v_lshl_add_u32 %s, v5, 4, s36' % v(P.ADR+3))
    A('s_lshl_b32 s36, %s, 3' % s(sB))
    A('s_lshl_b32 s37, %s, 1' % s(sW))
    A('s_add_u32 s36, s36, s37')
    A('s_and_b32 s37, s36, 15')
    A('v_xor_b32 v5, s37, v5')
    A('v_lshlrev_b32 %s, 4, v5' % v(P.ADR+4))
    A('v_xor_b32 %s, 16, %s' % (v(P.ADR+5), v(P.ADR+4)))
    A('s_lshl_b32 s36, s36, 10')
    A('s_add_u32 s56, s36, %d' % G_OFF)
    A('s_add_u32 s57, s36, %d' % HR_OFF)
    A('v_and_b32 v5, 1, %s' % v(vQ))
    A('v_lshlrev_b32 v5, 9, v5')
    A('v_lshl_or_b32 v5, %s, 5, v5' % v(vN))
    A('v_lshrrev_b32 v6, 1, %s' % v(vQ))
    A('v_lshl_or_b32 %s, v6, 4, v5' % v(P.ADR+6))

def p3_xunpack(A):
    P = P3
    for j in range(8):
        A('v_lshlrev_b32 %s, 16, %s' % (v(P.H+2*j), v(XK+j)))
        A('v_and_b32 %s, 0xffff0000, %s' % (v(P.H+2*j+1), v(XK+j)))

def p3_stage(A, ldsy):
    P = P3
    assert ldsy % 256 == 0
    o = ldsy // 256
    for jj in range(2):
        for e in (0, 2):
            A('ds_write2st64_b32 %s, %s, %s offset0:%d offset1:%d' % (v(P.ADR+1), v(P.L+4*jj+e), v(P.L+4*jj+e+1), o + 4*e + 2*jj, o + 4*e + 4 + 2*jj))
    A('s_waitcnt lgkmcnt(0)')
    A('s_barrier')

def p3_compute(A, st_mod=''):
    P = P3; D = P.D; T = P.T; H = P.H
    for rho in range(2):
        A('ds_read_b128 %s, %s offset:%d' % (v(P.L+4*rho, 4), v(P.ADR+3), rho*1024))
    for rho in range(2):
        A('s_waitcnt lgkmcnt(%d)' % (1-rho))
        mfma(A, D+16+8*rho, P.L+4*rho, P.BSR)
        mfma(A, D+16+8*rho+4, P.L+4*rho, P.BSI)
        mfma(A, D+8*rho, P.L+4*rho, P.BRE)
        mfma(A, D+8*rho+4, P.L+4*rho, P.BIM)
    for rho in range(2):
        for c in range(2):
            j = 8*rho + 4*c
            A('v_cndmask_b32 %s, %s, %s, %s' % (v(D+j), v(D+j), v(D+16+j), s(sMASK16, 2)))
        for x in range(2):
            o = T + 8*rho + 4*x
            cmul(A, o, o+2, D+8*rho+2*x, D+8*rho+4+2*x, P.TC+2*x, P.TS+2*x, False)
        for r in range(4):
            o = T + 8*rho + 4*(r >> 1) + (r & 1)
            cvt(A, P.L+4*rho+r, o, o+2)
        for t in range(2):
            mfma(A, H+8*rho+4*t, P.L+4*rho, P.CA+4*t, H+8*rho+4*t)
    S = [D, D+2]
    for rho in range(2):
        h = H + 8*rho; d = D + 4 + 4*rho
        A('v_pk_add_f32 %s, %s, %s' % (v(d, 2), v(h, 2), v(h+2, 2)))
        A('v_pk_add_f32 %s, %s, %s' % (v(d+2, 2), v(h+4, 2), v(h+6, 2)))
        A('v_pk_add_f32 %s, %s, %s' % (v(d, 2), v(d, 2), v(d+2, 2)))
        A('v_add_f32 %s, %s, %s' % (v(S[rho]), v(d), v(d+1)))
    HB = P.X
    for j in range(8):
        cvt(A, HB+j, H+2*j, H+2*j+1)
    M = Rec(); xreduce(M, S, [D+1, D+3], [1, 2, 4, 8])
    ops = []
    for rho in range(2):
        o = HB + 4*rho
        ops += ['v_permlane16_swap_b32 %s, %s' % (v(o), v(o+2)), 'v_permlane16_swap_b32 %s, %s' % (v(o+1), v(o+3))]
    for i, op in enumerate(M.ops):
        A(op)
        if i & 1: A(ops.pop(0))
    for rho in range(2):
        A('buffer_store_dwordx4 %s, %s, %s, s57 offen offset:%d%s' % (v(HB+4*rho, 4), v(P.ADR+6), s(SWS, 4), rho*1024, st_mod))
    xreduce(A, S, [D+1, D+3], [16, 32])
    for rho in range(2):
        A('v_mul_f32 %s, %s, %s' % (v(S[rho]), fhex(1/512), v(S[rho])))
    for rho in range(2):
        for j in range(4):
            h = H + 8*rho + 2*j
            A('v_pk_add_f32 %s, %s, %s op_sel_hi:[1,0] neg_lo:[0,1] neg_hi:[0,1]' % (v(h, 2), v(h, 2), v(S[rho], 2)))
    for rho in range(2):
        h = H + 8*rho; d = D + 4 + 4*rho
        A('v_pk_mul_f32 %s, %s, %s' % (v(d, 2), v(h, 2), v(h, 2)))
        for j in range(1, 4):
            A('v_pk_fma_f32 %s, %s, %s, %s' % (v(d, 2), v(h+2*j, 2), v(h+2*j, 2), v(d, 2)))
        A('v_add_f32 %s, %s, %s' % (v(S[rho]), v(d), v(d+1)))
    xreduce(A, S, [D+1, D+3], [1, 2, 4, 8, 16, 32])
    for rho in range(2):
        A('v_mov_b32 %s, %s' % (v(S[rho]+1), fhex(1e-5/LOG2E**2)))
        A('v_fmac_f32 %s, %s, %s' % (v(S[rho]+1), fhex(1/512/LOG2E**2), v(S[rho])))
        A('v_rsq_f32 %s, %s' % (v(S[rho]), v(S[rho]+1)))
    for rho in range(2):
        for j in range(4):
            h = H + 8*rho + 2*j
            A('v_pk_mul_f32 %s, %s, %s op_sel_hi:[1,0]' % (v(h, 2), v(h, 2), v(S[rho], 2)))
        for j in range(4):
            cvt(A, P.L+4*rho+j, H+8*rho+2*j, H+8*rho+2*j+1)
        A('buffer_store_dwordx4 %s, %s, %s, s56 offen offset:%d%s' % (v(P.L+4*rho, 4), v(P.ADR+4+rho), s(SWS, 4), rho*1024, st_mod))

def flag_set(A, soff, tmp, imm=0):
    A('v_mov_b32 %s, %s' % (v(tmp), s(sTAG)))
    A('s_mov_b64 exec, 1')
    A('buffer_store_dword %s, off, %s, %s offset:%d sc1' % (v(tmp), s(SWS, 4), s(soff), imm))
    A('s_mov_b64 exec, -1')

def flag_poll(A, name, vadr, imm=0):
    poll_begin(A, name)
    A('buffer_load_dword v5, %s, %s, 0 offen offset:%d sc1' % (v(vadr), s(SWS, 4), imm))
    A('s_waitcnt vmcnt(0)')
    A('v_xor_b32 v5, %s, v5' % s(sTAG))
    poll_end(A, name, 5)

W1O, W1A, W2O, W2A = 130, 133, 136, 140
def w1reg(ft, kap):
    i = 4*(3*kap + ft)
    return 256 + 176 + i if i < 80 else 252 - (i - 80)
def w2reg(dt, st):
    return 256 + 4*(4*st + dt)

SWZ = [0]
ROT2 = [3]
def w1_addr(A):
    vo, va = W1O, W1A
    A('v_and_b32 v5, 63, v0')
    for u in range(3):
        A('v_add_u32 v6, %d, v5' % (64*u))
        A('v_mul_u32_u24 v7, 0xaab, v6')
        A('v_lshrrev_b32 v7, 16, v7')
        A('v_mul_u32_u24 %s, 24, v7' % v(vo+u))
        A('v_sub_u32 v6, v6, %s' % v(vo+u))
        if SWZ[0] == 0:
            A('v_and_b32 %s, 6, v7' % v(vo+u))
            A('v_xor_b32 v6, v6, %s' % v(vo+u))
        elif SWZ[0] == 2:
            A('v_and_b32 %s, 4, v7' % v(vo+u))
            A('v_sub_u32 v6, v6, %s' % v(vo+u))
            A('v_add_u32 %s, 24, v6' % v(vo+u))
            A('v_min_u32 v6, v6, %s' % v(vo+u))
            A('v_and_b32 %s, 2, v7' % v(vo+u))
            A('v_xor_b32 v6, v6, %s' % v(vo+u))
        A('v_mul_u32_u24 v7, 2752, v7')
        A('v_lshl_add_u32 v6, v6, 4, v7')
        A('v_subrev_u32 %s, %d, v6' % (v(vo+u), 1024*u))
    A('s_and_b32 s6, %s, 7' % s(sB))
    A('s_mul_i32 s6, s6, 384')
    A('s_lshr_b32 s36, %s, 1' % s(sW))
    A('s_mul_i32 s36, s36, %d' % (256*2752))
    A('s_add_u32 s6, s6, s36')
    A('s_and_b32 s36, %s, 1' % s(sW))
    A('s_mul_i32 s36, s36, %d' % (8*2752))
    A('s_add_u32 s6, s6, s36')

def w1_addr_rd(A, base):
    va = W1A
    A('v_and_b32 v5, 63, v0')
    A('v_lshrrev_b32 v6, 2, v5')
    A('v_mul_u32_u24 v7, 384, v6')
    A('v_and_b32 v5, 3, v5')
    A('v_lshl_add_u32 v7, v5, 3, v7')
    A('v_add_u32 v7, %d, v7' % base)
    A('s_mul_i32 s36, %s, 3' % s(sW))
    if SWZ[0] == 0:
        A('v_bfe_u32 v6, v6, 1, 2')
        for ft in range(3):
            A('s_add_u32 s37, s36, %d' % ft)
            A('v_xor_b32 v5, s37, v6')
            A('v_lshl_add_u32 %s, v5, 5, v7' % v(va+ft))
    else:
        for ft in range(3):
            A('s_add_u32 s37, s36, %d' % ft)
            A('v_bfe_u32 v5, v6, 1, 1')
            A('v_xor_b32 v5, s37, v5')
            A('v_bfe_u32 %s, v6, 2, 1' % v(va+ft))
            A('v_lshl_add_u32 v5, %s, 1, v5' % v(va+ft))
            A('v_subrev_u32 %s, 12, v5' % v(va+ft))
            A('v_min_u32 v5, v5, %s' % v(va+ft))
            A('v_lshl_add_u32 %s, v5, 5, v7' % v(va+ft))

def w1_dma(A, k0, k1, lds):
    A('s_add_u32 s96, s6, %d' % (16*k0*2752))
    A('s_mul_i32 s97, %s, 3072' % s(sW))
    A('s_add_u32 m0, s97, %d' % lds)
    for k in range(k0, k1):
        for u in range(3):
            A('buffer_load_dwordx4 %s, %s, s96 offen offset:%d lds' % (v(W1O+u), s(SW1, 4), 1024*u))
        if k + 1 < k1:
            A('s_add_u32 s96, s96, %d' % (16*2752))
            A('s_add_u32 m0, m0, 12288')

def w1_read(A, k0, k1, lds, base, tmp=5):
    cur = base; regs = [W1A, W1A+1, W1A+2]
    for k in range(k0, k1):
        off = lds + (k - k0)*12288
        if off + 6144 - cur > 65535:
            for ft in range(3):
                A('v_add_u32 %s, %d, %s' % (v(tmp+ft), off - base, v(W1A+ft)))
            cur = off; regs = [tmp, tmp+1, tmp+2]
        for hi in range(2):
            for ft in range(3):
                A('ds_read_b64_tr_b16 %s, %s offset:%d' % (R(w1reg(ft, k) + 2*hi, 2), v(regs[ft]), off + hi*6144 - cur))

def w2_addr(A):
    vo = W2O
    A('v_and_b32 v5, 63, v0')
    A('v_lshrrev_b32 v6, 3, v5')
    A('v_and_b32 v7, 2, v6')
    A('v_xor_b32 v7, v7, v5')
    A('v_and_b32 v7, 7, v7')
    A('v_lshlrev_b32 v7, 4, v7')
    A('v_lshl_or_b32 %s, v6, 10, v7' % v(vo))
    A('v_xor_b32 v7, 64, %s' % v(vo))
    A('v_add_u32 %s, %d, v7' % (v(vo+1), 7168))
    A('v_add_u32 %s, %d, %s' % (v(vo+2), 2*7168, v(vo)))
    A('v_add_u32 %s, %d, v7' % (v(vo+3), 3*7168))
    A('s_and_b32 s7, %s, 7' % s(sB))
    A('s_lshl_b32 s7, s7, 7')
    A('s_mul_i32 s36, %s, %d' % (s(sW), 11*32*1024))
    A('s_add_u32 s7, s7, s36')
    A('s_bfe_u32 s6, %s, 0x20003' % s(sB))
    A('s_mul_i32 s6, s6, %d' % ROT2[0])

def w2_addr_rd(A, bases):
    A('v_and_b32 v5, 63, v0')
    A('v_bfe_u32 v6, v5, 2, 2')
    A('v_lshl_or_b32 v6, %s, 3, v6' % v(vQ))
    A('v_and_b32 v7, 3, v5')
    A('v_lshlrev_b32 v7, 3, v7')
    A('v_lshl_or_b32 v7, v6, 7, v7')
    A('v_bfe_u32 v6, v5, 3, 2')
    A('v_xor_b32 v6, %s, v6' % s(sW))
    A('v_lshl_or_b32 v7, v6, 5, v7')
    for lds, va in bases:
        A('s_lshl_b32 s36, %s, 12' % s(sW))
        A('s_add_u32 s36, s36, %d' % lds)
        A('v_add_u32 %s, s36, v7' % v(va[0]))
        for dt in range(1, 4):
            A('v_xor_b32 %s, %d, %s' % (v(va[dt]), 32*dt, v(va[0])))

def step_of(A, dst, st):
    A('s_add_u32 %s, s6, %d' % (s(dst), st))
    if ROT2[0]:
        A('s_sub_u32 s97, %s, 11' % s(dst))
        A('s_min_u32 %s, %s, s97' % (s(dst), s(dst)))

def w2_dma(A, st, lds):
    step_of(A, 96, st)
    A('s_lshl_b32 s96, s96, 15')
    A('s_add_u32 s96, s96, s7')
    A('s_lshl_b32 s97, %s, 12' % s(sW))
    A('s_add_u32 m0, s97, %d' % lds)
    for u in range(4):
        A('buffer_load_dwordx4 %s, %s, s96 offen offset:%d lds' % (v(W2O+u), s(SW2, 4), 1024*u))

def w2_read(A, st, va, off):
    for dt in range(4):
        for hi in range(2):
            A('ds_read_b64_tr_b16 %s, %s offset:%d' % (R(w2reg(dt, st) + 2*hi, 2), v(va[dt]), off + hi*512))

def touch_weights(A, dst, srd):
    A('s_lshl_b32 s36, %s, 2' % s(sB))
    A('s_add_u32 s36, s36, %s' % s(sW))
    A('s_mul_i32 s36, s36, %d' % (11*128))
    A('v_min_u32 v5, 10, %s' % v(vN))
    A('v_lshlrev_b32 v5, 7, v5')
    A('buffer_load_dword %s, v5, %s, s36 offen' % (v(dst), s(srd, 4)))

def poison_ops(vp, va):
    A = Rec()
    for i in range(4):
        A('v_mov_b32 %s, -1' % v(vp+i))
    A('v_and_b32 %s, 63, v0' % v(va))
    A('v_lshlrev_b32 %s, 4, %s' % (v(va), v(va)))
    A('s_lshl_b32 s98, %s, 2' % s(sB))
    A('s_add_u32 s98, s98, %s' % s(sW))
    A('s_lshl_b32 s99, s98, 11')
    A('s_add_u32 s99, s99, %d' % G_OFF)
    for rho in range(2):
        A('buffer_store_dwordx4 %s, %s, %s, s99 offen offset:%d sc1' % (v(vp, 4), v(va), s(SWS, 4), rho*1024))
    A('s_mul_i32 s99, s98, 6144')
    A('s_add_u32 s99, s99, %d' % H_OFF)
    for i in range(6):
        if i == 4: A('s_add_u32 s99, s99, 4096')
        A('buffer_store_dwordx4 %s, %s, %s, s99 offen offset:%d sc1' % (v(vp, 4), v(va), s(SWS, 4), (i & 3)*1024))
    return A.ops

class G1:
    ACC = 16
    BF = 64
    T = 96
    O = 108
    CK = 116
    TCH = 15
    ADR = 120

def g1_setup(A, ldsg):
    G = G1
    for k in range(4):
        A('v_or_b32 v5, %d, %s' % (4*k, v(vQ)))
        A('v_xor_b32 v5, v5, %s' % v(vN))
        A('v_lshlrev_b32 v5, 4, v5')
        A('v_lshl_or_b32 %s, %s, 10, v5' % (v(G.ADR+k), v(vN)))
        if ldsg:
            A('v_add_u32 %s, %d, %s' % (v(G.ADR+k), ldsg, v(G.ADR+k)))
    A('v_and_b32 v5, 63, v0')
    A('v_lshlrev_b32 %s, 4, v5' % v(G.ADR+4))
    A('v_bfe_u32 v5, v0, 3, 2')
    A('v_lshl_or_b32 v5, v5, 2, %s' % v(G.ADR+4))
    A('s_lshl_b32 s37, %s, 12' % s(sW))
    A('s_add_u32 s51, s37, %d' % ldsg)
    A('v_add_u32 %s, s51, v5' % v(G.ADR+7))
    A('s_and_b32 s38, %s, 7' % s(sB))
    A('s_lshl_b32 s38, s38, 2')
    A('s_add_u32 s38, s38, %s' % s(sW))
    A('s_mul_i32 s38, s38, 3')
    A('v_lshrrev_b32 v6, 1, %s' % v(vQ))
    A('v_lshlrev_b32 v6, 8, v6')
    A('v_lshl_or_b32 v6, %s, 4, v6' % v(vN))
    A('v_and_b32 v5, 1, %s' % v(vQ))
    A('s_add_u32 s39, s38, 2')
    A('s_lshr_b32 s36, s39, 1')
    A('s_lshl_b32 s36, s36, 12')
    A('s_and_b32 s39, s39, 1')
    A('s_lshl_b32 s39, s39, 9')
    A('s_or_b32 s39, s39, s36')
    A('v_lshl_or_b32 v7, v5, 30, v6')
    A('v_or_b32 %s, s39, v7' % v(G.ADR+6))
    A('v_add_u32 v5, s38, v5')
    A('v_and_b32 v7, 1, v5')
    A('v_lshl_or_b32 v6, v7, 9, v6')
    A('v_lshrrev_b32 v5, 1, v5')
    A('v_lshl_or_b32 %s, v5, 12, v6' % v(G.ADR+5))
    A('s_lshr_b32 s36, %s, 3' % s(sB))
    A('s_mul_i32 s56, s36, %d' % (4*49152))
    A('s_add_u32 s56, s56, %d' % H_OFF)
    A('s_lshl_b32 s36, s36, 16')
    A('s_add_u32 s36, s36, s37')
    A('s_add_u32 s50, s36, %d' % G_OFF)

def g1_dma_rt(A, rt, pre=''):
    G = G1
    A('s_add_u32 m0, s51, %d' % (rt*16384))
    A('s_add_u32 s36, s50, %d' % (rt*16384))
    for u in range(4):
        A('%sbuffer_load_dwordx4 %s, %s, s36 offen offset:%d sc1 lds' % (pre, v(G.ADR+4), s(SWS, 4), 1024*u))

def g1_dma(A):
    for rt in range(4):
        g1_dma_rt(A, rt)
        A('@mv g%d' % rt)

def g1_check_rd(A, rt, pre=''):
    G = G1
    for u in range(4):
        A('%sds_read_b32 %s, %s offset:%d' % (pre, v(G.CK+u), v(G.ADR+7), rt*16384 + u*1024))
def g1_check_cmp(A):
    G = G1
    A('v_max3_u32 %s, %s, %s, %s' % (v(G.CK), v(G.CK), v(G.CK+1), v(G.CK+2)))
    A('v_max_u32 %s, %s, %s' % (v(G.CK), v(G.CK), v(G.CK+3)))
    A('v_cmp_eq_u32 vcc, -1, %s' % v(G.CK))

def g1_slow(A):
    for rt in range(4):
        A('L_gslow%d:' % rt)
        A('s_mov_b32 s38, m0')
        A('s_movk_i32 s47, %d' % SPIN)
        A('L_gspin%d:' % rt)
        if CNT[0]: A('s_add_u32 s100, s100, %d' % (1 << 8*rt))
        g1_dma_rt(A, rt, 'x_')
        A('s_waitcnt vmcnt(0)')
        g1_check_rd(A, rt, 'x_')
        A('s_waitcnt lgkmcnt(0)')
        g1_check_cmp(A)
        A('s_sub_u32 s47, s47, 1')
        A('s_cselect_b64 vcc, 0, vcc')
        A('s_cbranch_vccnz L_gspin%d' % rt)
        A('s_mov_b32 m0, s38')
        A('s_branch L_gback%d' % rt)

def silu_ops(rt):
    G = G1; ops = []
    for ft in range(3):
        acc = G.ACC + 12*rt + 4*ft; t = G.T + 4*ft
        for r in range(4):
            ops.append('v_exp_f32 %s, -%s' % (v(t+r), v(acc+r)))
        for r in range(4):
            ops.append('v_add_f32 %s, 1.0, %s' % (v(t+r), v(t+r)))
        for r in range(4):
            ops.append('v_rcp_f32 %s, %s' % (v(t+r), v(t+r)))
        for r in range(4):
            ops.append('v_mul_f32 %s, %s, %s' % (v(t+r), v(t+r), v(acc+r)))
        for x in range(2):
            ops.append('v_cvt_pk_bf16_f32 %s, %s, %s' % (v(G.O+2*ft+x), v(t+2*x), v(t+2*x+1)))
        if ft:
            o = G.O + 4*(ft-1)
            ops.append('v_permlane16_swap_b32 %s, %s' % (v(o), v(o+2)))
            ops.append('v_permlane16_swap_b32 %s, %s' % (v(o+1), v(o+3)))
            ops.append('buffer_store_dwordx4 %s, %s, %s, %s offen offset:%d sc1' % (v(o, 4), v(G.ADR+4+ft), s(SWS, 4), s(56), rt*1024))
    ops.append('@mv hs%d' % rt)
    return ops

def op_cost(op):
    if op.startswith('@m'): return 0
    return 8 if any(op.startswith(t) for t in TRANS) else 4

KORD = [(6 + i) % 16 for i in range(16)]
def g1_compute(A, rd0=(), bg=(), pace=6, ek=50, ne=11, dens=8, S=lambda A, i: None):
    G = G1
    DEPTH = 6
    def rd(K):
        rt, k = K >> 4, KORD[K & 15]
        A('ds_read_b128 %s, %s offset:%d' % (v(G.BF+4*(K & 7), 4), v(G.ADR+(k & 3)), rt*16384 + (k >> 2)*256))
        A('@ml b%d' % K)
    def chk1(rt):
        A('@wv g%d' % rt); g1_check_rd(A, rt); A('@ml ck')
    def chk2(rt):
        A('@wl ck'); g1_check_cmp(A)
    def chk3(rt):
        A('s_cbranch_vccnz L_gslow%d' % rt)
        A('L_gback%d:' % rt)
        A('s_barrier')
    A('@mv bgend')
    chk1(0); chk2(0); chk3(0)
    S(A, 0)
    for K in range(DEPTH): rd(K)
    fill = []; bg = list(bg); rd0 = list(rd0); budget = 0; early = []
    for K in range(64):
        rt, k = K >> 4, K & 15
        if K % 2 == 0:
            A('@wl b%d' % (K+1))
        for ft in range(3):
            acc = G.ACC + 12*rt + 4*ft
            mfma(A, acc, w1reg(ft, KORD[k]), G.BF+4*(K & 7), acc if k else None)
            budget = min(budget, 0) + (dens if rt == 3 else 8)
            if ft == 0 and K + DEPTH < 64:
                rd(K + DEPTH); budget -= 4
            if ft == 2 and K % 2 == 1: budget -= 4
            if rt < 3 and ft == 1:
                if k == 6: chk1(rt+1); budget -= 20
                if k == 8: chk2(rt+1); budget -= 16
                if k == 9: chk3(rt+1); budget -= 8
            if K >= ek and ft == 1 and len(early) < ne:
                i = len(early); early.append(i)
                assert 1 + 3*(k - 1) > i
                A(g2_load(i // 11, i % 11)); A('@mv h%d_%d' % (i // 11, i % 11)); budget -= 4
            if K == 0 and ft == 0: A('@ml rd0')
            while rd0 and budget >= 4:
                A(rd0.pop(0)); A('@ml rd0'); budget -= 4
            if bg and K >= bg[0][0] and (3*K + ft) % pace == 1:
                grp = bg.pop(0)[1]
                assert not (rd0 and grp[0] == '@wl rd0')
                for op in grp: A(op)
                A('@mv bgend')
                budget -= 8
            if k >= 1:
                left = (15 - k)*3 + (2 - ft)
                while fill and (budget >= op_cost(fill[0]) or sum(map(op_cost, fill)) > 8*left):
                    budget -= op_cost(fill[0]); A(fill.pop(0))
        if k == 15:
            for op in fill: A(op)
            fill = silu_ops(rt)
            S(A, 1 + rt)
    assert not bg
    return fill, len(early)

class G2:
    ADR = 8
    HR = 16
    T = 24
    CK = 72
    HF = 80
    ACC = 256 + 176
    SO = 12

def hf(rt, st):
    return 252 - 4*(11*rt + st)

def g2_setup(A, ldsr):
    G = G2
    A('v_and_b32 v5, 63, v0')
    A('v_lshlrev_b32 %s, 4, v5' % v(G.ADR))
    A('s_lshr_b32 s36, %s, 3' % s(sB))
    A('s_mul_i32 s37, s36, %d' % (4*49152))
    A('s_mul_i32 s38, %s, %d' % (s(sW), 11*4096))
    A('s_add_u32 s37, s37, s38')
    A('s_add_u32 s37, s37, %d' % H_OFF)
    for st in range(11):
        A('s_add_u32 s38, s6, %d' % st)
        A('s_sub_u32 s39, s38, 11')
        A('s_min_u32 s38, s38, s39')
        A('s_lshl_b32 s38, s38, 12')
        A('s_add_u32 %s, s37, s38' % s(G.SO+st))
    for dl in range(4):
        A('s_xor_b32 s38, %s, %d' % (s(sW), dl))
        A('s_mul_i32 s39, s38, 12288')
        A('s_add_u32 s39, s39, %d' % (ldsr + max(dl-1, 0)*4096))
        A('v_add_u32 %s, s39, %s' % (v(G.ADR+1+dl), v(G.ADR)))
    A('s_lshl_b32 s37, s36, 16')
    A('s_and_b32 s38, %s, 7' % s(sB))
    A('s_lshl_b32 s38, s38, 2')
    A('s_add_u32 s38, s38, %s' % s(sW))
    A('s_lshl_b32 s38, s38, 5')
    A('s_add_u32 s37, s37, s38')
    for rt in range(4):
        A('s_add_u32 %s, s37, %d' % (s(52+rt), HR_OFF + rt*16384))
    A('v_lshlrev_b32 v5, 10, %s' % v(vN))
    A('v_lshl_or_b32 %s, %s, 3, v5' % (v(G.ADR+5), v(vQ)))
    A('s_lshr_b32 s37, %s, 5' % s(sB))
    A('s_lshl_b32 s37, s37, 8')
    A('s_and_b32 s39, %s, 24' % s(sB))
    A('s_add_u32 s37, s37, s39')
    A('s_lshl_b32 s37, s37, 10')
    A('s_add_u32 s44, s37, s38')
    A('s_add_u32 s45, s44, 4096')
    A('v_and_b32 v5, 7, %s' % v(vN))
    A('v_lshlrev_b32 v5, 15, v5')
    A('v_lshrrev_b32 v6, 3, %s' % v(vN))
    A('v_lshl_or_b32 v5, v6, 10, v5')
    A('v_and_b32 v6, 1, %s' % v(vQ))
    A('v_lshl_or_b32 v5, v6, 11, v5')
    A('v_lshrrev_b32 v6, 1, %s' % v(vQ))
    A('v_lshl_or_b32 %s, v6, 4, v5' % v(G.ADR+6))

def g2_load(rt, st, pre=''):
    G = G2
    return '%sbuffer_load_dwordx4 %s, %s, %s, %s offen offset:%d%s' % (pre, v(hf(rt, st), 4), v(G.ADR), s(SWS, 4), s(G.SO+st), rt*1024, ' sc1' if pre else HMOD[0])

CHUNKS = [(0, 3), (3, 6), (6, 9), (9, 11)]
def g2_check(A, rt, c):
    G = G2; a_, b_ = CHUNKS[c]
    if b_ - a_ == 3: A('v_max3_u32 %s, %s, %s, %s' % (v(G.CK), v(hf(rt, a_)), v(hf(rt, a_+1)), v(hf(rt, a_+2))))
    else: A('v_max_u32 %s, %s, %s' % (v(G.CK), v(hf(rt, a_)), v(hf(rt, a_+1))))
    A('v_cmp_eq_u32 vcc, -1, %s' % v(G.CK))

def g2_slow(A):
    G = G2
    for rt in range(4):
        for c in range(4):
            A('L_hslow%d%d:' % (rt, c))
            A('s_call_b64 s[48:49], L_hre%d' % rt)
            A('s_branch L_hback%d%d' % (rt, c))
        A('L_hre%d:' % rt)
        A('s_movk_i32 s47, %d' % SPIN)
        A('L_hspin%d:' % rt)
        if CNT[0]: A('s_add_u32 s101, s101, %d' % (1 << 8*rt))
        A('s_nop 7')
        for st in range(11): A(g2_load(rt, st, 'x_'))
        A('s_waitcnt vmcnt(0)')
        A('v_max3_u32 %s, %s, %s, %s' % (v(G.CK), v(hf(rt, 0)), v(hf(rt, 1)), v(hf(rt, 2))))
        for st in range(3, 11, 2):
            A('v_max3_u32 %s, %s, %s, %s' % (v(G.CK), v(G.CK), v(hf(rt, st)), v(hf(rt, st+1))))
        A('v_cmp_eq_u32 vcc, -1, %s' % v(G.CK))
        A('s_sub_u32 s47, s47, 1')
        A('s_cselect_b64 vcc, 0, vcc')
        A('s_cbranch_vccnz L_hspin%d' % rt)
        A('s_setpc_b64 s[48:49]')

def g2_red_writes(rt):
    G = G2
    return ['ds_write_b128 %s, %s offset:%d' % (v(G.ADR+1+dl), R(G.ACC+16*rt+4*dl, 4), rt*1024) for dl in range(1, 4)]

def g2_main(A, tail, done, w2late, ahead=14, tgap=48, S=lambda A, i: None):
    G = G2
    loads = [(rt, st) for rt in range(4) for st in range(11)][done:]
    late_left = [True]
    def ld():
        rt, st = loads.pop(0)
        assert hf(rt, st) >= 144 or not late_left[0]
        A(g2_load(rt, st)); A('@mv h%d_%d' % (rt, st))
    acc = 0; n = done
    for op in tail:
        A(op); acc += op_cost(op)
        if acc >= tgap and n < ahead: ld(); n += 1; acc = 0
    if DLY[0]:
        A('s_memrealtime s[62:63]'); A('s_waitcnt lgkmcnt(0)'); A('s_add_u32 s36, s62, %d' % DLY[0])
        A('L_dly:'); A('s_memrealtime s[62:63]'); A('s_waitcnt lgkmcnt(0)'); A('s_cmp_lt_u32 s62, s36'); A('s_cbranch_scc1 L_dly')
    S(A, 0)
    while n < ahead: ld(); n += 1
    late = []
    for st in sorted(w2late): late += [(st, op) for op in w2late[st]]
    A('@wv bgend')
    for _ in range(16):
        if late:
            st, op = late.pop(0); A(op); A('@ml w2_%d' % st)
    fill = []
    for rt in range(4):
        for st in range(11):
            for c, (a_, b_) in enumerate(CHUNKS):
                if st == a_:
                    A('@wv h%d_%d' % (rt, b_-1))
                    g2_check(A, rt, c)
                    A('s_cbranch_vccnz L_hslow%d%d' % (rt, c))
                    A('L_hback%d%d:' % (rt, c))
                    if rt == 0 and c in (0, 2): S(A, 2 + c//2)
            if rt == 0 and st in w2late:
                while late and late[0][0] <= st:
                    s_, op = late.pop(0); A(op); A('@ml w2_%d' % s_)
                A('@wl w2_%d' % st)
            for dl in range(4):
                acc = G.ACC + 16*rt + 4*dl
                mfma(A, acc, w2reg(dl, st), hf(rt, st), acc if st else None)
                late_left[0] = bool(late)
                if dl == 0 and loads: ld()
                elif late:
                    for _ in range(2):
                        if late:
                            s_, op = late.pop(0); A(op); A('@ml w2_%d' % s_)
                elif fill and st >= 2 and dl == 2: A(fill.pop(0))
        if rt == 0:
            A('s_barrier')
            fill = ['buffer_load_dwordx2 %s, %s, %s, %s offen sc1' % (v(G.HR+2*r_, 2), v(G.ADR+5), s(SWS, 4), s(52+r_)) for r_ in range(4)]
        if rt < 3: fill += g2_red_writes(rt)
        if rt == 1: S(A, 1)
        if rt == 0: S(A, 4)
    assert not fill and not loads

def g2_finish(A, S_=lambda A, i: None):
    G = G2; T = G.T
    S = 176
    for j in range(8):
        A('v_lshlrev_b32 %s, 16, %s' % (v(S+44+2*j), v(G.HR+j)))
        A('v_and_b32 %s, 0xffff0000, %s' % (v(S+44+2*j+1), v(G.HR+j)))
        if j == 3:
            for op in g2_red_writes(3): A(op)
    for rt in range(4):
        for r in range(4):
            A('v_accvgpr_read_b32 %s, %s' % (v(S+4*rt+r), R(G.ACC+16*rt+r)))
    A('s_mov_b32 s62, %s' % fhex(1/LOG2E))
    A('s_mov_b32 s63, s62')
    A('s_waitcnt lgkmcnt(0)')
    A('s_barrier')
    S_(A, 0)
    for rt in range(4):
        for k in range(3):
            A('ds_read_b128 %s, %s offset:%d' % (v(T+12*rt+4*k, 4), v(G.ADR+1), k*4096 + rt*1024))
    O = G.HR
    for rt in range(4):
        A('s_waitcnt lgkmcnt(%d)' % (9 - 3*rt))
        t = T + 12*rt
        for x in range(2):
            A('v_pk_add_f32 %s, %s, %s' % (v(t+2*x, 2), v(t+2*x, 2), v(t+4+2*x, 2)))
            A('v_pk_add_f32 %s, %s, %s' % (v(S+4*rt+2*x, 2), v(S+4*rt+2*x, 2), v(t+8+2*x, 2)))
        for x in range(2):
            A('v_pk_add_f32 %s, %s, %s' % (v(t+2*x, 2), v(t+2*x, 2), v(S+4*rt+2*x, 2)))
        for x in range(2):
            A('v_pk_fma_f32 %s, %s, s[62:63], %s' % (v(t+2*x, 2), v(t+2*x, 2), v(S+44+4*rt+2*x, 2)))
        for x in range(2):
            cvt(A, O+2*rt+x, t+2*x, t+2*x+1)
        if rt & 1:
            o = O + 4*(rt >> 1)
            A('v_permlane16_swap_b32 %s, %s' % (v(o), v(o+2)))
            A('v_permlane16_swap_b32 %s, %s' % (v(o+1), v(o+3)))
            A('buffer_store_dwordx4 %s, %s, %s, %s offen' % (v(o, 4), v(G.ADR+6), s(SOUT, 4), s(44 + (rt >> 1))))

CLK = ['s_memrealtime']
def stamp(A, idx):
    A('%s %s' % (CLK[0], s(64 + 2*idx, 2)))
def stamp_dump(A, slot, n):
    A('s_waitcnt vmcnt(0) lgkmcnt(0)')
    stamp(A, n)
    A('s_waitcnt lgkmcnt(0)')
    A('v_mov_b32 v5, 0')
    for i in range(n + 1):
        A('v_writelane_b32 v5, %s, %d' % (s(64 + 2*i), i))
    if CNT[0]:
        A('v_writelane_b32 v5, s2, 1')
        A('v_writelane_b32 v5, s100, 3')
        A('v_writelane_b32 v5, s101, 6')
    A('s_lshl_b32 s36, %s, 2' % s(sB))
    A('s_add_u32 s36, s36, %s' % s(sW))
    A('s_lshl_b32 s36, s36, 6')
    A('s_add_u32 s36, s36, %d' % (STAMP_OFF + slot*65536))
    A('v_and_b32 v6, 63, v0')
    A('v_lshlrev_b32 v6, 2, v6')
    A('s_mov_b64 exec, 0xffff')
    A('buffer_store_dword v5, v6, %s, s36 offen sc1' % s(SWS, 4))

def readout(A, pt, op, wait_us=34, add_us=40):
    A('s_mov_b64 exec, -1')
    A('s_or_b32 s36, %s, %s' % (s(sB), s(sW)))
    A('s_cbranch_scc1 L_end')
    A('L_ro1:')
    A('s_memrealtime s[62:63]')
    A('s_waitcnt lgkmcnt(0)')
    A('s_sub_u32 s62, s62, s64')
    A('s_cmp_lt_u32 s62, %d' % (wait_us*100))
    A('s_cbranch_scc1 L_ro1')
    A('v_lshlrev_b32 v6, 6, v0')
    A('s_mov_b32 s36, %d' % (STAMP_OFF + pt*4))
    for i in range(16):
        A('buffer_load_dword %s, v6, %s, s36 offen sc1' % (v(8+i), s(SWS, 4)))
        A('s_add_u32 s36, s36, 4096')
    A('s_waitcnt vmcnt(0)')
    for i in range(16):
        A('v_subrev_u32 %s, s64, %s' % (v(8+i), v(8+i)))
    for i in range(1, 16):
        A('v_%s_i32 v8, v8, %s' % (op, v(8+i)))
    for mod in ('quad_perm:[1,0,3,2]', 'quad_perm:[2,3,0,1]', 'row_ror:4', 'row_ror:8'):
        A('v_%s_i32_dpp v8, v8, v8 %s row_mask:0xf bank_mask:0xf' % (op, mod))
    for st in (16, 32):
        A('v_mov_b32 v9, v8')
        A('v_permlane%d_swap_b32 v8, v9' % st)
        A('v_%s_i32 v8, v8, v9' % op)
    A('v_readfirstlane_b32 s36, v8')
    A('s_add_u32 s36, s36, %d' % (add_us*100))
    A('s_min_u32 s36, s36, 20000')
    A('L_ro2:')
    A('s_memrealtime s[62:63]')
    A('s_waitcnt lgkmcnt(0)')
    A('s_sub_u32 s62, s62, s64')
    A('s_cmp_lt_u32 s62, s36')
    A('s_cbranch_scc1 L_ro2')
```

```python
import sys
from phases import *
NAME = 'sequential_preLN__spectral_gfnet__dense_activation_silu__prompt_kernel'
HEAD = open('sequential_preLN__spectral_gfnet__dense_activation_silu__prompt.s.ref').read().split('; Override')[0]
ST = 'stamp' in sys.argv
if 'cyc' in sys.argv: CLK[0] = 's_memtime'
opt = dict(a.split('=') for a in sys.argv if '=' in a)
def S(A, i):
    if ST: stamp(A, i)

if opt.get('nowt') == '1':
    w1_dma = w1_read = w2_dma = w2_read = lambda *a: None
SC1, SCY = 2.0**-73, 2.0**-104
STG = 36864
A = Asm()
A('.globl %s\n.p2align 8\n.type %s,@function\n%s:' % (NAME, NAME, NAME))
prologue(A, 'L_end', ST or 'fix' in opt)
if opt.get('pf', '1') == '1':
    A('s_bfe_u32 s36, s2, 0x20003')
    A('s_cmp_lg_u32 s36, %s' % s(sW))
    A('s_cbranch_scc1 L_nopf')
    A('s_getpc_b64 s[40:41]')
    A('L_pc:')
    A('s_mov_b32 s42, L_code_end-L_pc')
    A('s_mov_b32 s43, 0x20000')
    A('v_lshlrev_b32 v5, 7, v0')
    A('x_buffer_load_dword v129, v5, s[40:43], 0 offen')
    A('L_nopf:')
def rec(f, *a, **k):
    r = Rec(); f(r, *a, **k); return r.ops
I = lambda k, d: int(opt.get(k, d))
SWZ[0] = I('swz', 0)
CNT[0] = I('cnt', 0)
if CNT[0]: A('s_mov_b64 s[100:101], 0')
ROT2[0] = I('rot2', 0); DLY[0] = I('dly', 0); HMOD[0] = {0: '', 1: ' sc1', 2: ' nt'}[I('hmod', 1)]
def take(lst, n):
    r = lst[:n]; del lst[:n]; return r
def burst(gs):
    for g_ in gs:
        for op in g_: A(op)
p1_loads(A, 0)
A('s_load_dword %s, %s, %d' % (s(sTAG), s(SWS, 2), GEN_OFF))
p1_consts(A)
p1_wloads(A, 0)
touch_weights(A, 129, SW1)
if I('t2', 0) == 0: touch_weights(A, 129, SW2)
PO = groups_of(poison_ops(176, 175))
pos = [int(c) for c in opt.get('po', '026')]
assert sum(pos) == 8 and pos[0] + pos[1] >= 2
if I('nopo', 0): PO = []
F1 = groups_of(rec(w1_dma, 0, 10, STG) + ['@mv f1'])
w1_addr(A)
n = [int(c, 36) for c in opt.get('n', '0996')]
assert n[0] + n[1] + n[2] >= 18
sprinkle(A, rec(p1_addrs, 16384), take(PO, pos[0]) + take(F1, n[0]), 24)
A('s_waitcnt lgkmcnt(0)')
A('s_add_u32 %s, %s, 0x9e3779b1' % (s(sTAG), s(sTAG)))
p1_tags(A)
S(A, 1)
r = sprinkle(A, rec(p1_compute, 0, 16384, SC1, ' sc1'), take(F1, n[1]), I('ga', 100), I('sa', 100), False)
S(A, 2)
if I('t2', 0) == 1: touch_weights(A, 129, SW2)
LX, LW, LQ, LY = 16384, 24832, 0, 8192
base = rec(p1_keep_x, 0) + rec(p2_addr_loads) + rec(p2_setup, LX, LW, LQ, 1/SC1, SCY) + rec(p2_tags) + rec(w1_addr_rd, STG)
sprinkle(A, base, take(PO, pos[1]) + r + take(F1, n[2]), I('gb', 64))
A('s_barrier')
S(A, 3)
p2_poll(A, take(F1, n[3]))
S(A, 4)
p2_stage(A, None)
T_ = Rec(); sprinkle(T_, rec(p2_compute_a, LX, LW, LQ), F1 + PO, I('g2a', 100), I('s2a', 100))
r = after_mfma(A, T_.ops, groups_of(rec(w1_read, 0, 6, STG, STG, 172)), 2)
assert not r
A('@wv f1')
A('s_waitcnt lgkmcnt(0)'); A('s_barrier')
SB_ = 16384
F2 = groups_of(rec(w1_dma, 10, 16, SB_))
T_ = Rec(); r = sprinkle(T_, rec(p2_compute_b, LQ, ' sc1'), F2, I('gc', 64), 40, False)
r2 = after_mfma(A, T_.ops, groups_of(rec(w1_read, 6, 10, STG + 6*12288, STG, 172)), I('rb', 1))
S(A, 5)
gen_update(A, 'gen')
base = sum(r2, []) + rec(p3_addr_loads) + rec(p3_setup, LY, 2.0**-19/SCY) + rec(p3_tags) + rec(p3_xunpack)
sprinkle(A, base, r, I('gd', 64))
w2_addr(A)
A('s_waitcnt lgkmcnt(0)'); A('s_barrier')
S(A, 6)
slot = lambda j: 65536 + 16384*j
F3 = sum((groups_of(rec(w2_dma, st, slot(2+st))) for st in range(4)), [])
p3_poll(A, take(F3, I('n7', 4)))
S(A, 7)
p3_stage(A, LY)
r = sprinkle(A, rec(p3_compute, ' sc1'), F3, I('ge', 90), I('se', 60), False)
S(A, 8)
VA, VB, VC = [140, 141, 142, 143], [130, 131, 132, 133], [134, 135, 128, 129]
base = rec(w1_addr_rd, SB_) + rec(w1_read, 10, 16, SB_, SB_) + rec(g1_setup, 0) + rec(g2_setup, 0) + rec(w2_addr_rd, [(slot(2), VA), (slot(0), VB), (0, VC)])
sprinkle(A, base, r, I('gf', 64))
A('s_waitcnt lgkmcnt(0)'); A('s_barrier')
S(A, 9)
g1_dma(A)
rd0 = sum((rec(w2_read, st, VA, st*16384) for st in range(4)), [])
bg = []
for st in range(4, 11):
    gs = groups_of(rec(w2_dma, st, slot(st-4) if st < 10 else 0))
    if st == 6 and gs: gs[0] = ['@wl rd0'] + gs[0]
    bg += [(I('bgk', 3) if st < 6 else (13 if st < 10 else 27), g_) for g_ in gs]
FINE = I('fine', 0)
tail, done = g1_compute(A, rd0, bg, I('pace', 4), I('ek', 50), I('ne', 0), I('dens', 8), (lambda A, i: S(A, 10+i)) if FINE == 1 else (lambda A, i: S(A, 10) if i == 0 else None))
if FINE != 1: S(A, 11)
late = {st: rec(w2_read, st, *((VB, (st-4)*16384) if st < 6 else ((VA, (st-6)*16384) if st < 10 else (VC, 0)))) for st in range(4, 11)}
if opt.get('nowt') == '1': late = {}
g2_main(A, tail, done, late, I('ahead', 14), I('tgap', 48), (lambda A, i: S(A, {0: 1, 2: 2, 3: 3, 4: 4, 1: 12}[i])) if FINE == 2 else (lambda A, i: S(A, 12) if i == 1 and not FINE else None))
if FINE != 1: S(A, 13)
g2_finish(A)
if FINE != 1: S(A, 14)
if ST: stamp_dump(A, 0, 15)
if 'ro' in opt: readout(A, int(opt['ro'].split(',')[0]), opt['ro'].split(',')[1])
if 'fix' in opt:
    A('L_fix:')
    A('s_memrealtime s[66:67]')
    A('s_waitcnt lgkmcnt(0)')
    A('s_sub_u32 s66, s66, s64')
    A('s_cmp_lt_u32 s66, %d' % (int(opt['fix'])*100))
    A('s_cbranch_scc1 L_fix')
A('L_end:')
A('s_endpgm')
p2_poll(A, None); p3_poll(A, None); g1_slow(A); g2_slow(A)
A('L_code_end:')
st = {}
txt = A.finish(st)
print('nops', st['nops'], file=sys.stderr)
out = HEAD + '; @launch grid=(256,1,1) block=(256,1,1) lds=163840\n.amdgcn_target "amdgcn-amd-amdhsa--gfx950"\n.text\n' + txt
out += '''.section .rodata,"a"
.p2align 6
.amdhsa_kernel %s
  .amdhsa_next_free_vgpr 512
  .amdhsa_next_free_sgpr 102
  .amdhsa_accum_offset 256
  .amdhsa_group_segment_fixed_size 0
  .amdhsa_kernarg_size 72
  .amdhsa_user_sgpr_count 2
  .amdhsa_user_sgpr_kernarg_segment_ptr 1
  .amdhsa_system_sgpr_workgroup_id_x 1
.end_amdhsa_kernel
''' % NAME
open(sys.argv[1], 'w').write(out)
```

```python
from asmlib import *

XS = 16384 + 512
YS = XS // 2
GEN_OFF = 0
STAMP_OFF = 64 << 10
XW_OFF = 256 << 10
Y_OFF  = XW_OFF + 256*XS
E_OFF  = Y_OFF + 256*YS
WS_BYTES = E_OFF + 192*XS
LOG2E = 1.4426950408889634
SC = 2.0**-98
STALE = 0x60000000

sB, sW = 3, 4
SX, SWR, SWI, SW1, SW2, SOUT, SWS = 8, 12, 16, 20, 24, 28, 32
sT = 36
sMASK16 = 60

vTID, vN, vQ, vNF, vQF = 0, 1, 2, 3, 4

MF = 'v_mfma_f32_16x16x32_bf16'
def mfma(A, d, x, y, c=None):
    A('%s %s, %s, %s, %s' % (MF, R(d, 4), R(x, 4), R(y, 4), '0' if c is None else R(c, 4)))

def prologue(A, exit_label, st=False):
    A('s_cmp_ge_u32 s2, 256')
    A('s_cbranch_scc1 %s' % exit_label)
    if st: stamp(A, 0)
    for srd, off in ((SX, 0), (SWR, 8), (SWI, 16), (SW1, 32), (SW2, 40), (SOUT, 48), (SWS, 64)):
        A('s_load_dwordx2 %s, s[0:1], %d' % (s(srd, 2), off))
    A('s_and_b32 s36, s2, 7')
    A('s_lshl_b32 s36, s36, 5')
    A('s_lshr_b32 s37, s2, 3')
    A('s_or_b32 %s, s36, s37' % s(sB))
    A('v_lshrrev_b32 v5, 6, v0')
    A('v_and_b32 %s, 15, v0' % v(vN))
    A('v_readfirstlane_b32 %s, v5' % s(sW))
    A('v_bfe_u32 %s, v0, 4, 2' % v(vQ))
    for srd, nb in ((SX, 2048*1024), (SWR, 2048*514), (SWI, 2048*514), (SW1, 512*2752), (SW2, 1376*1024), (SOUT, 2048*1024), (SWS, WS_BYTES)):
        A('s_mov_b32 %s, %d' % (s(srd+2), nb))
        A('s_mov_b32 %s, 0x00020000' % s(srd+3))
    A('v_cvt_f32_u32 %s, %s' % (v(vNF), v(vN)))
    A('v_cvt_f32_u32 %s, %s' % (v(vQF), v(vQ)))
    A('s_mov_b64 %s, 0xffff' % s(sMASK16, 2))

def sincos_chain(A, ang, step, n, cdst, sdst):
    for i in range(n):
        A('v_cos_f32 %s, %s' % (v(cdst[i]), v(ang)))
        A('v_sin_f32 %s, %s' % (v(sdst[i]), v(ang)))
        if i + 1 < n:
            A('v_add_f32 %s, %s, %s' % (v(ang), v(ang), v(step)))

def cvt(A, d, lo, hi, nlo=False, nhi=False):
    f = lambda r, ng: (('-' if ng else '') + v(r)) if isinstance(r, int) else r
    A('v_cvt_pk_bf16_f32 %s, %s, %s' % (v(d), f(lo, nlo), f(hi, nhi)))

def nu_of(A, dst, k2, t0):
    A('v_lshlrev_b32 %s, 1, %s' % (v(dst), v(k2)))
    A('v_cmp_eq_u32 vcc, 0, %s' % v(k2))
    A('v_subrev_u32 %s, 15, %s' % (v(t0), v(dst)))
    A('v_cndmask_b32 %s, %s, 16, vcc' % (v(dst), v(dst)))
    A('v_cmp_gt_u32 vcc, 8, %s' % v(k2))
    A('v_cndmask_b32 %s, %s, %s, vcc' % (v(dst), v(t0), v(dst)))

def reduce2(pairs):
    ops = []
    for a_, b_ in pairs: ops.append('v_permlane32_swap_b32 %s, %s' % (v(a_), v(b_)))
    for a_, b_ in pairs: ops.append('v_add_f32 %s, %s, %s' % (v(a_), v(a_), v(b_)))
    for mod in ('quad_perm:[1,0,3,2] row_mask:0xf', 'quad_perm:[2,3,0,1] row_mask:0xf', 'row_ror:4 row_mask:0xf', 'row_ror:8 row_mask:0xf', 'row_bcast:15 row_mask:0xa'):
        for a_, b_ in pairs: ops.append('v_add_f32_dpp %s, %s, %s %s bank_mask:0xf' % (v(a_), v(a_), v(a_), mod))
    return ops

GP = 4416
TAGM = 0x60006000
sTAG = 5

def tagbits_s(A, dst, pos_s, tmp):
    A('s_xor_b32 %s, %s, %s' % (s(dst), s(sTAG), pos_s))
    A('s_and_b32 %s, %s, 12' % (s(tmp), s(dst)))
    A('s_lshl_b32 %s, %s, 27' % (s(tmp), s(tmp)))
    A('s_and_b32 %s, %s, 3' % (s(dst), s(dst)))
    A('s_lshl_b32 %s, %s, 13' % (s(dst), s(dst)))
    A('s_or_b32 %s, %s, %s' % (s(dst), s(dst), s(tmp)))
def tagconst(j):
    return ((j & 3) << 13) | ((j & 12) << 27)

def interleave(A, main, fill, ratio=1):
    fill = list(fill)
    for op in main:
        A(op)
        for _ in range(ratio):
            if fill: A(fill.pop(0))
    for op in fill: A(op)

def cmul(A, ore, oim, xr, xi, c, sn, conj):
    neg = ' neg_lo:[1,0,0] neg_hi:[1,0,0]'
    A('v_pk_mul_f32 %s, %s, %s' % (v(ore, 2), v(xr, 2), v(c, 2)))
    A('v_pk_mul_f32 %s, %s, %s' % (v(oim, 2), v(xi, 2), v(c, 2)))
    A('v_pk_fma_f32 %s, %s, %s, %s%s' % (v(ore, 2), v(xi, 2), v(sn, 2), v(ore, 2), '' if conj else neg))
    A('v_pk_fma_f32 %s, %s, %s, %s%s' % (v(oim, 2), v(xr, 2), v(sn, 2), v(oim, 2), neg if conj else ''))

SPIN = 20000
CNT = [0]
DLY = [0]
HMOD = [' sc1']
def poll_begin(A, name):
    A('s_movk_i32 s47, %d' % SPIN)
    A('L_%s:' % name)
    if CNT[0]: A('s_add_u32 s2, s2, %d' % (0x10000 if name == 'h1' else 0x1000000))
def poll_end(A, name, acc):
    A('v_cmp_ne_u32 vcc, 0, %s' % v(acc))
    A('s_sub_u32 s47, s47, 1')
    A('s_cselect_b64 vcc, 0, vcc')
    A('s_and_b64 exec, exec, vcc')
    A('s_cbranch_execnz L_%s' % name)
    A('s_mov_b64 exec, -1')

def row_base(A, dst):
    A('s_lshr_b32 %s, %s, 5' % (s(dst), s(sB)))
    A('s_lshl_b32 %s, %s, 8' % (s(dst), s(dst)))
    A('s_and_b32 s37, %s, 31' % s(sB))
    A('s_or_b32 %s, %s, s37' % (s(dst), s(dst)))
    A('s_lshl_b32 s37, %s, 6' % s(sW))
    A('s_add_u32 %s, %s, s37' % (s(dst), s(dst)))
    A('s_lshl_b32 %s, %s, 10' % (s(dst), s(dst)))

class P1:
    X = 8
    WL = 16
    CA, SA = 24, 28
    TC, TS = 32, 36
    BRE, BIM, BSR, BSI = 40, 44, 48, 52
    U = 56
    D = 72
    T = 104
    ADR = 120
    W256 = 144
    S = 24
class P2:
    C64, S64, N64 = 8, 16, 24
    D = 32
    WP = 48
    TC1, TS1 = 56, 64
    TC2, TS2 = 72, 80
    F = 88
    ADR = 120
    C32, S32, N32 = 148, 156, 164
    TG = 212
class P3:
    L = 8
    H = 16
    D = 72
    T = 104
    ADR = 120
    BRE, BIM, BSR, BSI = 172, 176, 180, 184
    TC, TS = 188, 192
    CA = 196
XK = 204
XC = 2048 + 64
WC = 4096 + 64

def p1_loads(A, ldsxs):
    P = P1
    row_base(A, 36)
    A('s_add_u32 s38, s36, %d' % (0x8000 - 1024))
    A('s_lshl_b32 s39, %s, 12' % s(sW))
    A('s_add_u32 m0, s39, %d' % ldsxs)
    A('v_and_b32 v5, 63, v0')
    A('v_lshlrev_b32 v6, 4, v5')
    A('s_waitcnt lgkmcnt(0)')
    A('buffer_load_dwordx4 v6, %s, s36 offen lds' % s(SX, 4))
    A('buffer_load_dwordx4 v6, %s, s38 offen offset:1024 lds' % s(SX, 4))
    A('@mv x')
    A('v_lshl_add_u32 %s, v5, 3, s39' % v(P.ADR))

def p1_wloads(A, ldsxs):
    P = P1
    A('s_lshr_b32 s37, %s, 6' % s(sB))
    A('s_lshl_b32 s37, s37, 4')
    A('s_and_b32 s38, %s, 15' % s(sB))
    A('s_or_b32 s37, s37, s38')
    A('s_bfe_u32 s38, %s, 0x20004' % s(sB))
    A('s_lshl_b32 s38, s38, 8')
    A('s_or_b32 s37, s37, s38')
    A('s_mul_i32 s37, s37, 514')
    A('v_bfe_u32 v6, v0, 3, 2')
    A('v_bfe_u32 v7, v0, 5, 1')
    A('v_lshl_or_b32 v6, v7, 4, v6')
    A('v_mul_u32_u24 v6, %d, v6' % (64*514))
    A('s_and_b32 s40, %s, 1' % s(sB))
    A('s_or_b32 s41, s40, %s' % s(sW))
    A('s_cbranch_scc1 L_w256')
    A('x_buffer_load_ushort %s, v6, %s, s37 offen offset:512' % (v(P.W256), s(SWR, 4)))
    A('x_buffer_load_ushort %s, v6, %s, s37 offen offset:512' % (v(P.W256+1), s(SWI, 4)))
    A('L_w256:')
    A('s_lshl_b32 s38, %s, 6' % s(sW))
    A('s_add_u32 s38, s38, s40')
    A('s_lshl_b32 s38, s38, 1')
    A('s_add_u32 s37, s37, s38')
    A('v_and_b32 v7, 7, v0')
    A('v_lshl_add_u32 v6, v7, 4, v6')
    A('s_lshl_b32 s39, %s, 12' % s(sW))
    A('s_add_u32 m0, s39, %d' % (ldsxs + 2048))
    A('buffer_load_dwordx4 v6, %s, s37 offen lds' % s(SWR, 4))
    A('s_add_u32 m0, m0, 1024')
    A('buffer_load_dwordx4 v6, %s, s37 offen lds' % s(SWI, 4))
    A('@mv w')

def consts_a(A):
    P = P1; T = P.T; SG = P.T + 8
    A('v_mul_f32 v5, %s, %s' % (v(vNF), v(vQF)))
    A('v_mul_f32 v6, %s, v5' % fhex(4/32))
    A('v_mul_f32 v7, %s, %s' % (fhex(1/32), v(vNF)))
    sincos_chain(A, 6, 7, 4, [T+i for i in range(4)], [T+4+i for i in range(4)])
    A('v_and_b32 v6, 1, %s' % v(vN))
    A('v_mul_u32_u24 v6, 0x8000, v6')
    A('v_lshl_or_b32 %s, v6, 16, v6' % v(SG))
    Q = P2
    for j in range(2):
        for t in range(2):
            cvt(A, Q.C32+4*t+j, T+2*j, T+2*j+1, False, t == 1)
            cvt(A, Q.S32+4*t+j, T+4+2*j, T+4+2*j+1, False, t == 1)
            cvt(A, Q.N32+4*t+j, T+4+2*j, T+4+2*j+1, True, t == 0)
    for j in range(2):
        for t in range(2):
            for base in (Q.C32, Q.S32, Q.N32):
                A('v_xor_b32 %s, %s, %s' % (v(base+4*t+2+j), v(SG), v(base+4*t+j)))
    A('v_mov_b32 v7, 0xbf803f80')
    A('v_cmp_eq_u32 vcc, 0, %s' % v(vN))
    for j in range(4):
        A('v_cndmask_b32 %s, %s, v7, vcc' % (v(P.SA+j), v(Q.N32+j)))
    A('v_cndmask_b32 %s, 0, -1.0, vcc' % v(P.ADR+6))
    Z = P3
    for r in range(4):
        cvt(A, Z.CA+r, T+r, T+4+r, False, True)
        cvt(A, Z.CA+4+r, T+r, T+4+r, (r & 1) == 1, (r & 1) == 0)
    A('v_and_b32 v7, 0x80000000, %s' % v(SG))
    A('v_or_b32 v7, 0x3f803f80, v7')
    for t in range(2):
        A('v_cndmask_b32 %s, %s, v7, %s' % (v(Z.CA+4*t), v(Z.CA+4*t), s(sMASK16, 2)))
    A('v_or_b32 %s, 0x3f00, v6' % v(T+9))

def consts_b(A):
    P = P1; Z = P3; T = P.T
    A('v_mul_f32 v5, %s, %s' % (v(vNF), v(vQF)))
    A('v_mul_f32 v6, %s, v5' % fhex(4/512))
    A('v_mul_f32 v7, %s, %s' % (fhex(1/512), v(vNF)))
    sincos_chain(A, 6, 7, 4, [P.TC+e for e in range(4)], [P.TS+e for e in range(4)])
    A('v_mul_f32 v6, %s, v5' % fhex(4/16))
    A('v_mul_f32 v7, %s, %s' % (fhex(1/16), v(vNF)))
    sincos_chain(A, 6, 7, 4, [T+e for e in range(4)], [T+4+e for e in range(4)])
    A('v_and_b32 v6, 8, %s' % v(vN))
    A('v_mul_u32_u24 v6, 0x1000, v6')
    A('v_lshl_or_b32 v6, v6, 16, v6')
    for e in range(4):
        cvt(A, P.BRE+e, T+e, T+4+e)
        cvt(A, P.BIM+e, T+4+e, T+e, True, False)
    A('v_lshlrev_b32 %s, 30, %s' % (v(T+10), v(vQ)))
    A('v_and_b32 %s, 0x80000000, %s' % (v(T+10), v(T+10)))
    A('v_xor_b32 %s, 0x80000000, %s' % (v(T+11), v(T+10)))
    A('v_xor_b32 %s, 0x8000, %s' % (v(T+10), v(T+10)))
    for e in range(4):
        A('v_xor_b32 %s, %s, %s' % (v(Z.BRE+e), v(T+11), v(P.BRE+e)))
        A('v_xor_b32 %s, %s, %s' % (v(Z.BIM+e), v(T+10), v(P.BIM+e)))
        A('v_xor_b32 %s, v6, %s' % (v(P.BIM+e), v(P.BIM+e)))
    nu_of(A, T+12, vN, 6)
    A('v_cvt_f32_u32 %s, %s' % (v(T+12), v(T+12)))
    A('v_mul_f32 %s, %s, %s' % (v(T+13), fhex(1/32), v(T+12)))
    A('v_mul_f32 v6, 4.0, %s' % v(T+13))
    A('v_mul_f32 v6, v6, %s' % v(vQF))
    sincos_chain(A, 6, T+13, 4, [T+e for e in range(4)], [T+4+e for e in range(4)])
    A('v_and_b32 v6, 8, %s' % v(vN))
    A('v_lshlrev_b32 v6, 1, v6')
    for e in range(4):
        cvt(A, P.BSR+e, T+e, '0')
        cvt(A, P.BSI+e, T+4+e, '0', True)
    for e in range(4):
        A('v_lshlrev_b32 %s, v6, %s' % (v(P.BSR+e), v(P.BSR+e)))
        A('v_lshlrev_b32 %s, v6, %s' % (v(P.BSI+e), v(P.BSI+e)))

def consts_c(A):
    P = P1; Z = P3; T = P.T
    A('v_mul_f32 v7, %s, %s' % (fhex(1/16), v(vNF)))
    A('v_fma_f32 v6, %s, 4.0, %s' % (v(vQF), '-4.0'))
    A('v_add_f32 v6, %s, v6' % fhex(-3.5))
    A('v_mul_f32 v6, v6, v7')
    sincos_chain(A, 6, 7, 4, [T+e for e in range(4)], [T+4+e for e in range(4)])
    A('v_cmp_gt_u32 vcc, 2, %s' % v(vQ))
    for e in range(4):
        cvt(A, T+e, T+e, T+4+e, False, True)
    for e in range(4):
        A('v_cndmask_b32 %s, 0, %s, vcc' % (v(Z.BSR+e), v(Z.BRE+e)))
        A('v_cndmask_b32 %s, %s, 0, vcc' % (v(Z.BSI+e), v(T+e)))
    A('v_cndmask_b32 %s, %s, %s, %s' % (v(Z.BSR), v(Z.BSR), v(T+9), s(sMASK16, 2)))
    for e in range(8):
        A('v_mul_f32 %s, %s, %s' % (v(Z.TC+e), fhex(2.0**-19/SC), v(P.TC+e)))

def p1_addrs(A, lds):
    P = P1
    A('v_bfe_u32 v5, v0, 2, 2')
    A('v_lshlrev_b32 v5, 7, v5')
    A('v_lshl_or_b32 v5, %s, 5, v5' % v(vQ))
    A('v_and_b32 v6, 3, v0')
    A('v_lshl_or_b32 v5, v6, 3, v5')
    A('s_lshl_b32 s39, %s, 12' % s(sW))
    A('v_add_u32 %s, s39, v5' % v(P.ADR+1))
    A('v_mul_u32_u24 v6, %d, v6' % GP)
    A('v_bfe_u32 v5, v0, 2, 4')
    A('v_lshl_add_u32 v5, v5, 4, v6')
    A('s_mul_i32 s36, %s, 272' % s(sW))
    A('v_add_u32 %s, s36, v5' % v(P.ADR+4))
    A('s_lshr_b32 s36, %s, 1' % s(sW))
    A('s_mul_i32 s36, s36, %d' % GP)
    A('s_and_b32 s37, %s, 1' % s(sW))
    A('s_lshl_b32 s37, s37, 2')
    A('s_add_u32 s36, s36, s37')
    A('s_add_u32 s36, s36, %d' % lds)
    A('v_mul_u32_u24 v5, 68, %s' % v(vQ))
    A('v_add_u32 v5, v5, %s' % v(vN))
    A('v_lshl_add_u32 %s, v5, 4, s36' % v(P.ADR+2))
    A('v_bfe_u32 v5, v0, 5, 1')
    A('v_mul_u32_u24 v5, %d, v5' % GP)
    A('v_bfe_u32 v6, v0, 3, 2')
    A('v_lshl_add_u32 %s, v6, 1, v5' % v(P.W256+2))
    A('v_mov_b32 %s, %s' % (v(P.W256+3), fhex(-1/32)))
    A('v_add_u32 v5, s40, v0')
    A('v_and_b32 v6, 31, v5')
    A('v_lshrrev_b32 v5, 5, v5')
    A('v_and_b32 v5, 7, v5')
    A('v_mad_u32_u24 v7, v6, 17, v5')
    A('v_sub_u32 %s, %d, v7' % (v(P.ADR+5), 17*32 + 15))
    A('v_cmp_gt_u32 vcc, 16, v6')
    A('v_add_u32 v5, 8, v5')
    A('v_cndmask_b32 v7, %s, v7, vcc' % v(P.ADR+5))
    A('v_cmp_eq_u32 vcc, 16, v6')
    A('v_lshlrev_b32 %s, 4, v0' % v(P.ADR+3))
    A('v_cndmask_b32 v7, v7, v5, vcc')
    A('v_lshlrev_b32 %s, 4, v7' % v(P.ADR+5))
    A('s_mul_i32 s48, %s, %d' % (s(sB), XS))
    A('s_add_u32 s48, s48, %d' % XW_OFF)
    for jj in range(1, 4):
        A('s_add_u32 %s, s48, %d' % (s(48+jj), jj*4096))

def p1_tags(A):
    tagbits_s(A, 46, s(sW), 36)
    A('s_xor_b32 s47, s46, 0x%x' % tagconst(4))
    A('s_bitcmp0_b32 %s, 0' % s(sW))
    A('s_cselect_b32 s36, 0x%x, 0' % STALE)
    A('s_or_b32 s46, s46, s36')
    A('s_or_b32 s47, s47, s36')
    A('v_mov_b32 %s, 0x%x' % (v(P1.ADR+7), TAGM))

def p1_compute(A, ldsxs, lds):
    P = P1; U = P.U; T = P.T; D = P.D; X = P.X; S = P.S
    A('@wv x')
    for rho in range(2):
        for hi in range(2):
            A('ds_read_b64_tr_b16 %s, %s offset:%d' % (v(X+4*rho+2*hi, 2), v(P.ADR), ldsxs + rho*1024 + hi*512))
    for rho in range(2):
        A('s_waitcnt lgkmcnt(%d)' % (2 - 2*rho))
        mfma(A, D+8*rho, X+4*rho, P2.C32)
        mfma(A, D+8*rho+4, X+4*rho, P.SA)
    for j in range(8):
        A('v_lshlrev_b32 %s, 16, %s' % (v(U+2*j), v(X+j)))
        A('v_and_b32 %s, 0xffff0000, %s' % (v(U+2*j+1), v(X+j)))
        if j in (4, 5): A('v_readlane_b32 %s, %s, 0' % (s(42+j-4), v(D+8*(j-4))))
    for rho in range(2):
        A('v_mul_f32 %s, %s, %s' % (v(S+2*rho), s(42+rho), v(P.ADR+6)))
        A('v_mul_f32 %s, %s, %s' % (v(S+4+2*rho), s(42+rho), v(P.W256+3)))
    for rho in range(2):
        for x in range(2):
            A('v_pk_add_f32 %s, %s, %s op_sel_hi:[1,0]' % (v(D+8*rho+2*x, 2), v(D+8*rho+2*x, 2), v(S+2*rho, 2)))
        for x in range(2):
            o = T + 8*rho + 4*x
            cmul(A, o, o+2, D+8*rho+2*x, D+8*rho+4+2*x, P.TC+2*x, P.TS+2*x, True)
        for r in range(4):
            o = T + 8*rho + 4*(r >> 1) + (r & 1)
            cvt(A, X+4*rho+r, o, o+2)
    M = Rec()
    for rho in range(2):
        mfma(M, D+16+8*rho, X+4*rho, P.BSR)
        mfma(M, D+16+8*rho+4, X+4*rho, P.BSI)
        mfma(M, D+8*rho, X+4*rho, P.BRE)
        mfma(M, D+8*rho+4, X+4*rho, P.BIM)
    V = Rec()
    for rho in range(2):
        for j in range(4):
            h = U + 8*rho + 2*j
            V('v_pk_add_f32 %s, %s, %s op_sel_hi:[1,0]' % (v(h, 2), v(h, 2), v(S+4+2*rho, 2)))
    for j in range(4):
        for rho in range(2):
            h = U + 8*rho; d = T + 4*rho
            if j == 0: V('v_pk_mul_f32 %s, %s, %s' % (v(d, 2), v(h, 2), v(h, 2)))
            else: V('v_pk_fma_f32 %s, %s, %s, %s' % (v(d, 2), v(h+2*j, 2), v(h+2*j, 2), v(d, 2)))
    for a_, b_ in ((0, 2), (4, 6), (0, 4)):
        for rho in range(2):
            h = U + 8*rho
            V('v_pk_add_f32 %s, %s, %s' % (v(h+a_, 2), v(h+a_, 2), v(h+b_, 2)))
    for rho in range(2):
        V('v_add_f32 %s, %s, %s' % (v(T+8+rho), v(T+4*rho), v(T+4*rho+1)))
        V('v_add_f32 %s, %s, %s' % (v(T+10+rho), v(U+8*rho), v(U+8*rho+1)))
    interleave(A, M.ops, V.ops, 1)
    fx = ['v_cndmask_b32 %s, %s, %s, %s' % (v(D+4*j), v(D+4*j), v(D+16+4*j), s(sMASK16, 2)) for j in range(4)]
    fx.append('v_mov_b32 %s, %s' % (v(T), fhex(1e-5/SC1**2)))
    fx.append('v_cndmask_b32 %s, %s, %s, %s' % (v(T+2), v(S+6), v(S+4), s(62, 2)))
    A('s_mov_b32 s62, -1')
    A('s_mov_b32 s63, 0')
    for i, op in enumerate(reduce2([(T+8, T+9), (T+10, T+11)])):
        A(op)
        if i & 1 and i > 2 and fx: A(fx.pop(0))
    for op in fx: A(op)
    A('v_mul_f32 %s, %s, %s' % (v(T+10), fhex(1/512), v(T+10)))
    A('v_mul_f32 %s, %s, %s' % (v(T+8), fhex(1/512), v(T+8)))
    A('v_fma_f32 %s, -%s, %s, %s' % (v(T+8), v(T+10), v(T+10), v(T+8)))
    A('v_fmac_f32 %s, %s, %s' % (v(T), fhex(1/SC1**2), v(T+8)))
    A('v_rsq_f32 %s, %s' % (v(T), v(T)))
    A('v_sub_f32 %s, %s, %s' % (v(T+10), v(T+10), v(T+2)))
    A('v_mul_f32 %s, %s, %s' % (v(T), fhex(SC/SC1), v(T)))
    A('v_readlane_b32 s42, %s, 31' % v(T+10))
    A('v_readlane_b32 s62, %s, 31' % v(T))
    A('v_readlane_b32 s63, %s, 63' % v(T))
    A('v_readlane_b32 s43, %s, 63' % v(T+10))
    for c in range(2):
        if c == 1:
            A('@wv w')
            for g in range(4):
                A('ds_read_b64_tr_b16 %s, %s offset:%d' % (v(P.WL+2*g, 2), v(P.ADR+1), ldsxs + 2048 + g*512))
        for x in range(2):
            for rho in range(2):
                d = D + 8*rho + 4*c + 2*x
                A('v_pk_mul_f32 %s, %s, s[62:63] op_sel:[0,%d] op_sel_hi:[1,%d]' % (v(d, 2), v(d, 2), rho, rho))
            for r in (2*x, 2*x+1):
                cvt(A, U+4*c+r, D+4*c+r, D+8+4*c+r)
            for r in (2*x, 2*x+1):
                A('v_bfi_b32 %s, %s, %s, %s' % (v(U+4*c+r), v(P.ADR+7), s(46+c), v(U+4*c+r)))
            for r in (2*x, 2*x+1):
                A('ds_write_b32 %s, %s offset:%d' % (v(P.ADR+2), v(U+4*c+r), r*272 + c*2*GP))
    A('s_waitcnt lgkmcnt(4)')
    for g in range(4):
        A('ds_write_b64 %s, %s offset:%d' % (v(P.ADR+5), v(P.WL+2*g, 2), lds + g*GP + 8))
    A('s_cmp_lg_u32 s41, 0\ns_cbranch_scc1 L_w256b\n' + '\n'.join('x_ds_write_b16 %s, %s offset:%d' % (v(P.W256+2), v(P.W256+c), lds + 2*c*GP + 8) for c in range(2)) + '\nL_w256b:')
    A('s_waitcnt lgkmcnt(0)')
    A('s_barrier')
    for jj in range(4):
        A('ds_read_b128 %s, %s offset:%d' % (v(D+4*jj, 4), v(P.ADR+4), lds + jj*68*16))
    for jj in range(4):
        A('s_waitcnt lgkmcnt(%d)' % (3-jj))
        A('buffer_store_dwordx4 %s, %s, %s, %s offen sc1' % (v(D+4*jj, 4), v(P.ADR+3), s(SWS, 4), s(48+jj)))
SC1 = 1.0

def p1_keep_x(A, ldsxs):
    A('v_lshlrev_b32 v5, 5, %s' % v(vN))
    A('v_lshl_or_b32 v5, %s, 3, v5' % v(vQ))
    A('s_lshl_b32 s36, %s, 12' % s(sW))
    A('v_add_u32 v5, s36, v5')
    for rho in range(2):
        for t in range(2):
            A('ds_read_b64 %s, v5 offset:%d' % (v(XK+4*rho+2*t, 2), ldsxs + rho*1024 + t*512))

def p2_addr_loads(A):
    P = P2
    A('v_lshrrev_b32 v5, 2, v0')
    A('v_and_b32 v6, 3, v0')
    A('v_mul_u32_u24 v7, %d, v5' % XS)
    A('v_lshl_add_u32 %s, v6, 4, v7' % v(P.ADR))
    A('s_lshl_b32 s52, %s, 6' % s(sB))
    A('s_add_u32 s52, s52, %d' % XW_OFF)
    for jj in range(1, 4):
        A('s_add_u32 %s, s52, %d' % (s(52+jj), jj*64*XS))

def p2_loads(A, mod=''):
    P = P2
    for jj in range(4):
        A('buffer_load_dwordx4 %s, %s, %s, %s offen%s' % (v(P.F+4*jj, 4), v(P.ADR), s(SWS, 4), s(52+jj), mod))

def p2_setup(A, ldsx, ldsw, ldsq):
    P = P2; T = P.F + 16
    A('v_bfe_u32 v5, v0, 1, 1')
    A('v_and_b32 v6, 1, v0')
    A('v_lshlrev_b32 v6, 3, v6')
    A('v_bfe_u32 v7, v0, 2, 4')
    A('v_lshl_or_b32 v7, v7, 4, v6')
    A('s_and_b32 s36, %s, 1' % s(sW))
    A('s_mul_i32 s36, s36, %d' % (2*XC))
    A('s_lshr_b32 s37, %s, 1' % s(sW))
    A('s_lshl_b32 s37, s37, 8')
    A('s_add_u32 s36, s36, s37')
    A('s_add_u32 s36, s36, %d' % ldsx)
    A('v_mul_u32_u24 %s, %d, v5' % (v(P.ADR+1), XC))
    A('v_add3_u32 %s, %s, v7, s36' % (v(P.ADR+1), v(P.ADR+1)))
    A('s_lshl_b32 s36, %s, 8' % s(sW))
    A('s_add_u32 s36, s36, %d' % ldsw)
    A('v_mul_u32_u24 %s, %d, v5' % (v(P.ADR+2), WC))
    A('v_add3_u32 %s, %s, v7, s36' % (v(P.ADR+2), v(P.ADR+2)))
    A('v_and_b32 v5, 63, v0')
    A('v_lshlrev_b32 %s, 4, v5' % v(P.ADR+3))
    A('v_lshlrev_b32 %s, 4, v0' % v(P.ADR+4))
    A('v_lshrrev_b32 v5, 1, %s' % v(vQ))
    A('v_and_b32 v6, 1, %s' % v(vQ))
    A('v_lshlrev_b32 v7, 4, %s' % v(vN))
    A('v_lshl_or_b32 v7, v5, 8, v7')
    A('v_lshl_or_b32 v7, v6, 3, v7')
    A('s_lshl_b32 s36, %s, 9' % s(sW))
    A('s_add_u32 s36, s36, %d' % ldsq)
    A('v_add_u32 %s, s36, v7' % v(P.ADR+5))
    A('v_lshlrev_b32 v7, 5, %s' % v(vN))
    A('v_lshl_or_b32 v7, v5, 10, v7')
    A('v_lshl_or_b32 %s, v6, 4, v7' % v(P.ADR+6))
    A('s_mul_i32 s56, %s, %d' % (s(sB), YS))
    A('s_lshl_b32 s36, %s, 11' % s(sW))
    A('s_add_u32 s56, s56, s36')
    A('s_add_u32 s56, s56, %d' % Y_OFF)
    SG = P.D; J = P.D + 1; W16 = P.D + 2
    A('v_and_b32 v5, 1, %s' % v(vN))
    A('v_mul_u32_u24 v5, 0x8000, v5')
    A('v_lshl_or_b32 %s, v5, 16, v5' % v(SG))
    A('s_lshl_b32 s36, %s, 4' % s(sW))
    A('v_cvt_f32_u32 %s, s36' % v(W16))
    A('v_add_f32 %s, %s, %s' % (v(J), v(W16), v(vNF)))
    A('v_mul_f32 v7, %s, %s' % (fhex(1/64), v(J)))
    A('v_mul_f32 v5, %s, %s' % (v(J), v(vQF)))
    A('v_mul_f32 v6, %s, v5' % fhex(1/8))
    sincos_chain(A, 6, 7, 8, [T+i for i in range(8)], [T+8+i for i in range(8)])
    for j in range(4):
        cvt(A, P.C64+j, T+2*j, T+2*j+1)
        cvt(A, P.S64+j, T+8+2*j, T+8+2*j+1)
        cvt(A, P.N64+j, T+8+2*j, T+8+2*j+1, True, True)
    for j in range(4):
        for base in (P.C64, P.S64, P.N64):
            A('v_xor_b32 %s, %s, %s' % (v(base+4+j), v(SG), v(base+j)))
    A('v_mul_f32 v7, %s, %s' % (fhex(1/2048), v(J)))
    A('v_mul_f32 v6, %s, v5' % fhex(4/2048))
    sincos_chain(A, 6, 7, 4, [P.TC1+r for r in range(4)], [P.TS1+r for r in range(4)])
    A('v_fmac_f32 v6, %s, v7' % fhex(13.0))
    sincos_chain(A, 6, 7, 4, [P.TC1+4+r for r in range(4)], [P.TS1+4+r for r in range(4)])
    A('v_fma_f32 v5, %s, 4.0, %s' % (v(vQF), v(W16)))
    for t in range(2):
        A('v_mul_f32 v7, %s, %s' % (fhex(1/2048), v(vNF)))
        if t:
            A('v_add_f32 v7, %s, v7' % fhex(16/2048))
        A('v_mul_f32 v6, v5, v7')
        sincos_chain(A, 6, 7, 4, [P.TC2+4*t+r for r in range(4)], [P.TS2+4*t+r for r in range(4)])

def p2_tags(A):
    P = P2
    tagbits_s(A, 36, '0', 37)
    A('v_and_b32 v5, 1, v0')
    A('v_lshlrev_b32 v5, 14, v5')
    A('v_and_b32 v6, 2, v0')
    A('v_lshl_or_b32 v5, v6, 28, v5')
    A('v_xor_b32 %s, s36, v5' % v(P.ADR+7))
    A('v_xor_b32 %s, 0x%x, %s' % (v(P.ADR+8), tagconst(1), v(P.ADR+7)))
    A('v_or_b32 %s, 0x%x, %s' % (v(P.ADR+7), STALE, v(P.ADR+7)))
    A('v_and_b32 v5, 1, %s' % v(vQ))
    A('v_lshlrev_b32 v5, 29, v5')
    A('v_xor_b32 %s, s36, v5' % v(P.TG))
    for r in range(1, 4):
        A('v_xor_b32 %s, 0x%x, %s' % (v(P.TG+r), tagconst(r), v(P.TG)))
    A('v_or_b32 %s, 0x%x, %s' % (v(P.TG), STALE, v(P.TG)))
    A('s_mov_b32 s46, 0x%x' % TAGM)

def p2_poll(A, bg=()):
    P = P2; F = P.F
    def check(first):
        for jj in range(4):
            A('@wv h1_%d' % jj if first else 's_waitcnt vmcnt(%d)' % (3-jj))
            for dw in range(2):
                A('v_xor_b32 %s, %s, %s' % (v(F+4*jj+dw), v(P.ADR+7+dw), v(F+4*jj+dw)))
            if jj == 0: A('v_or_b32 v5, %s, %s' % (v(F), v(F+1)))
            else: A('v_or3_b32 v5, v5, %s, %s' % (v(F+4*jj), v(F+4*jj+1)))
        A('v_and_b32 v5, s46, v5')
        A('v_or_b32_dpp v5, v5, v5 quad_perm:[1,0,3,2] row_mask:0xf bank_mask:0xf')
        A('v_or_b32_dpp v5, v5, v5 quad_perm:[2,3,0,1] row_mask:0xf bank_mask:0xf')
    if bg is None:
        A('L_h1slow:')
        A('s_mov_b64 exec, vcc')
        poll_begin(A, 'h1')
        R_ = Rec(); p2_loads(R_, ' sc1')
        for op in R_.ops: A('x_' + op)
        check(False)
        poll_end(A, 'h1', 5)
        A('s_branch L_h1back')
        return
    R_ = Rec(); p2_loads(R_, ' sc1')
    for jj, op in enumerate(R_.ops):
        A(op); A('@mv h1_%d' % jj)
    for g_ in bg:
        for op in g_: A(op)
    check(True)
    A('v_cmp_ne_u32 vcc, 0, v5')
    A('s_cbranch_vccnz L_h1slow')
    A('L_h1back:')

def gen_update(A, name):
    A('s_or_b32 s36, %s, %s' % (s(sB), s(sW)))
    A('s_cbranch_scc1 L_%s' % name)
    A('v_mov_b32 v5, %s' % s(sTAG))
    A('v_mov_b32 v6, 0')
    A('x_buffer_store_dword v5, v6, %s, 0 offen offset:%d' % (s(SWS, 4), GEN_OFF))
    A('L_%s:' % name)

def p2_stage(A, vm_first=3):
    P = P2
    for jj in range(4):
        if vm_first is not None:
            A('s_waitcnt vmcnt(%d)' % (vm_first - jj))
        A('ds_write_b64 %s, %s offset:%d' % (v(P.ADR+1), v(P.F+4*jj, 2), (jj >> 1)*1024 + (jj & 1)*512))
        A('ds_write_b64 %s, %s offset:%d' % (v(P.ADR+2), v(P.F+4*jj+2, 2), jj*1024))
    A('s_waitcnt lgkmcnt(0)')
    A('s_barrier')

def p2_compute_a(A, ldsx, ldsw, ldsq):
    P = P2; F = P.F; D = P.D
    fr = lambda t, c, oh: F + 16*t + 8*c + 4*oh
    for t in range(2):
        for oh in range(2):
            for c in range(2):
                A('ds_read_b128 %s, %s offset:%d' % (v(fr(t, c, oh), 4), v(P.ADR+3), ldsx + t*2*XC + c*XC + oh*1024))
                A('@ml x%d%d%d' % (t, oh, c))
    WP = P.WP
    for c in range(2):
        A('ds_read_b128 %s, %s offset:%d' % (v(WP+4*c, 4), v(P.ADR+4), ldsw + c*WC))
    A('@ml wp')
    for t in range(2):
        dre, dim = D+8*t, D+8*t+4
        for oh in range(2):
            A('@wl x%d%d0' % (t, oh))
            mfma(A, dre, fr(t, 0, oh), P.C64+4*oh, dre if oh else None)
            mfma(A, dim, fr(t, 0, oh), P.N64+4*oh, dim if oh else None)
            A('@wl x%d%d1' % (t, oh))
            mfma(A, dre, fr(t, 1, oh), P.S64+4*oh, dre)
            mfma(A, dim, fr(t, 1, oh), P.C64+4*oh, dim)
    T = F; UR, UI = F + 16, F + 20
    def twiddle_pack(cb, sb, conj):
        for t in range(2):
            for x in range(2):
                o = T + 8*t + 4*x
                cmul(A, o, o+2, D+8*t+2*x, D+8*t+4+2*x, cb+4*t+2*x, sb+4*t+2*x, conj)
            for x in range(2):
                o = T + 8*t + 4*x
                cvt(A, UR+2*t+x, o, o+1)
                cvt(A, UI+2*t+x, o+2, o+3)
    twiddle_pack(P.TC1, P.TS1, True)
    for t in range(2):
        dre, dim = D+8*t, D+8*t+4
        mfma(A, dre, P.C32+4*t, UR)
        mfma(A, dim, P.C32+4*t, UI)
        mfma(A, dre, P.S32+4*t, UI, dre)
        mfma(A, dim, P.N32+4*t, UR, dim)
    A('@wl wp')
    for c in range(2):
        for j in range(4):
            b = (P.TC1, P.TS1)[c] + 2*j
            A('v_lshlrev_b32 %s, 16, %s' % (v(b), v(WP+4*c+j)))
            A('v_and_b32 %s, 0xffff0000, %s' % (v(b+1), v(WP+4*c+j)))
    twiddle_pack(P.TC1, P.TS1, False)
    for t in range(2):
        dre, dim = D+8*t, D+8*t+4
        mfma(A, dre, UR, P.C32+4*t)
        mfma(A, dim, UI, P.C32+4*t)
        mfma(A, dre, UI, P.N32+4*t, dre)
        mfma(A, dim, UR, P.S32+4*t, dim)
    twiddle_pack(P.TC2, P.TS2, False)
    for t in range(2):
        for c in range(2):
            A('ds_write_b64 %s, %s offset:%d' % (v(P.ADR+5), v((UR, UI)[c]+2*t, 2), (2*t+c)*2048))

def p2_compute_b(A, ldsq, st_mod='', tags=True):
    P = P2; F = P.F; D = P.D
    fr = lambda t, c, oh: F + 16*t + 8*c + 4*oh
    for t in range(2):
        for oh in range(2):
            for c in range(2):
                A('ds_read_b128 %s, %s offset:%d' % (v(fr(t, c, oh), 4), v(P.ADR+3), ldsq + (2*t+c)*2048 + oh*1024))
                A('@ml q%d%d%d' % (t, oh, c))
    for t in range(2):
        dre, dim = D+8*t, D+8*t+4
        for oh in range(2):
            A('@wl q%d%d0' % (t, oh))
            mfma(A, dre, P.C64+4*oh, fr(t, 0, oh), dre if oh else None)
            mfma(A, dim, P.S64+4*oh, fr(t, 0, oh), dim if oh else None)
            A('@wl q%d%d1' % (t, oh))
            mfma(A, dre, P.N64+4*oh, fr(t, 1, oh), dre)
            mfma(A, dim, P.C64+4*oh, fr(t, 1, oh), dim)
    O = P.TC1
    for t in range(2):
        for r in range(4):
            cvt(A, O+4*t+r, D+8*t+r, D+8*t+4+r)
        if tags:
            for r in range(4):
                A('v_bfi_b32 %s, s46, %s, %s' % (v(O+4*t+r), v(P.TG+r), v(O+4*t+r)))
        A('buffer_store_dwordx4 %s, %s, %s, s56 offen offset:%d%s' % (v(O+4*t, 4), v(P.ADR+6), s(SWS, 4), t*512, st_mod))

def p3_addr_loads(A):
    P = P3
    A('v_lshrrev_b32 v5, 1, v0')
    A('v_and_b32 v6, 1, v0')
    A('v_mul_u32_u24 v7, %d, v5' % YS)
    A('v_lshl_add_u32 %s, v6, 4, v7' % v(P.ADR))
    A('v_lshlrev_b32 v5, 2, v5')
    A('v_lshl_or_b32 %s, v6, 12, v5' % v(P.ADR+1))
    A('s_lshl_b32 s52, %s, 5' % s(sB))
    A('s_add_u32 s52, s52, %d' % Y_OFF)
    A('s_add_u32 s53, s52, %d' % (128*YS))

def p3_loads(A, mod=''):
    P = P3
    for jj in range(2):
        A('buffer_load_dwordx4 %s, %s, %s, %s offen%s' % (v(P.L+4*jj, 4), v(P.ADR), s(SWS, 4), s(52+jj), mod))

def p3_tags(A):
    P = P3
    tagbits_s(A, 36, '0', 37)
    A('v_and_b32 v5, 1, v0')
    A('v_lshlrev_b32 v5, 29, v5')
    A('v_xor_b32 %s, s36, v5' % v(P.T))
    for e in range(1, 4):
        A('v_xor_b32 %s, 0x%x, %s' % (v(P.T+e), tagconst(e), v(P.T)))
    A('v_or_b32 %s, 0x%x, %s' % (v(P.T), STALE, v(P.T)))

def p3_poll(A, bg=()):
    P = P3; L = P.L
    def check(first):
        for jj in range(2):
            A('@wv h2_%d' % jj if first else 's_waitcnt vmcnt(%d)' % (1-jj))
            for e in range(4):
                A('v_xor_b32 %s, %s, %s' % (v(L+4*jj+e), v(P.T+e), v(L+4*jj+e)))
            if jj == 0: A('v_or_b32 v5, %s, %s' % (v(L), v(L+1)))
            else: A('v_or3_b32 v5, v5, %s, %s' % (v(L+4), v(L+5)))
            A('v_or3_b32 v5, v5, %s, %s' % (v(L+4*jj+2), v(L+4*jj+3)))
        A('v_and_b32 v5, s46, v5')
        A('v_or_b32_dpp v5, v5, v5 quad_perm:[1,0,3,2] row_mask:0xf bank_mask:0xf')
    if bg is None:
        A('L_h2slow:')
        A('s_mov_b64 exec, vcc')
        poll_begin(A, 'h2')
        R_ = Rec(); p3_loads(R_, ' sc1')
        for op in R_.ops: A('x_' + op)
        check(False)
        poll_end(A, 'h2', 5)
        A('s_branch L_h2back')
        return
    R_ = Rec(); p3_loads(R_, ' sc1')
    for jj, op in enumerate(R_.ops):
        A(op); A('@mv h2_%d' % jj)
    for g_ in bg:
        for op in g_: A(op)
    check(True)
    A('v_cmp_ne_u32 vcc, 0, v5')
    A('s_cbranch_vccnz L_h2slow')
    A('L_h2back:')

def p3_setup(A, ldsy):
    P = P3
    A('v_lshlrev_b32 v5, 2, %s' % v(vN))
    A('v_or_b32 v5, v5, %s' % v(vQ))
    A('s_lshl_b32 s36, %s, 11' % s(sW))
    A('s_add_u32 s36, s36, %d' % ldsy)
    A('v_lshl_add_u32 %s, v5, 4, s36' % v(P.ADR+3))
    A('s_and_b32 s36, %s, 7' % s(sB))
    A('s_lshl_b32 s36, s36, 2')
    A('s_add_u32 s36, s36, %s' % s(sW))
    A('s_lshl_b32 s37, s36, 1')
    A('s_and_b32 s37, s37, 15')
    A('v_xor_b32 v5, s37, v5')
    A('v_lshrrev_b32 v6, 5, v5')
    A('v_mul_u32_u24 v6, %d, v6' % XS)
    A('v_and_b32 v5, 31, v5')
    A('v_lshl_add_u32 %s, v5, 4, v6' % v(P.ADR+4))
    A('v_xor_b32 %s, 16, %s' % (v(P.ADR+5), v(P.ADR+4)))
    A('s_lshr_b32 s38, %s, 3' % s(sB))
    A('s_lshl_b32 s38, s38, 9')
    A('s_add_u32 s38, s38, %d' % XW_OFF)
    A('s_mul_i32 s37, s36, %d' % (4*XS))
    A('s_add_u32 s56, s37, s38')
    A('s_add_u32 s57, s56, %d' % (2*XS))
    A('s_mul_i32 s37, s36, %d' % XS)
    A('s_add_u32 s37, s37, s38')
    A('s_add_u32 s58, s37, %d' % (224*XS))
    A('v_and_b32 v5, 7, v0')
    A('v_lshlrev_b32 %s, 4, v5' % v(P.ADR+6))

def p3_xunpack(A):
    P = P3
    for j in range(8):
        A('v_lshlrev_b32 %s, 16, %s' % (v(P.H+2*j), v(XK+j)))
        A('v_and_b32 %s, 0xffff0000, %s' % (v(P.H+2*j+1), v(XK+j)))
    for j in range(8):
        A('v_pk_add_f32 %s, %s, s[42:43] op_sel:[0,%d] op_sel_hi:[1,%d] neg_lo:[0,1] neg_hi:[0,1]' % (v(P.H+2*j, 2), v(P.H+2*j, 2), j >> 2, j >> 2))

def p3_stage(A, ldsy):
    P = P3
    assert ldsy % 256 == 0
    o = ldsy // 256
    for jj in range(2):
        for e in (0, 2):
            A('ds_write2st64_b32 %s, %s, %s offset0:%d offset1:%d' % (v(P.ADR+1), v(P.L+4*jj+e), v(P.L+4*jj+e+1), o + 4*e + 2*jj, o + 4*e + 4 + 2*jj))
    A('s_waitcnt lgkmcnt(0)')
    A('s_barrier')

def p3_compute(A):
    P = P3; D = P.D; T = P.T; H = P.H
    for rho in range(2):
        A('ds_read_b128 %s, %s offset:%d' % (v(P.L+4*rho, 4), v(P.ADR+3), rho*1024))
    for rho in range(2):
        A('s_waitcnt lgkmcnt(%d)' % (1-rho))
        mfma(A, D+16+8*rho, P.L+4*rho, P.BSR)
        mfma(A, D+16+8*rho+4, P.L+4*rho, P.BSI)
        mfma(A, D+8*rho, P.L+4*rho, P.BRE)
        mfma(A, D+8*rho+4, P.L+4*rho, P.BIM)
    for rho in range(2):
        for c in range(2):
            j = 8*rho + 4*c
            A('v_cndmask_b32 %s, %s, %s, %s' % (v(D+j), v(D+j), v(D+16+j), s(sMASK16, 2)))
        for x in range(2):
            o = T + 8*rho + 4*x
            cmul(A, o, o+2, D+8*rho+2*x, D+8*rho+4+2*x, P.TC+2*x, P.TS+2*x, False)
        for r in range(4):
            o = T + 8*rho + 4*(r >> 1) + (r & 1)
            cvt(A, P.L+4*rho+r, o, o+2)
        for t in range(2):
            mfma(A, H+8*rho+4*t, P.L+4*rho, P.CA+4*t, H+8*rho+4*t)
    A('v_mov_b32 %s, %s' % (v(D+2), fhex(1e-5/LOG2E**2)))
    for rho in range(2):
        h = H + 8*rho; d = D + 4 + 4*rho
        A('v_pk_mul_f32 %s, %s, %s' % (v(d, 2), v(h, 2), v(h, 2)))
        for j in range(1, 4):
            A('v_pk_fma_f32 %s, %s, %s, %s' % (v(d, 2), v(h+2*j, 2), v(h+2*j, 2), v(d, 2)))
        A('v_add_f32 %s, %s, %s' % (v(D+rho), v(d), v(d+1)))
    for op in reduce2([(D, D+1)]): A(op)
    A('v_fmac_f32 %s, %s, %s' % (v(D+2), fhex(1/512/LOG2E**2), v(D)))
    A('v_rsq_f32 %s, %s' % (v(D), v(D+2)))
    A('v_readlane_b32 s62, %s, 31' % v(D))
    A('v_readlane_b32 s63, %s, 63' % v(D))
    A('v_mul_f32 %s, %s, %s' % (v(D+2), v(D+2), v(D)))
    for rho in range(2):
        for j in range(4):
            h = H + 8*rho + 2*j
            A('v_pk_mul_f32 %s, %s, s[62:63] op_sel:[0,%d] op_sel_hi:[1,%d]' % (v(h, 2), v(h, 2), rho, rho))
        for j in range(4):
            cvt(A, P.L+4*rho+j, H+8*rho+2*j, H+8*rho+2*j+1)
        A('buffer_store_dwordx4 %s, %s, %s, %s offen sc1' % (v(P.L+4*rho, 4), v(P.ADR+4+rho), s(SWS, 4), s(56+rho)))

def p3_stats(A):
    P = P3; D = P.D
    A('v_readlane_b32 s62, %s, 31' % v(D+2))
    A('v_readlane_b32 s63, %s, 63' % v(D+2))
    A('v_mov_b32 %s, s42' % v(D+4))
    A('v_mov_b32 %s, s43' % v(D+6))
    A('v_mov_b32 %s, s62' % v(D+5))
    A('v_mov_b32 %s, s63' % v(D+7))
    A('s_mov_b64 exec, 0xff\nbuffer_store_dwordx4 %s, %s, %s, s58 offen sc1\ns_mov_b64 exec, -1' % (v(D+4, 4), v(P.ADR+6), s(SWS, 4)))

W1O, W1A, W2O, W2A = 130, 133, 136, 140
def w1reg(ft, kap):
    i = 4*(3*kap + ft)
    return 256 + 176 + i if i < 80 else 252 - (i - 80)
def w2reg(dt, st):
    return 256 + 4*(4*st + dt)

SWZ = [0]
ROT2 = [3]
def w1_addr(A):
    vo, va = W1O, W1A
    A('v_and_b32 v5, 63, v0')
    A('s_and_b32 s36, %s, 7' % s(sB))
    A('s_mul_i32 s36, s36, 24')
    A('s_sub_u32 s36, 172, s36')
    A('v_bfrev_b32 %s, 2' % v(va))
    for u in range(3):
        A('v_add_u32 v6, %d, v5' % (64*u))
        A('v_mul_u32_u24 v7, 0xaab, v6')
        A('v_lshrrev_b32 v7, 16, v7')
        A('v_mul_u32_u24 %s, 24, v7' % v(vo+u))
        A('v_sub_u32 v6, v6, %s' % v(vo+u))
        if SWZ[0] == 0:
            A('v_and_b32 %s, 6, v7' % v(vo+u))
            A('v_xor_b32 v6, v6, %s' % v(vo+u))
        elif SWZ[0] == 2:
            A('v_and_b32 %s, 4, v7' % v(vo+u))
            A('v_sub_u32 v6, v6, %s' % v(vo+u))
            A('v_add_u32 %s, 24, v6' % v(vo+u))
            A('v_min_u32 v6, v6, %s' % v(vo+u))
            A('v_and_b32 %s, 2, v7' % v(vo+u))
            A('v_xor_b32 v6, v6, %s' % v(vo+u))
        A('v_cmp_gt_u32 vcc, s36, v6')
        A('v_mul_u32_u24 v7, 2752, v7')
        A('v_lshl_add_u32 v6, v6, 4, v7')
        A('v_subrev_u32 v6, %d, v6' % (1024*u))
        A('v_cndmask_b32 %s, %s, v6, vcc' % (v(vo+u), v(va)))
    A('s_and_b32 s6, %s, 7' % s(sB))
    A('s_mul_i32 s6, s6, 384')
    A('s_lshr_b32 s36, %s, 1' % s(sW))
    A('s_mul_i32 s36, s36, %d' % (256*2752))
    A('s_add_u32 s6, s6, s36')
    A('s_and_b32 s36, %s, 1' % s(sW))
    A('s_mul_i32 s36, s36, %d' % (8*2752))
    A('s_add_u32 s6, s6, s36')

def w1_addr_rd(A, base):
    va = W1A
    A('v_and_b32 v5, 63, v0')
    A('v_lshrrev_b32 v6, 2, v5')
    A('v_mul_u32_u24 v7, 384, v6')
    A('v_and_b32 v5, 3, v5')
    A('v_lshl_add_u32 v7, v5, 3, v7')
    A('v_add_u32 v7, %d, v7' % base)
    A('s_mul_i32 s36, %s, 3' % s(sW))
    if SWZ[0] == 0:
        A('v_bfe_u32 v6, v6, 1, 2')
        for ft in range(3):
            A('s_add_u32 s37, s36, %d' % ft)
            A('v_xor_b32 v5, s37, v6')
            A('v_lshl_add_u32 %s, v5, 5, v7' % v(va+ft))
    else:
        for ft in range(3):
            A('s_add_u32 s37, s36, %d' % ft)
            A('v_bfe_u32 v5, v6, 1, 1')
            A('v_xor_b32 v5, s37, v5')
            A('v_bfe_u32 %s, v6, 2, 1' % v(va+ft))
            A('v_lshl_add_u32 v5, %s, 1, v5' % v(va+ft))
            A('v_subrev_u32 %s, 12, v5' % v(va+ft))
            A('v_min_u32 v5, v5, %s' % v(va+ft))
            A('v_lshl_add_u32 %s, v5, 5, v7' % v(va+ft))

def w1_dma(A, k0, k1, lds):
    A('s_add_u32 s96, s6, %d' % (16*k0*2752))
    A('s_mul_i32 s97, %s, 3072' % s(sW))
    A('s_add_u32 m0, s97, %d' % lds)
    for k in range(k0, k1):
        for u in range(3):
            A('buffer_load_dwordx4 %s, %s, s96 offen offset:%d lds' % (v(W1O+u), s(SW1, 4), 1024*u))
        if k + 1 < k1:
            A('s_add_u32 s96, s96, %d' % (16*2752))
            A('s_add_u32 m0, m0, 12288')

def w1_read(A, k0, k1, lds, base, tmp=5):
    cur = base; regs = [W1A, W1A+1, W1A+2]
    for k in range(k0, k1):
        off = lds + (k - k0)*12288
        if off + 6144 - cur > 65535:
            for ft in range(3):
                A('v_add_u32 %s, %d, %s' % (v(tmp+ft), off - base, v(W1A+ft)))
            cur = off; regs = [tmp, tmp+1, tmp+2]
        for hi in range(2):
            for ft in range(3):
                A('ds_read_b64_tr_b16 %s, %s offset:%d' % (R(w1reg(ft, k) + 2*hi, 2), v(regs[ft]), off + hi*6144 - cur))

def w2_addr(A):
    vo = W2O
    A('v_and_b32 v5, 63, v0')
    A('v_lshrrev_b32 v6, 3, v5')
    A('v_and_b32 v7, 2, v6')
    A('v_xor_b32 v7, v7, v5')
    A('v_and_b32 v7, 7, v7')
    A('v_lshlrev_b32 v7, 4, v7')
    A('v_lshl_or_b32 %s, v6, 10, v7' % v(vo))
    A('v_xor_b32 v7, 64, %s' % v(vo))
    A('v_add_u32 %s, %d, v7' % (v(vo+1), 7168))
    A('v_add_u32 %s, %d, %s' % (v(vo+2), 2*7168, v(vo)))
    A('v_add_u32 %s, %d, v7' % (v(vo+3), 3*7168))
    A('s_and_b32 s7, %s, 7' % s(sB))
    A('s_lshl_b32 s7, s7, 7')
    A('s_mul_i32 s36, %s, %d' % (s(sW), 11*32*1024))
    A('s_add_u32 s7, s7, s36')

def w2_addr_rd(A, bases):
    A('v_and_b32 v5, 63, v0')
    A('v_bfe_u32 v6, v5, 2, 2')
    A('v_lshl_or_b32 v6, %s, 3, v6' % v(vQ))
    A('v_and_b32 v7, 3, v5')
    A('v_lshlrev_b32 v7, 3, v7')
    A('v_lshl_or_b32 v7, v6, 7, v7')
    A('v_bfe_u32 v6, v5, 3, 2')
    A('v_xor_b32 v6, %s, v6' % s(sW))
    A('v_lshl_or_b32 v7, v6, 5, v7')
    for lds, va in bases:
        A('s_lshl_b32 s36, %s, 12' % s(sW))
        A('s_add_u32 s36, s36, %d' % lds)
        A('v_add_u32 %s, s36, v7' % v(va[0]))
        for dt in range(1, 4):
            A('v_xor_b32 %s, %d, %s' % (v(va[dt]), 32*dt, v(va[0])))

def w2_dma(A, st, lds):
    A('s_add_u32 s96, s7, %d' % (st << 15))
    A('s_lshl_b32 s97, %s, 12' % s(sW))
    A('s_add_u32 m0, s97, %d' % lds)
    for u in range(4):
        A('buffer_load_dwordx4 %s, %s, s96 offen offset:%d lds' % (v(W2O+u), s(SW2, 4), 1024*u))

def w2_read(A, st, va, off):
    for dt in range(4):
        for hi in range(2):
            A('ds_read_b64_tr_b16 %s, %s offset:%d' % (R(w2reg(dt, st) + 2*hi, 2), v(va[dt]), off + hi*512))

def touch_weights(A, dst, srd):
    A('s_lshl_b32 s36, %s, 2' % s(sB))
    A('s_add_u32 s36, s36, %s' % s(sW))
    A('s_mul_i32 s36, s36, %d' % (11*128))
    A('v_min_u32 v5, 10, %s' % v(vN))
    A('v_lshlrev_b32 v5, 7, v5')
    A('buffer_load_dword %s, v5, %s, s36 offen' % (v(dst), s(srd, 4)))

def poison_ops(vp, va):
    A = Rec()
    for i in range(4):
        A('v_mov_b32 %s, 0x70007000' % v(vp+i))
    A('v_bfe_u32 %s, v0, 5, 1' % v(va))
    A('v_mul_u32_u24 %s, %d, %s' % (v(va), 96*XS//16, v(va)))
    A('v_and_or_b32 %s, v0, 31, %s' % (v(va), v(va)))
    A('v_lshlrev_b32 %s, 4, %s' % (v(va), v(va)))
    A('s_and_b32 s98, %s, 7' % s(sB))
    A('s_lshl_b32 s98, s98, 2')
    A('s_add_u32 s98, s98, %s' % s(sW))
    A('s_mul_i32 s98, s98, %d' % (3*XS))
    A('s_lshr_b32 s99, %s, 3' % s(sB))
    A('s_lshl_b32 s99, s99, 9')
    A('s_add_u32 s98, s98, s99')
    for i in range(3):
        A('s_add_u32 s99, s98, %d' % (E_OFF + i*XS))
        A('buffer_store_dwordx4 %s, %s, %s, s99 offen sc1' % (v(vp, 4), v(va), s(SWS, 4)))
    return A.ops

HB = [E_OFF, E_OFF + 96*XS, Y_OFF, XW_OFF + 128*XS]
class G1:
    ACC = 40
    BF = 64
    T = 96
    O = 108
    CK = 116
    ADR = 120
    AD2 = 36
class G2:
    ADR = 8
    ST = 20
    GR = 28
    CK = 72
    ACC = 256 + 176
    SO = 12

def g1_setup_dma(A):
    G = G1
    A('v_bfe_u32 v5, v0, 5, 1')
    A('v_mul_u32_u24 v5, %d, v5' % (XS//16))
    A('v_and_or_b32 v5, v0, 31, v5')
    A('v_lshlrev_b32 %s, 4, v5' % v(G.ADR+4))
    A('s_lshl_b32 s51, %s, 12' % s(sW))
    A('s_lshr_b32 s36, %s, 3' % s(sB))
    A('s_lshl_b32 s36, s36, 9')
    A('s_mul_i32 s37, %s, %d' % (s(sW), 8*XS))
    A('s_add_u32 s50, s36, s37')

def g1_setup(A):
    G = G1
    for k in range(4):
        A('v_or_b32 v5, %d, %s' % (4*k, v(vQ)))
        A('v_xor_b32 v5, v5, %s' % v(vN))
        A('v_lshlrev_b32 v5, 4, v5')
        A('v_lshl_or_b32 %s, %s, 10, v5' % (v(G.ADR+k), v(vN)))
    A('v_and_b32 v5, 63, v0')
    A('v_lshl_add_u32 %s, v5, 4, s51' % v(G.ADR+7))
    A('s_mov_b32 s46, 0x%x' % STALE)
    A('v_and_b32 v5, 1, %s' % v(vQ))
    A('v_mul_u32_u24 v6, %d, v5' % XS)
    A('v_lshl_add_u32 v6, %s, 4, v6' % v(vN))
    A('v_lshlrev_b32 v5, 30, v5')
    A('v_lshl_or_b32 v5, %s, 4, v5' % v(vN))
    A('v_add_u32 v5, %d, v5' % (2*XS))
    A('v_lshrrev_b32 v7, 1, %s' % v(vQ))
    A('v_lshl_add_u32 %s, v7, 8, v6' % v(G.ADR+5))
    A('v_lshl_add_u32 %s, v7, 8, v5' % v(G.ADR+6))
    A('v_mul_u32_u24 v7, %d, v7' % YS)
    A('v_add_u32 %s, v7, v6' % v(G.AD2))
    A('v_add_u32 %s, v7, v5' % v(G.AD2+1))
    A('s_and_b32 s38, %s, 7' % s(sB))
    A('s_lshl_b32 s39, s38, 2')
    A('s_add_u32 s39, s39, %s' % s(sW))
    A('s_mul_i32 s36, s39, %d' % (3*XS))
    A('s_lshr_b32 s37, %s, 3' % s(sB))
    A('s_lshl_b32 s37, s37, 8')
    A('s_add_u32 s36, s36, s37')
    A('s_add_u32 s58, s36, %d' % HB[2])
    A('s_add_u32 s36, s36, s37')
    for rt in (0, 1, 3):
        A('s_add_u32 %s, s36, %d' % (s(56+rt), HB[rt]))
    A('s_and_b32 s39, s39, 15')
    A('s_lshl_b32 s39, s39, 2')
    A('v_or_b32 v5, s39, %s' % v(vQ))
    A('v_xor_b32 v5, v5, %s' % v(vN))
    A('v_lshlrev_b32 v5, 4, v5')
    A('v_lshl_or_b32 v5, %s, 10, v5' % v(vN))
    A('s_lshr_b32 s38, s38, 2')
    A('s_lshl_b32 s38, s38, 3')
    A('v_or_b32 %s, s38, v5' % v(G.AD2+2))

def g1_dma_rt(A, rt, pre=''):
    G = G1
    A('s_add_u32 m0, s51, %d' % (rt*16384))
    for u in range(4):
        A('s_add_u32 s36, s50, %d' % (XW_OFF + (16*rt + u)*2*XS - 1024*u))
        A('%sbuffer_load_dwordx4 %s, %s, s36 offen offset:%d sc1 lds' % (pre, v(G.ADR+4), s(SWS, 4), 1024*u))

def g1_check_rd(A, rt, pre=''):
    G = G1
    for u in range(4):
        A('%sds_read_b32 %s, %s offset:%d' % (pre, v(G.CK+u), v(G.ADR+7), rt*16384 + u*1024))
def g1_check_cmp(A):
    G = G1
    A('v_max3_f32 %s, |%s|, |%s|, |%s|' % (v(G.CK), v(G.CK), v(G.CK+1), v(G.CK+2)))
    A('v_max_f32 %s, %s, |%s|' % (v(G.CK), v(G.CK), v(G.CK+3)))
    A('v_cmp_le_f32 vcc, s46, %s' % v(G.CK))

def g1_slow(A):
    for rt in range(4):
        A('L_gslow%d:' % rt)
        A('s_mov_b32 s38, m0')
        A('s_movk_i32 s47, %d' % SPIN)
        A('L_gspin%d:' % rt)
        if CNT[0]: A('s_add_u32 s100, s100, %d' % (1 << 8*rt))
        g1_dma_rt(A, rt, 'x_')
        A('s_waitcnt vmcnt(0)')
        g1_check_rd(A, rt, 'x_')
        A('s_waitcnt lgkmcnt(0)')
        g1_check_cmp(A)
        A('s_sub_u32 s47, s47, 1')
        A('s_cselect_b64 vcc, 0, vcc')
        A('s_cbranch_vccnz L_gspin%d' % rt)
        A('s_mov_b32 m0, s38')
        A('s_branch L_gback%d' % rt)

def silu_ops(rt):
    G = G1; ops = []
    for ft in range(3):
        acc = G.ACC + 12*(rt & 1) + 4*ft; t = G.T + 4*ft
        for r in range(4):
            ops.append('v_exp_f32 %s, -%s' % (v(t+r), v(acc+r)))
        for r in range(4):
            ops.append('v_add_f32 %s, 1.0, %s' % (v(t+r), v(t+r)))
        for r in range(4):
            ops.append('v_rcp_f32 %s, %s' % (v(t+r), v(t+r)))
        for r in range(4):
            ops.append('v_mul_f32 %s, %s, %s' % (v(t+r), v(t+r), v(acc+r)))
        for x in range(2):
            ops.append('v_cvt_pk_bf16_f32 %s, %s, %s' % (v(G.O+2*ft+x), v(t+2*x), v(t+2*x+1)))
        if ft:
            o = G.O + 4*(ft-1)
            ops.append('v_permlane16_swap_b32 %s, %s' % (v(o), v(o+2)))
            ops.append('v_permlane16_swap_b32 %s, %s' % (v(o+1), v(o+3)))
            ops.append('buffer_store_dwordx4 %s, %s, %s, %s offen sc1' % (v(o, 4), v(G.AD2+ft-1 if rt == 2 else G.ADR+4+ft), s(SWS, 4), s(56+rt)))
    return ops

def op_cost(op):
    if op.startswith('@m'): return 0
    return 8 if any(op.startswith(t) for t in TRANS) else 4

KORD = [(6 + i) % 16 for i in range(16)]
def g1_compute(A, rd0=(), bg=(), pace=6, ek=50, ne=11, dens=8, S=lambda A, i: None):
    G = G1
    DEPTH = 6
    def rd(K):
        rt, k = K >> 4, KORD[K & 15]
        A('ds_read_b128 %s, %s offset:%d' % (v(G.BF+4*(K & 7), 4), v(G.ADR+(k & 3)), rt*16384 + (k >> 2)*256))
        A('@ml b%d' % K)
    def chk1(rt):
        A('@wv g%d' % rt); g1_check_rd(A, rt); A('@ml ck')
    def chk2(rt):
        A('@wl ck'); g1_check_cmp(A)
    def chk3(rt):
        A('s_cbranch_vccnz L_gslow%d' % rt)
        A('L_gback%d:' % rt)
        A('s_barrier')
    A('@mv bgend')
    chk1(0); chk2(0); chk3(0)
    S(A, 0)
    for K in range(DEPTH): rd(K)
    fill = []; bg = list(bg); rd0 = list(rd0); budget = 0; early = []
    for K in range(64):
        rt, k = K >> 4, K & 15
        if K % 2 == 0:
            A('@wl b%d' % (K+1))
        for ft in range(3):
            acc = G.ACC + 12*(rt & 1) + 4*ft
            mfma(A, acc, w1reg(ft, KORD[k]), G.BF+4*(K & 7), acc if k else None)
            budget = min(budget, 0) + (dens if rt == 3 else 8)
            if ft == 0 and K + DEPTH < 64:
                rd(K + DEPTH); budget -= 4
            if ft == 2 and K % 2 == 1: budget -= 4
            if k == 0 and ft == 1:
                A('ds_read_b64 %s, %s offset:%d' % (v(G2.GR+2*rt, 2), v(G.AD2+2), rt*16384)); budget -= 4
            if rt < 3 and ft == 1:
                if k == 6: chk1(rt+1); budget -= 20
                if k == 8: chk2(rt+1); budget -= 16
                if k == 9: chk3(rt+1); budget -= 8
            if K >= ek and ft == 1 and len(early) < ne:
                i = len(early); early.append(i)
                assert 1 + 3*(k - 1) > i
                A(g2_load(i // 11, i % 11)); A('@mv h%d_%d' % (i // 11, i % 11)); budget -= 4
            if K == 0 and ft == 0: A('@ml rd0')
            while rd0 and budget >= 4:
                A(rd0.pop(0)); A('@ml rd0'); budget -= 4
            if bg and K >= bg[0][0] and (3*K + ft) % pace == 1:
                grp = bg.pop(0)[1]
                assert not (rd0 and grp[0] == '@wl rd0')
                for op in grp: A(op)
                A('@mv bgend')
                budget -= 8
            if k >= 1:
                left = (15 - k)*3 + (2 - ft)
                while fill and (budget >= op_cost(fill[0]) or sum(map(op_cost, fill)) > 8*left):
                    budget -= op_cost(fill[0]); A(fill.pop(0))
        if k == 15:
            for op in fill: A(op)
            fill = silu_ops(rt)
            S(A, 1 + rt)
    assert not bg
    return fill, len(early)

def hf(rt, st):
    return 252 - 4*(11*rt + st)

def g2_setup(A, ldsr):
    G = G2
    A('s_lshr_b32 s36, %s, 3' % s(sB))
    A('s_lshl_b32 s37, s36, 8')
    A('s_add_u32 s38, s37, %d' % HB[2])
    A('v_mul_u32_u24 v5, %d, %s' % (YS, v(vQ)))
    A('v_lshl_add_u32 v5, %s, 4, v5' % v(vN))
    A('v_add_u32 %s, s38, v5' % v(G.ADR+2))
    A('v_and_b32 v6, 1, %s' % v(vQ))
    A('v_mul_u32_u24 v6, %d, v6' % (YS - 256))
    A('v_sub_u32 v5, v5, v6')
    A('s_lshl_b32 s37, s36, 9')
    for rt in (0, 1, 3):
        A('s_add_u32 s38, s37, %d' % HB[rt])
        A('v_add_u32 %s, s38, v5' % v(G.ADR+rt))
    A('s_mul_i32 %s, %s, %d' % (s(G.SO), s(sW), 22*XS))
    for st in range(1, 11):
        A('s_add_u32 %s, %s, %d' % (s(G.SO+st), s(G.SO), st*2*XS))
    A('v_lshrrev_b32 v5, 1, %s' % v(vN))
    A('v_mul_u32_u24 v5, %d, v5' % XS)
    A('v_and_b32 v6, 1, %s' % v(vN))
    A('v_lshl_add_u32 %s, v6, 3, v5' % v(G.ADR+8))
    for rt in range(4):
        A('s_add_u32 %s, s37, %d' % (s(52+rt), XW_OFF + (224 + 8*rt)*XS))
    A('v_and_b32 v5, 63, v0')
    A('v_lshlrev_b32 v5, 4, v5')
    for dl in range(4):
        A('s_xor_b32 s38, %s, %d' % (s(sW), dl))
        A('s_mul_i32 s39, s38, 12288')
        A('s_add_u32 s39, s39, %d' % (ldsr + max(dl-1, 0)*4096))
        A('v_add_u32 %s, s39, v5' % v(G.ADR+4+dl))
    A('s_and_b32 s38, %s, 7' % s(sB))
    A('s_lshl_b32 s38, s38, 2')
    A('s_add_u32 s38, s38, %s' % s(sW))
    A('s_lshl_b32 s38, s38, 5')
    A('s_lshr_b32 s37, %s, 5' % s(sB))
    A('s_lshl_b32 s37, s37, 8')
    A('s_and_b32 s39, %s, 24' % s(sB))
    A('s_add_u32 s37, s37, s39')
    A('s_lshl_b32 s37, s37, 10')
    A('s_add_u32 s44, s37, s38')
    A('s_add_u32 s45, s44, 4096')
    A('v_and_b32 v5, 7, %s' % v(vN))
    A('v_lshlrev_b32 v5, 15, v5')
    A('v_lshrrev_b32 v6, 3, %s' % v(vN))
    A('v_lshl_or_b32 v5, v6, 10, v5')
    A('v_and_b32 v6, 1, %s' % v(vQ))
    A('v_lshl_or_b32 v5, v6, 11, v5')
    A('v_lshrrev_b32 v6, 1, %s' % v(vQ))
    A('v_lshl_or_b32 %s, v6, 4, v5' % v(G.ADR+9))

def g2_load(rt, st, pre=''):
    G = G2
    return '%sbuffer_load_dwordx4 %s, %s, %s, %s offen sc1' % (pre, v(hf(rt, st), 4), v(G.ADR+rt), s(SWS, 4), s(G.SO+st))

CHUNKS = [(0, 3), (3, 6), (6, 9), (9, 11)]
def g2_check_ops(rt, c):
    G = G2; a_, b_ = CHUNKS[c]
    return ['@wv h%d_%d' % (rt, b_-1),
            'v_max3_f32 %s, |%s|, |%s|, |%s|' % (v(G.CK), v(hf(rt, a_)), v(hf(rt, a_+1)), v(hf(rt, b_-1))),
            'v_cmp_le_f32 vcc, s46, %s' % v(G.CK),
            's_cbranch_vccnz L_hslow%d%d\nL_hback%d%d:' % (rt, c, rt, c)]

def g2_slow(A):
    G = G2
    for rt in range(4):
        for c in range(4):
            A('L_hslow%d%d:' % (rt, c))
            A('s_call_b64 s[48:49], L_hre%d' % rt)
            A('s_branch L_hback%d%d' % (rt, c))
        A('L_hre%d:' % rt)
        A('s_movk_i32 s47, %d' % SPIN)
        A('L_hspin%d:' % rt)
        if CNT[0]: A('s_add_u32 s101, s101, %d' % (1 << 8*rt))
        for st in range(11): A(g2_load(rt, st, 'x_'))
        A('s_waitcnt vmcnt(0)')
        A('v_max3_f32 %s, |%s|, |%s|, |%s|' % (v(G.CK), v(hf(rt, 0)), v(hf(rt, 1)), v(hf(rt, 2))))
        for st in range(3, 11, 2):
            A('v_max3_f32 %s, %s, |%s|, |%s|' % (v(G.CK), v(G.CK), v(hf(rt, st)), v(hf(rt, st+1))))
        A('v_cmp_le_f32 vcc, s46, %s' % v(G.CK))
        A('s_sub_u32 s47, s47, 1')
        A('s_cselect_b64 vcc, 0, vcc')
        A('s_cbranch_vccnz L_hspin%d' % rt)
        A('s_setpc_b64 s[48:49]')

def g2_red_writes(rt):
    G = G2
    return ['ds_write_b128 %s, %s offset:%d' % (v(G.ADR+4+dl), R(G.ACC+16*rt+4*dl, 4), rt*1024) for dl in range(1, 4)]

HS = 40
def g2_res_ops():
    G = G2; ops = ['@wv st']
    for j in range(8):
        ops.append('v_lshlrev_b32 %s, 16, %s' % (v(HS+2*j), v(G.GR+j)))
        ops.append('v_and_b32 %s, 0xffff0000, %s' % (v(HS+2*j+1), v(G.GR+j)))
    for j in range(16):
        ops.append('v_fma_f32 %s, %s, %s, %s' % (v(HS+j), v(HS+j), v(G.ST+2*(j >> 2)+1), v(G.ST+2*(j >> 2))))
    return ops

def g2_main(A, tail, done, w2late, ahead=14, tgap=48, S=lambda A, i: None):
    G = G2
    loads = [(rt, st) for rt in range(4) for st in range(11)][done:]
    late = []
    for st in sorted(w2late): late += [(st, op) for op in w2late[st]]
    def ld():
        rt, st = loads.pop(0)
        assert hf(rt, st) >= 144 or not late
        A(g2_load(rt, st)); A('@mv h%d_%d' % (rt, st))
    def lrd():
        st, op = late.pop(0); A(op); A('@ml w2_%d' % st)
    acc = 0; n = done
    for op in tail:
        A(op); acc += op_cost(op)
        if acc >= tgap and n < ahead: ld(); n += 1; acc = 0
    if DLY[0]:
        A('s_memrealtime s[62:63]'); A('s_waitcnt lgkmcnt(0)'); A('s_add_u32 s36, s62, %d' % DLY[0])
        A('L_dly:'); A('s_memrealtime s[62:63]'); A('s_waitcnt lgkmcnt(0)'); A('s_cmp_lt_u32 s62, s36'); A('s_cbranch_scc1 L_dly')
    S(A, 0)
    while n < ahead: ld(); n += 1
    A('@wv bgend')
    for _ in range(24):
        if late: lrd()
    for op in g2_check_ops(0, 0): A(op)
    S(A, 2)
    fill = []
    for rt in range(4):
        for st in range(11):
            chk = []
            for c, (a_, b_) in enumerate(CHUNKS):
                if st == b_ - 1 and (rt, c) != (3, 3): chk = g2_check_ops(rt + (c+1)//4, (c+1) % 4)
            if rt == 0 and st in w2late:
                while late and late[0][0] <= st: lrd()
                A('@wl w2_%d' % st)
            for dl in range(4):
                acc = G.ACC + 16*rt + 4*dl
                mfma(A, acc, w2reg(dl, st), hf(rt, st), acc if st else None)
                if dl == 0 and loads: ld()
                elif chk:
                    if dl == 1: A(chk[0]); A(chk[1])
                    elif dl >= 2: A(chk[dl])
                elif late:
                    for _ in range(2):
                        if late: lrd()
                elif fill and st >= 2:
                    A(fill.pop(0))
                    if fill and fill[0].startswith('@m'): A(fill.pop(0))
                    if fill and fill[0].startswith('v_'): A(fill.pop(0))
            if rt == 0 and st == 5: S(A, 3)
        if rt == 0:
            A('s_barrier')
            fill = ['buffer_load_dwordx2 %s, %s, %s, %s offen sc1' % (v(G.ST+2*r_, 2), v(G.ADR+8), s(SWS, 4), s(52+r_)) for r_ in range(4)] + ['@mv st']
            S(A, 4)
        if rt < 3: fill += g2_red_writes(rt)
        if rt == 2: fill += g2_res_ops()
        if rt == 1: S(A, 1)
    assert not loads
    for op in fill: A(op)

def g2_finish(A):
    G = G2; T = 192; S = 176
    A('s_mov_b32 s62, %s' % fhex(1/LOG2E))
    A('s_mov_b32 s63, s62')
    for rt in range(4):
        if rt == 2:
            for op in g2_red_writes(3): A(op)
        for r in range(4):
            A('v_accvgpr_read_b32 %s, %s' % (v(S+4*rt+r), R(G.ACC+16*rt+r)))
    A('s_waitcnt lgkmcnt(0)')
    A('s_barrier')
    for rt in range(4):
        for k in range(3):
            A('ds_read_b128 %s, %s offset:%d' % (v(T+12*rt+4*k, 4), v(G.ADR+4), k*4096 + rt*1024))
    O = G.ST
    for rt in range(4):
        A('s_waitcnt lgkmcnt(%d)' % (9 - 3*rt))
        t = T + 12*rt
        for x in range(2):
            A('v_pk_add_f32 %s, %s, %s' % (v(t+2*x, 2), v(t+2*x, 2), v(t+4+2*x, 2)))
            A('v_pk_add_f32 %s, %s, %s' % (v(S+4*rt+2*x, 2), v(S+4*rt+2*x, 2), v(t+8+2*x, 2)))
        for x in range(2):
            A('v_pk_add_f32 %s, %s, %s' % (v(t+2*x, 2), v(t+2*x, 2), v(S+4*rt+2*x, 2)))
        for x in range(2):
            A('v_pk_fma_f32 %s, %s, s[62:63], %s' % (v(t+2*x, 2), v(t+2*x, 2), v(HS+4*rt+2*x, 2)))
        for x in range(2):
            cvt(A, O+2*rt+x, t+2*x, t+2*x+1)
        if rt & 1:
            o = O + 4*(rt >> 1)
            A('v_permlane16_swap_b32 %s, %s' % (v(o), v(o+2)))
            A('v_permlane16_swap_b32 %s, %s' % (v(o+1), v(o+3)))
            A('buffer_store_dwordx4 %s, %s, %s, %s offen' % (v(o, 4), v(G.ADR+9), s(SOUT, 4), s(44 + (rt >> 1))))

CLK = ['s_memrealtime']
def stamp(A, idx):
    A('%s %s' % (CLK[0], s(64 + 2*idx, 2)))
def stamp_dump(A, slot, n):
    A('s_waitcnt vmcnt(0) lgkmcnt(0)')
    stamp(A, n)
    A('s_waitcnt lgkmcnt(0)')
    A('v_mov_b32 v5, 0')
    for i in range(n + 1):
        A('v_writelane_b32 v5, %s, %d' % (s(64 + 2*i), i))
    if CNT[0]:
        A('v_writelane_b32 v5, s2, 1')
        A('v_writelane_b32 v5, s100, 3')
        A('v_writelane_b32 v5, s101, 6')
    A('s_lshl_b32 s36, %s, 2' % s(sB))
    A('s_add_u32 s36, s36, %s' % s(sW))
    A('s_lshl_b32 s36, s36, 6')
    A('s_add_u32 s36, s36, %d' % (STAMP_OFF + slot*65536))
    A('v_and_b32 v6, 63, v0')
    A('v_lshlrev_b32 v6, 2, v6')
    A('s_mov_b64 exec, 0xffff')
    A('buffer_store_dword v5, v6, %s, s36 offen sc1' % s(SWS, 4))

def readout(A, pt, op, wait_us=34, add_us=40):
    A('s_mov_b64 exec, -1')
    A('s_or_b32 s36, %s, %s' % (s(sB), s(sW)))
    A('s_cbranch_scc1 L_end')
    A('L_ro1:')
    A('s_memrealtime s[62:63]')
    A('s_waitcnt lgkmcnt(0)')
    A('s_sub_u32 s62, s62, s64')
    A('s_cmp_lt_u32 s62, %d' % (wait_us*100))
    A('s_cbranch_scc1 L_ro1')
    A('v_lshlrev_b32 v6, 6, v0')
    A('s_mov_b32 s36, %d' % (STAMP_OFF + pt*4))
    for i in range(16):
        A('buffer_load_dword %s, v6, %s, s36 offen sc1' % (v(8+i), s(SWS, 4)))
        A('s_add_u32 s36, s36, 4096')
    A('s_waitcnt vmcnt(0)')
    for i in range(16):
        A('v_subrev_u32 %s, s64, %s' % (v(8+i), v(8+i)))
    for i in range(1, 16):
        A('v_%s_i32 v8, v8, %s' % (op, v(8+i)))
    for mod in ('quad_perm:[1,0,3,2]', 'quad_perm:[2,3,0,1]', 'row_ror:4', 'row_ror:8'):
        A('v_%s_i32_dpp v8, v8, v8 %s row_mask:0xf bank_mask:0xf' % (op, mod))
    for st in (16, 32):
        A('v_mov_b32 v9, v8')
        A('v_permlane%d_swap_b32 v8, v9' % st)
        A('v_%s_i32 v8, v8, v9' % op)
    A('v_readfirstlane_b32 s36, v8')
    A('s_add_u32 s36, s36, %d' % (add_us*100))
    A('s_min_u32 s36, s36, 20000')
    A('L_ro2:')
    A('s_memrealtime s[62:63]')
    A('s_waitcnt lgkmcnt(0)')
    A('s_sub_u32 s62, s62, s64')
    A('s_cmp_lt_u32 s62, s36')
    A('s_cbranch_scc1 L_ro2')
```

```python
import sys
from phases import *
NAME = 'sequential_preLN__spectral_gfnet__dense_activation_silu__prompt_kernel'
HEAD = open('head.txt').read().split('; Override')[0]
ST = 'stamp' in sys.argv
if 'cyc' in sys.argv: CLK[0] = 's_memtime'
opt = dict(a.split('=') for a in sys.argv if '=' in a)
def S(A, i):
    if ST: stamp(A, i)

if opt.get('nowt') == '1':
    w1_dma = w1_read = w2_dma = w2_read = lambda *a: None
STG = 36864
A = Asm()
A('.globl %s\n.p2align 8\n.type %s,@function\n%s:' % (NAME, NAME, NAME))
prologue(A, 'L_end', ST or 'fix' in opt)
if opt.get('pf', '1') == '1':
    A('s_bfe_u32 s36, s2, 0x20003')
    A('s_cmp_lg_u32 s36, %s' % s(sW))
    A('s_cbranch_scc1 L_nopf')
    A('s_getpc_b64 s[40:41]')
    A('L_pc:')
    A('s_mov_b32 s42, L_code_end-L_pc')
    A('s_mov_b32 s43, 0x20000')
    A('v_lshlrev_b32 v5, 7, v0')
    A('x_buffer_load_dword v129, v5, s[40:43], 0 offen')
    A('L_nopf:')
def rec(f, *a, **k):
    r = Rec(); f(r, *a, **k); return r.ops
I = lambda k, d: int(opt.get(k, d))
SWZ[0] = I('swz', 0)
CNT[0] = I('cnt', 0)
if CNT[0]: A('s_mov_b64 s[100:101], 0')
DLY[0] = I('dly', 0)
def take(lst, n):
    r = lst[:n]; del lst[:n]; return r
p1_loads(A, 0)
A('s_load_dword %s, %s, %d' % (s(sTAG), s(SWS, 2), GEN_OFF))
WP_ = I('wpos', 0)
if WP_ == 0: p1_wloads(A, 0)
consts_a(A)
if WP_ == 1: p1_wloads(A, 0)
consts_b(A)
if WP_ == 2: p1_wloads(A, 0)
T1, T2 = I('t1', 0), I('t2', 0)
def touches(pos):
    if T1 == pos: touch_weights(A, 129, SW1)
    if T2 == pos: touch_weights(A, 129, SW2)
touches(0)
PO = groups_of(poison_ops(216, 220))
F1 = groups_of(rec(w1_dma, 0, 10, STG) + ['@mv f1'])
p1_addrs(A, 16384)
w1_addr(A)
n = [int(c, 36) for c in opt.get('n', '0996')]
assert n[0] + n[1] + n[2] >= 18
sprinkle(A, rec(consts_c), take(F1, n[0]), 24)
A('s_waitcnt lgkmcnt(0)')
A('s_add_u32 %s, %s, 0x9e3779b1' % (s(sTAG), s(sTAG)))
p1_tags(A)
touches(1)
S(A, 1)
r = sprinkle(A, rec(p1_compute, 0, 16384), take(F1, n[1]), I('ga', 100), I('sa', 100), False)
S(A, 2)
touches(2)
LX, LW, LQ, LY = 16384, 24832, 0, 8192
base = rec(p1_keep_x, 0) + rec(p2_addr_loads) + rec(p2_setup, LX, LW, LQ) + rec(p2_tags)
sprinkle(A, base, r + take(F1, n[2]), I('gb', 64))
A('s_barrier')
S(A, 3)
p2_poll(A, take(F1, n[3]) + [rec(w1_addr_rd, STG), PO[0][:-1]])
PO[0] = PO[0][-1:]
S(A, 4)
p2_stage(A, None)
touches(3)
T_ = Rec(); sprinkle(T_, rec(p2_compute_a, LX, LW, LQ), F1 + PO, I('g2a', 100), I('s2a', 100))
r = after_mfma(A, T_.ops, groups_of(rec(w1_read, 0, 6, STG, STG, 144)), 2)
assert not r
A('@wv f1')
A('s_waitcnt lgkmcnt(0)'); A('s_barrier')
SB_ = 16384
F2 = groups_of(rec(w1_dma, 10, 16, SB_))
T_ = Rec(); r = sprinkle(T_, rec(p2_compute_b, LQ, ' sc1'), take(F2, I('nc', 3)), I('gc', 64), 40, False) + F2
r2 = after_mfma(A, T_.ops, groups_of(rec(w1_read, 6, 10, STG + 6*12288, STG, 144)), I('rb', 1))
S(A, 5)
gen_update(A, 'gen')
base = sum(r2, []) + rec(p3_addr_loads) + rec(p3_tags) + rec(w2_addr) + rec(p3_setup, LY) + rec(p3_xunpack)
sprinkle(A, base, r, I('gd', 40))
A('s_waitcnt lgkmcnt(0)'); A('s_barrier')
S(A, 6)
slot = lambda j: 65536 + 16384*j
F3 = sum((groups_of(rec(w2_dma, st, slot(2+st))) for st in range(4)), [])
p3_poll(A, take(F3, I('n7', 4)) + [rec(w1_addr_rd, SB_)])
S(A, 7)
p3_stage(A, LY)
r = sprinkle(A, rec(p3_compute), F3, I('ge', 90), I('se', 60), False)
S(A, 8)
VA, VB, VC = [140, 141, 142, 143], [130, 131, 132, 133], [134, 135, 128, 129]
base = rec(p3_stats) + rec(w1_read, 10, 16, SB_, SB_) + rec(g1_setup_dma) + rec(g1_setup)
sprinkle(A, base, r, I('gf', 64))
A('s_waitcnt lgkmcnt(0)'); A('s_barrier')
S(A, 9)
for rt in range(4):
    g1_dma_rt(A, rt); A('@mv g%d' % rt)
    if rt == I('sp', 1): g2_setup(A, 0); w2_addr_rd(A, [(slot(2), VA), (slot(0), VB), (0, VC)])
rd0 = sum((rec(w2_read, st, VA, st*16384) for st in range(4)), [])
bg = []
for st in range(4, 11):
    gs = groups_of(rec(w2_dma, st, slot(st-4) if st < 10 else 0))
    if st == 6 and gs: gs[0] = ['@wl rd0'] + gs[0]
    bg += [(I('bgk', 3) if st < 6 else (13 if st < 10 else 27), g_) for g_ in gs]
FINE = I('fine', 0)
tail, done = g1_compute(A, rd0, bg, I('pace', 6), I('ek', 50), I('ne', 0), I('dens', 8), (lambda A, i: S(A, 10+i)) if FINE == 1 else (lambda A, i: S(A, 10) if i == 0 else None))
if FINE != 1: S(A, 11)
late = {st: rec(w2_read, st, *((VB, (st-4)*16384) if st < 6 else ((VA, (st-6)*16384) if st < 10 else (VC, 0)))) for st in range(4, 11)}
if opt.get('nowt') == '1': late = {}
g2_main(A, tail, done, late, I('ahead', 14), I('tgap', 24), (lambda A, i: S(A, {0: 1, 2: 2, 3: 3, 4: 4, 1: 12}[i])) if FINE == 2 else (lambda A, i: S(A, 12) if i == 1 and not FINE else None))
if FINE != 1: S(A, 13)
g2_finish(A)
if FINE != 1: S(A, 14)
if ST: stamp_dump(A, 0, 15)
if 'ro' in opt: readout(A, int(opt['ro'].split(',')[0]), opt['ro'].split(',')[1])
if 'fix' in opt:
    A('L_fix:')
    A('s_memrealtime s[66:67]')
    A('s_waitcnt lgkmcnt(0)')
    A('s_sub_u32 s66, s66, s64')
    A('s_cmp_lt_u32 s66, %d' % (int(opt['fix'])*100))
    A('s_cbranch_scc1 L_fix')
A('L_end:')
A('s_endpgm')
p2_poll(A, None); p3_poll(A, None); g1_slow(A); g2_slow(A)
A('L_code_end:')
st = {}
txt = A.finish(st)
print('nops', st['nops'], file=sys.stderr)
out = HEAD + '; @launch grid=(256,1,1) block=(256,1,1) lds=163840\n.amdgcn_target "amdgcn-amd-amdhsa--gfx950"\n.text\n' + txt
out += '''.section .rodata,"a"
.p2align 6
.amdhsa_kernel %s
  .amdhsa_next_free_vgpr 512
  .amdhsa_next_free_sgpr 102
  .amdhsa_accum_offset 256
  .amdhsa_group_segment_fixed_size 0
  .amdhsa_kernarg_size 72
  .amdhsa_user_sgpr_count 2
  .amdhsa_user_sgpr_kernarg_segment_ptr 1
  .amdhsa_system_sgpr_workgroup_id_x 1
.end_amdhsa_kernel
''' % NAME
open(sys.argv[1], 'w').write(out)
```

```python
from asmlib import *

XS = 16384 + 512
YS = XS // 2
GEN_OFF = 0
STAMP_OFF = 64 << 10
XW_OFF = 256 << 10
Y_OFF  = XW_OFF + 256*XS
E_OFF  = Y_OFF + 256*YS
WS_BYTES = E_OFF + 192*XS
LOG2E = 1.4426950408889634
SC = 2.0**-98
STALE = 0x60000000

sB, sW = 3, 4
SX, SWR, SWI, SW1, SW2, SOUT, SWS = 8, 12, 16, 20, 24, 28, 32
sT = 36
sMASK16 = 60

vTID, vN, vQ, vNF, vQF = 0, 1, 2, 3, 4

MF = 'v_mfma_f32_16x16x32_bf16'
def mfma(A, d, x, y, c=None):
    A('%s %s, %s, %s, %s' % (MF, R(d, 4), R(x, 4), R(y, 4), '0' if c is None else R(c, 4)))

def prologue(A, exit_label, st=False):
    A('s_cmp_ge_u32 s2, 256')
    A('s_cbranch_scc1 %s' % exit_label)
    if st: stamp(A, 0)
    for srd, off in ((SX, 0), (SWR, 8), (SWI, 16), (SW1, 32), (SW2, 40), (SOUT, 48), (SWS, 64)):
        A('s_load_dwordx2 %s, s[0:1], %d' % (s(srd, 2), off))
    A('s_and_b32 s36, s2, 7')
    A('s_lshl_b32 s36, s36, 5')
    A('s_lshr_b32 s37, s2, 3')
    A('s_or_b32 %s, s36, s37' % s(sB))
    A('v_lshrrev_b32 v5, 6, v0')
    A('v_and_b32 %s, 15, v0' % v(vN))
    A('v_readfirstlane_b32 %s, v5' % s(sW))
    A('v_bfe_u32 %s, v0, 4, 2' % v(vQ))
    for srd, nb in ((SX, 2048*1024), (SWR, 2048*514), (SWI, 2048*514), (SW1, 512*2752), (SW2, 1376*1024), (SOUT, 2048*1024), (SWS, WS_BYTES)):
        A('s_mov_b32 %s, %d' % (s(srd+2), nb))
        A('s_mov_b32 %s, 0x00020000' % s(srd+3))
    A('v_cvt_f32_u32 %s, %s' % (v(vNF), v(vN)))
    A('v_cvt_f32_u32 %s, %s' % (v(vQF), v(vQ)))
    A('s_mov_b64 %s, 0xffff' % s(sMASK16, 2))

def sincos_chain(A, ang, step, n, cdst, sdst):
    for i in range(n):
        A('v_cos_f32 %s, %s' % (v(cdst[i]), v(ang)))
        A('v_sin_f32 %s, %s' % (v(sdst[i]), v(ang)))
        if i + 1 < n:
            A('v_add_f32 %s, %s, %s' % (v(ang), v(ang), v(step)))

def cvt(A, d, lo, hi, nlo=False, nhi=False):
    f = lambda r, ng: (('-' if ng else '') + v(r)) if isinstance(r, int) else r
    A('v_cvt_pk_bf16_f32 %s, %s, %s' % (v(d), f(lo, nlo), f(hi, nhi)))

def nu_of(A, dst, k2, t0):
    A('v_lshlrev_b32 %s, 1, %s' % (v(dst), v(k2)))
    A('v_cmp_eq_u32 vcc, 0, %s' % v(k2))
    A('v_subrev_u32 %s, 15, %s' % (v(t0), v(dst)))
    A('v_cndmask_b32 %s, %s, 16, vcc' % (v(dst), v(dst)))
    A('v_cmp_gt_u32 vcc, 8, %s' % v(k2))
    A('v_cndmask_b32 %s, %s, %s, vcc' % (v(dst), v(t0), v(dst)))

def reduce2(pairs):
    ops = []
    for a_, b_ in pairs: ops.append('v_permlane32_swap_b32 %s, %s' % (v(a_), v(b_)))
    for a_, b_ in pairs: ops.append('v_add_f32 %s, %s, %s' % (v(a_), v(a_), v(b_)))
    for mod in ('quad_perm:[1,0,3,2] row_mask:0xf', 'quad_perm:[2,3,0,1] row_mask:0xf', 'row_ror:4 row_mask:0xf', 'row_ror:8 row_mask:0xf', 'row_bcast:15 row_mask:0xa'):
        for a_, b_ in pairs: ops.append('v_add_f32_dpp %s, %s, %s %s bank_mask:0xf' % (v(a_), v(a_), v(a_), mod))
    return ops

GP = 4416
TAGM = 0x60006000
sTAG = 5

def tagbits_s(A, dst, pos_s, tmp):
    A('s_xor_b32 %s, %s, %s' % (s(dst), s(sTAG), pos_s))
    A('s_and_b32 %s, %s, 12' % (s(tmp), s(dst)))
    A('s_lshl_b32 %s, %s, 27' % (s(tmp), s(tmp)))
    A('s_and_b32 %s, %s, 3' % (s(dst), s(dst)))
    A('s_lshl_b32 %s, %s, 13' % (s(dst), s(dst)))
    A('s_or_b32 %s, %s, %s' % (s(dst), s(dst), s(tmp)))
def tagconst(j):
    return ((j & 3) << 13) | ((j & 12) << 27)

def interleave(A, main, fill, ratio=1):
    fill = list(fill)
    for op in main:
        A(op)
        for _ in range(ratio):
            if fill: A(fill.pop(0))
    for op in fill: A(op)

def cmul(A, ore, oim, xr, xi, c, sn, conj):
    neg = ' neg_lo:[1,0,0] neg_hi:[1,0,0]'
    A('v_pk_mul_f32 %s, %s, %s' % (v(ore, 2), v(xr, 2), v(c, 2)))
    A('v_pk_mul_f32 %s, %s, %s' % (v(oim, 2), v(xi, 2), v(c, 2)))
    A('v_pk_fma_f32 %s, %s, %s, %s%s' % (v(ore, 2), v(xi, 2), v(sn, 2), v(ore, 2), '' if conj else neg))
    A('v_pk_fma_f32 %s, %s, %s, %s%s' % (v(oim, 2), v(xr, 2), v(sn, 2), v(oim, 2), neg if conj else ''))

SPIN = 20000
CNT = [0]
FAKE3 = [0]
DLY = [0]
HMOD = [' sc1']
def poll_begin(A, name):
    A('s_movk_i32 s47, %d' % SPIN)
    A('L_%s:' % name)
    if CNT[0]: A('s_add_u32 s2, s2, %d' % (0x10000 if name == 'h1' else 0x1000000))
def poll_end(A, name, acc):
    A('v_cmp_ne_u32 vcc, 0, %s' % v(acc))
    A('s_sub_u32 s47, s47, 1')
    A('s_cselect_b64 vcc, 0, vcc')
    A('s_and_b64 exec, exec, vcc')
    A('s_cbranch_execnz L_%s' % name)
    A('s_mov_b64 exec, -1')

def row_base(A, dst):
    A('s_lshr_b32 %s, %s, 5' % (s(dst), s(sB)))
    A('s_lshl_b32 %s, %s, 8' % (s(dst), s(dst)))
    A('s_and_b32 s37, %s, 31' % s(sB))
    A('s_or_b32 %s, %s, s37' % (s(dst), s(dst)))
    A('s_lshl_b32 s37, %s, 6' % s(sW))
    A('s_add_u32 %s, %s, s37' % (s(dst), s(dst)))
    A('s_lshl_b32 %s, %s, 10' % (s(dst), s(dst)))

class P1:
    X = 8
    WL = 16
    CA, SA = 24, 28
    TC, TS = 32, 36
    BRE, BIM, BSR, BSI = 40, 44, 48, 52
    U = 56
    D = 72
    T = 104
    ADR = 120
    W256 = 144
    S = 24
class P2:
    C64, S64, N64 = 8, 16, 24
    D = 32
    WP = 48
    TC1, TS1 = 56, 64
    TC2, TS2 = 72, 80
    F = 88
    ADR = 120
    C32, S32, N32 = 148, 156, 164
    TG = 212
class P3:
    L = 40
    H = 48
    D = 72
    T = 104
    ADR = 120
    BRE, BIM, BSR, BSI = 172, 176, 180, 184
    TC, TS = 188, 192
    CA = 196
XK = 204
XC = 2048 + 64
WC = 4096 + 64

def fast_prologue(A, exit_label, ldsxs, st=False, pf=6, pre=0, S9=lambda A: None):
    P = P1
    assert ldsxs == 0
    R_ = Rec()
    R_('s_lshl_b32 s36, s36, 5')
    R_('s_or_b32 %s, s36, s37' % s(sB))
    R_('s_lshr_b32 %s, %s, 6' % (s(sW), s(sW)))
    R_('v_lshl_add_u32 %s, v5, 3, m0' % v(P.ADR))
    R_('v_and_b32 %s, 15, v0' % v(vN))
    R_('v_bfe_u32 %s, v0, 4, 2' % v(vQ))
    for srd, nb in ((SWR, 2048*514), (SW1, 512*2752), (SWS, WS_BYTES)):
        R_('s_mov_b32 %s, %d' % (s(srd+2), nb))
    for srd, src in ((SWI, SWR), (SW2, SW1), (SOUT, SX)):
        R_('s_mov_b32 %s, %s' % (s(srd+2), s(src+2)))
    for srd in (SWR, SWI, SW1, SW2, SOUT, SWS):
        R_('s_mov_b32 %s, s43' % s(srd+3))
    R_('v_cvt_f32_u32 %s, %s' % (v(vNF), v(vN)))
    R_('v_cvt_f32_u32 %s, %s' % (v(vQF), v(vQ)))
    R_('s_mov_b64 %s, 0xffff' % s(sMASK16, 2))
    early, late = (R_.ops, []) if pre else ([], R_.ops)
    A('s_load_dwordx16 s[44:59], s[0:1], 0')
    A('s_load_dwordx2 %s, s[0:1], 64' % s(SWS, 2))
    A('s_cmpk_ge_u32 s2, 256')
    A('s_cbranch_scc1 %s' % exit_label)
    if st: stamp(A, 0)
    A('v_readfirstlane_b32 %s, v0' % s(sW))
    A('s_lshr_b32 s37, s2, 3')
    A('s_mov_b32 s43, 0x20000')
    if pf:
        A('s_getpc_b64 s[40:41]')
        A('L_pc:')
        A('s_movk_i32 s42, CODE_BYTES')
        A('s_lshl_b32 s38, s37, 7')
        A('v_min_u32 v7, %d, v0' % (pf-1))
        A('v_lshlrev_b32 v7, 12, v7')
        A('buffer_load_dword v222, v7, s[40:43], s38 offen')
    A('v_and_b32 v5, 63, v0')
    A('s_and_b32 s36, s2, 7')
    A('s_lshl_b32 s38, s36, 8')
    A('s_add_u32 s38, s38, s37')
    A('s_add_u32 s38, s38, %s' % s(sW))
    A('s_lshl_b32 s38, s38, 10')
    A('s_lshl_b32 m0, %s, 6' % s(sW))
    A('v_lshlrev_b32 v6, 4, v5')
    A('s_lshl_b32 %s, s43, 4' % s(SX+2))
    A('s_mov_b32 %s, s43' % s(SX+3))
    for op in early: A(op)
    A('s_waitcnt lgkmcnt(0)')
    A('s_mov_b64 %s, s[44:45]' % s(SX, 2))
    A('buffer_load_dwordx4 v6, %s, s38 offen lds' % s(SX, 4))
    A('s_addk_i32 s38, %d' % (0x8000 - 1024))
    A('buffer_load_dwordx4 v6, %s, s38 offen offset:1024 lds' % s(SX, 4))
    A('@mv x')
    S9(A)
    for op in late: A(op)
    A('s_load_dword %s, %s, %d' % (s(sTAG), s(SWS, 2), GEN_OFF))
    for srd, off in ((SWR, 8), (SWI, 16), (SW1, 32), (SW2, 40), (SOUT, 48)):
        A('s_mov_b64 %s, %s' % (s(srd, 2), s(44 + off//4, 2)))

def p1_wloads(A, ldsxs):
    P = P1
    A('s_lshr_b32 s37, %s, 6' % s(sB))
    A('s_lshl_b32 s37, s37, 4')
    A('s_and_b32 s38, %s, 15' % s(sB))
    A('s_or_b32 s37, s37, s38')
    A('s_bfe_u32 s38, %s, 0x20004' % s(sB))
    A('s_lshl_b32 s38, s38, 8')
    A('s_or_b32 s37, s37, s38')
    A('s_mul_i32 s37, s37, 514')
    A('v_bfe_u32 v6, v0, 3, 2')
    A('v_bfe_u32 v7, v0, 5, 1')
    A('v_lshl_or_b32 v6, v7, 4, v6')
    A('v_mul_u32_u24 v6, %d, v6' % (64*514))
    A('s_and_b32 s40, %s, 1' % s(sB))
    A('s_or_b32 s41, s40, %s' % s(sW))
    A('s_cbranch_scc1 L_w256')
    A('x_buffer_load_ushort %s, v6, %s, s37 offen offset:512' % (v(P.W256), s(SWR, 4)))
    A('x_buffer_load_ushort %s, v6, %s, s37 offen offset:512' % (v(P.W256+1), s(SWI, 4)))
    A('L_w256:')
    A('s_lshl_b32 s38, %s, 6' % s(sW))
    A('s_add_u32 s38, s38, s40')
    A('s_lshl_b32 s38, s38, 1')
    A('s_add_u32 s37, s37, s38')
    A('v_and_b32 v7, 7, v0')
    A('v_lshl_add_u32 v6, v7, 4, v6')
    A('s_lshl_b32 s39, %s, 12' % s(sW))
    A('s_add_u32 m0, s39, %d' % (ldsxs + 2048))
    A('buffer_load_dwordx4 v6, %s, s37 offen lds' % s(SWR, 4))
    A('s_add_u32 m0, m0, 1024')
    A('buffer_load_dwordx4 v6, %s, s37 offen lds' % s(SWI, 4))
    A('@mv w')

def consts_a(A):
    P = P1; T = P.T; SG = P.T + 8
    A('v_mul_f32 v5, %s, %s' % (v(vNF), v(vQF)))
    A('v_mul_f32 v6, %s, v5' % fhex(4/32))
    A('v_mul_f32 v7, %s, %s' % (fhex(1/32), v(vNF)))
    sincos_chain(A, 6, 7, 4, [T+i for i in range(4)], [T+4+i for i in range(4)])
    A('v_and_b32 v6, 1, %s' % v(vN))
    A('v_mul_u32_u24 v6, 0x8000, v6')
    A('v_lshl_or_b32 %s, v6, 16, v6' % v(SG))
    Q = P2
    for j in range(2):
        for t in range(2):
            cvt(A, Q.C32+4*t+j, T+2*j, T+2*j+1, False, t == 1)
            cvt(A, Q.S32+4*t+j, T+4+2*j, T+4+2*j+1, False, t == 1)
            cvt(A, Q.N32+4*t+j, T+4+2*j, T+4+2*j+1, True, t == 0)
    for j in range(2):
        for t in range(2):
            for base in (Q.C32, Q.S32, Q.N32):
                A('v_xor_b32 %s, %s, %s' % (v(base+4*t+2+j), v(SG), v(base+4*t+j)))
    A('v_mov_b32 v7, 0xbf803f80')
    A('v_cmp_eq_u32 vcc, 0, %s' % v(vN))
    for j in range(4):
        A('v_cndmask_b32 %s, %s, v7, vcc' % (v(P.SA+j), v(Q.N32+j)))
    A('v_cndmask_b32 %s, 0, -1.0, vcc' % v(P.ADR+6))
    Z = P3
    for r in range(4):
        cvt(A, Z.CA+r, T+r, T+4+r, False, True)
        cvt(A, Z.CA+4+r, T+r, T+4+r, (r & 1) == 1, (r & 1) == 0)
    A('v_and_b32 v7, 0x80000000, %s' % v(SG))
    A('v_or_b32 v7, 0x3f803f80, v7')
    for t in range(2):
        A('v_cndmask_b32 %s, %s, v7, %s' % (v(Z.CA+4*t), v(Z.CA+4*t), s(sMASK16, 2)))
    A('v_or_b32 %s, 0x3f00, v6' % v(Z.BSI+3))

def consts_b(A):
    P = P1; Z = P3; T = P.T
    A('v_mul_f32 v5, %s, %s' % (v(vNF), v(vQF)))
    A('v_mul_f32 v6, %s, v5' % fhex(4/512))
    A('v_mul_f32 v7, %s, %s' % (fhex(1/512), v(vNF)))
    sincos_chain(A, 6, 7, 4, [P.TC+e for e in range(4)], [P.TS+e for e in range(4)])
    A('v_mul_f32 v6, %s, v5' % fhex(4/16))
    A('v_mul_f32 v7, %s, %s' % (fhex(1/16), v(vNF)))
    sincos_chain(A, 6, 7, 4, [T+e for e in range(4)], [T+4+e for e in range(4)])
    A('v_and_b32 v6, 8, %s' % v(vN))
    A('v_mul_u32_u24 v6, 0x1000, v6')
    A('v_lshl_or_b32 v6, v6, 16, v6')
    for e in range(4):
        cvt(A, P.BRE+e, T+e, T+4+e)
        cvt(A, P.BIM+e, T+4+e, T+e, True, False)
    A('v_lshlrev_b32 %s, 30, %s' % (v(T+10), v(vQ)))
    A('v_and_b32 %s, 0x80000000, %s' % (v(T+10), v(T+10)))
    A('v_xor_b32 %s, 0x80000000, %s' % (v(T+11), v(T+10)))
    A('v_xor_b32 %s, 0x8000, %s' % (v(T+10), v(T+10)))
    for e in range(4):
        A('v_xor_b32 %s, %s, %s' % (v(Z.BRE+e), v(T+11), v(P.BRE+e)))
        A('v_xor_b32 %s, %s, %s' % (v(Z.BIM+e), v(T+10), v(P.BIM+e)))
        A('v_xor_b32 %s, v6, %s' % (v(P.BIM+e), v(P.BIM+e)))
    nu_of(A, T+12, vN, 6)
    A('v_cvt_f32_u32 %s, %s' % (v(T+12), v(T+12)))
    A('v_mul_f32 %s, %s, %s' % (v(T+13), fhex(1/32), v(T+12)))
    A('v_mul_f32 v6, 4.0, %s' % v(T+13))
    A('v_mul_f32 v6, v6, %s' % v(vQF))
    sincos_chain(A, 6, T+13, 4, [T+e for e in range(4)], [T+4+e for e in range(4)])
    A('v_and_b32 v6, 8, %s' % v(vN))
    A('v_lshlrev_b32 v6, 1, v6')
    for e in range(4):
        cvt(A, P.BSR+e, T+e, '0')
        cvt(A, P.BSI+e, T+4+e, '0', True)
    for e in range(4):
        A('v_lshlrev_b32 %s, v6, %s' % (v(P.BSR+e), v(P.BSR+e)))
        A('v_lshlrev_b32 %s, v6, %s' % (v(P.BSI+e), v(P.BSI+e)))

def consts_c(A):
    P = P1; Z = P3; T = P.T
    A('v_mul_f32 v7, %s, %s' % (fhex(1/16), v(vNF)))
    A('v_fma_f32 v6, %s, 4.0, %s' % (v(vQF), '-4.0'))
    A('v_add_f32 v6, %s, v6' % fhex(-3.5))
    A('v_mul_f32 v6, v6, v7')
    sincos_chain(A, 6, 7, 4, [T+e for e in range(4)], [T+4+e for e in range(4)])
    A('v_cmp_gt_u32 vcc, 2, %s' % v(vQ))
    for e in range(4):
        cvt(A, T+e, T+e, T+4+e, False, True)
    for e in range(4):
        A('v_cndmask_b32 %s, 0, %s, vcc' % (v(Z.BSR+e), v(Z.BRE+e)))
        if e == 2: A('v_cndmask_b32 %s, %s, %s, %s' % (v(Z.BSR), v(Z.BSR), v(Z.BSI+3), s(sMASK16, 2)))
        A('v_cndmask_b32 %s, %s, 0, vcc' % (v(Z.BSI+e), v(T+e)))
    for e in range(8):
        A('v_mul_f32 %s, %s, %s' % (v(Z.TC+e), fhex(2.0**-19/SC), v(P.TC+e)))

def p1_addrs(A, lds):
    P = P1
    A('v_bfe_u32 v5, v0, 2, 2')
    A('v_lshlrev_b32 v5, 7, v5')
    A('v_lshl_or_b32 v5, %s, 5, v5' % v(vQ))
    A('v_and_b32 v6, 3, v0')
    A('v_lshl_or_b32 v5, v6, 3, v5')
    A('s_lshl_b32 s39, %s, 12' % s(sW))
    A('v_add_u32 %s, s39, v5' % v(P.ADR+1))
    A('v_mul_u32_u24 v6, %d, v6' % GP)
    A('v_bfe_u32 v5, v0, 2, 4')
    A('v_lshl_add_u32 v5, v5, 4, v6')
    A('s_mul_i32 s36, %s, 272' % s(sW))
    A('v_add_u32 %s, s36, v5' % v(P.ADR+4))
    A('s_lshr_b32 s36, %s, 1' % s(sW))
    A('s_mul_i32 s36, s36, %d' % GP)
    A('s_and_b32 s37, %s, 1' % s(sW))
    A('s_lshl_b32 s37, s37, 2')
    A('s_add_u32 s36, s36, s37')
    A('s_add_u32 s36, s36, %d' % lds)
    A('v_mul_u32_u24 v5, 68, %s' % v(vQ))
    A('v_add_u32 v5, v5, %s' % v(vN))
    A('v_lshl_add_u32 %s, v5, 4, s36' % v(P.ADR+2))
    A('v_bfe_u32 v5, v0, 5, 1')
    A('v_mul_u32_u24 v5, %d, v5' % GP)
    A('v_bfe_u32 v6, v0, 3, 2')
    A('v_lshl_add_u32 %s, v6, 1, v5' % v(P.W256+2))
    A('v_mov_b32 %s, %s' % (v(P.W256+3), fhex(-1/32)))
    A('v_add_u32 v5, s40, v0')
    A('v_and_b32 v6, 31, v5')
    A('v_lshrrev_b32 v5, 5, v5')
    A('v_and_b32 v5, 7, v5')
    A('v_mad_u32_u24 v7, v6, 17, v5')
    A('v_sub_u32 %s, %d, v7' % (v(P.ADR+5), 17*32 + 15))
    A('v_cmp_gt_u32 vcc, 16, v6')
    A('v_add_u32 v5, 8, v5')
    A('v_cndmask_b32 v7, %s, v7, vcc' % v(P.ADR+5))
    A('v_cmp_eq_u32 vcc, 16, v6')
    A('v_lshlrev_b32 %s, 4, v0' % v(P.ADR+3))
    A('v_cndmask_b32 v7, v7, v5, vcc')
    A('v_lshlrev_b32 %s, 4, v7' % v(P.ADR+5))
    A('s_mul_i32 s48, %s, %d' % (s(sB), XS))
    A('s_add_u32 s48, s48, %d' % XW_OFF)
    for jj in range(1, 4):
        A('s_add_u32 %s, s48, %d' % (s(48+jj), jj*4096))

def p1_tags(A):
    tagbits_s(A, 46, s(sW), 36)
    A('s_xor_b32 s47, s46, 0x%x' % tagconst(4))
    A('s_bitcmp0_b32 %s, 0' % s(sW))
    A('s_cselect_b32 s36, 0x%x, 0' % STALE)
    A('s_or_b32 s46, s46, s36')
    A('s_or_b32 s47, s47, s36')
    A('v_mov_b32 %s, 0x%x' % (v(P1.ADR+7), TAGM))

def p1_compute(A, ldsxs, lds, S_=lambda A, i: None):
    P = P1; U = P.U; T = P.T; D = P.D; X = P.X; S = P.S
    A('@wv x')
    S_(A, 0)
    for rho in range(2):
        for hi in range(2):
            A('ds_read_b64_tr_b16 %s, %s offset:%d' % (v(X+4*rho+2*hi, 2), v(P.ADR), ldsxs + rho*1024 + hi*512))
    for rho in range(2):
        A('s_waitcnt lgkmcnt(%d)' % (2 - 2*rho))
        mfma(A, D+8*rho, X+4*rho, P2.C32)
        mfma(A, D+8*rho+4, X+4*rho, P.SA)
    for j in range(8):
        A('v_lshlrev_b32 %s, 16, %s' % (v(U+2*j), v(X+j)))
        A('v_and_b32 %s, 0xffff0000, %s' % (v(U+2*j+1), v(X+j)))
        if j in (4, 5): A('v_readlane_b32 %s, %s, 0' % (s(42+j-4), v(D+8*(j-4))))
    for rho in range(2):
        A('v_mul_f32 %s, %s, %s' % (v(S+2*rho), s(42+rho), v(P.ADR+6)))
        A('v_mul_f32 %s, %s, %s' % (v(S+4+2*rho), s(42+rho), v(P.W256+3)))
    for rho in range(2):
        for x in range(2):
            A('v_pk_add_f32 %s, %s, %s op_sel_hi:[1,0]' % (v(D+8*rho+2*x, 2), v(D+8*rho+2*x, 2), v(S+2*rho, 2)))
        for x in range(2):
            o = T + 8*rho + 4*x
            cmul(A, o, o+2, D+8*rho+2*x, D+8*rho+4+2*x, P.TC+2*x, P.TS+2*x, True)
        for r in range(4):
            o = T + 8*rho + 4*(r >> 1) + (r & 1)
            cvt(A, X+4*rho+r, o, o+2)
    M = Rec()
    for rho in range(2):
        mfma(M, D+16+8*rho, X+4*rho, P.BSR)
        mfma(M, D+16+8*rho+4, X+4*rho, P.BSI)
        mfma(M, D+8*rho, X+4*rho, P.BRE)
        mfma(M, D+8*rho+4, X+4*rho, P.BIM)
    V = Rec()
    for rho in range(2):
        for j in range(8):
            h = U + 8*rho + j
            V('v_add_f32 %s, %s, %s' % (v(h), v(h), v(S+4+2*rho)))
    for j in range(4):
        for rho in range(2):
            h = U + 8*rho; d = T + 4*rho
            if j == 0: V('v_pk_mul_f32 %s, %s, %s' % (v(d, 2), v(h, 2), v(h, 2)))
            else: V('v_pk_fma_f32 %s, %s, %s, %s' % (v(d, 2), v(h+2*j, 2), v(h+2*j, 2), v(d, 2)))
    for a_, b_ in ((0, 2), (4, 6), (0, 4)):
        for rho in range(2):
            h = U + 8*rho
            V('v_pk_add_f32 %s, %s, %s' % (v(h+a_, 2), v(h+a_, 2), v(h+b_, 2)))
    for rho in range(2):
        V('v_add_f32 %s, %s, %s' % (v(T+8+rho), v(T+4*rho), v(T+4*rho+1)))
        V('v_add_f32 %s, %s, %s' % (v(T+10+rho), v(U+8*rho), v(U+8*rho+1)))
    interleave(A, M.ops, V.ops, 2)
    fx = ['v_cndmask_b32 %s, %s, %s, %s' % (v(D+4*j), v(D+4*j), v(D+16+4*j), s(sMASK16, 2)) for j in range(4)]
    fx.append('v_mov_b32 %s, %s' % (v(T), fhex(1e-5/SC1**2)))
    fx.append('v_cndmask_b32 %s, %s, %s, %s' % (v(T+2), v(S+6), v(S+4), s(62, 2)))
    A('s_mov_b32 s62, -1')
    A('s_mov_b32 s63, 0')
    for i, op in enumerate(reduce2([(T+8, T+9), (T+10, T+11)])):
        A(op)
        if i & 1 and i > 2 and fx: A(fx.pop(0))
    for op in fx: A(op)
    A('v_mul_f32 %s, %s, %s' % (v(T+10), fhex(1/512), v(T+10)))
    A('v_mul_f32 %s, %s, %s' % (v(T+8), fhex(1/512), v(T+8)))
    A('v_fma_f32 %s, -%s, %s, %s' % (v(T+8), v(T+10), v(T+10), v(T+8)))
    A('v_fmac_f32 %s, %s, %s' % (v(T), fhex(1/SC1**2), v(T+8)))
    A('v_rsq_f32 %s, %s' % (v(T), v(T)))
    A('v_sub_f32 %s, %s, %s' % (v(T+10), v(T+10), v(T+2)))
    A('v_mul_f32 %s, %s, %s' % (v(T), fhex(SC/SC1), v(T)))
    A('v_readlane_b32 s42, %s, 31' % v(T+10))
    A('v_readlane_b32 s62, %s, 31' % v(T))
    A('v_readlane_b32 s63, %s, 63' % v(T))
    A('v_readlane_b32 s43, %s, 63' % v(T+10))
    for c in range(2):
        if c == 1:
            S_(A, 1)
            A('@wv w')
            S_(A, 2)
            for g in range(4):
                A('ds_read_b64_tr_b16 %s, %s offset:%d' % (v(P.WL+2*g, 2), v(P.ADR+1), ldsxs + 2048 + g*512))
        for x in range(2):
            for rho in range(2):
                d = D + 8*rho + 4*c + 2*x
                A('v_pk_mul_f32 %s, %s, s[62:63] op_sel:[0,%d] op_sel_hi:[1,%d]' % (v(d, 2), v(d, 2), rho, rho))
            for r in (2*x, 2*x+1):
                cvt(A, U+4*c+r, D+4*c+r, D+8+4*c+r)
            for r in (2*x, 2*x+1):
                A('v_bfi_b32 %s, %s, %s, %s' % (v(U+4*c+r), v(P.ADR+7), s(46+c), v(U+4*c+r)))
            for r in (2*x, 2*x+1):
                A('ds_write_b32 %s, %s offset:%d' % (v(P.ADR+2), v(U+4*c+r), r*272 + c*2*GP))
    A('s_waitcnt lgkmcnt(4)')
    for g in range(4):
        A('ds_write_b64 %s, %s offset:%d' % (v(P.ADR+5), v(P.WL+2*g, 2), lds + g*GP + 8))
    A('s_cmp_lg_u32 s41, 0\ns_cbranch_scc1 L_w256b\n' + '\n'.join('x_ds_write_b16 %s, %s offset:%d' % (v(P.W256+2), v(P.W256+c), lds + 2*c*GP + 8) for c in range(2)) + '\nL_w256b:')
    S_(A, 3)
    A('s_waitcnt lgkmcnt(0)')
    A('s_barrier')
    S_(A, 4)
    for jj in range(4):
        A('ds_read_b128 %s, %s offset:%d' % (v(D+4*jj, 4), v(P.ADR+4), lds + jj*68*16))
    for jj in range(4):
        A('s_waitcnt lgkmcnt(%d)' % (3-jj))
        A('buffer_store_dwordx4 %s, %s, %s, %s offen sc1' % (v(D+4*jj, 4), v(P.ADR+3), s(SWS, 4), s(48+jj)))
SC1 = 1.0

def p1_keep_x(A, ldsxs):
    A('v_lshlrev_b32 v5, 5, %s' % v(vN))
    A('v_lshl_or_b32 v5, %s, 3, v5' % v(vQ))
    A('s_lshl_b32 s36, %s, 12' % s(sW))
    A('v_add_u32 v5, s36, v5')
    for rho in range(2):
        for t in range(2):
            A('ds_read_b64 %s, v5 offset:%d' % (v(XK+4*rho+2*t, 2), ldsxs + rho*1024 + t*512))

def p2_addr_loads(A):
    P = P2
    A('v_lshrrev_b32 v5, 2, v0')
    A('v_and_b32 v6, 3, v0')
    A('v_mul_u32_u24 v7, %d, v5' % XS)
    A('v_lshl_add_u32 %s, v6, 4, v7' % v(P.ADR))
    A('s_lshl_b32 s52, %s, 6' % s(sB))
    A('s_add_u32 s52, s52, %d' % XW_OFF)
    for jj in range(1, 4):
        A('s_add_u32 %s, s52, %d' % (s(52+jj), jj*64*XS))

def p2_loads(A, mod=''):
    P = P2
    for jj in range(4):
        A('buffer_load_dwordx4 %s, %s, %s, %s offen%s' % (v(P.F+4*jj, 4), v(P.ADR), s(SWS, 4), s(52+jj), mod))

def p2_setup(A, ldsx, ldsw, ldsq):
    P = P2; T = P.F + 16
    A('v_bfe_u32 v5, v0, 1, 1')
    A('v_and_b32 v6, 1, v0')
    A('v_lshlrev_b32 v6, 3, v6')
    A('v_bfe_u32 v7, v0, 2, 4')
    A('v_lshl_or_b32 v7, v7, 4, v6')
    A('s_and_b32 s36, %s, 1' % s(sW))
    A('s_mul_i32 s36, s36, %d' % (2*XC))
    A('s_lshr_b32 s37, %s, 1' % s(sW))
    A('s_lshl_b32 s37, s37, 8')
    A('s_add_u32 s36, s36, s37')
    A('s_add_u32 s36, s36, %d' % ldsx)
    A('v_mul_u32_u24 %s, %d, v5' % (v(P.ADR+1), XC))
    A('v_add3_u32 %s, %s, v7, s36' % (v(P.ADR+1), v(P.ADR+1)))
    A('s_lshl_b32 s36, %s, 8' % s(sW))
    A('s_add_u32 s36, s36, %d' % ldsw)
    A('v_mul_u32_u24 %s, %d, v5' % (v(P.ADR+2), WC))
    A('v_add3_u32 %s, %s, v7, s36' % (v(P.ADR+2), v(P.ADR+2)))
    A('v_and_b32 v5, 63, v0')
    A('v_lshlrev_b32 %s, 4, v5' % v(P.ADR+3))
    A('v_lshlrev_b32 %s, 4, v0' % v(P.ADR+4))
    A('v_lshrrev_b32 v5, 1, %s' % v(vQ))
    A('v_and_b32 v6, 1, %s' % v(vQ))
    A('v_lshlrev_b32 v7, 4, %s' % v(vN))
    A('v_lshl_or_b32 v7, v5, 8, v7')
    A('v_lshl_or_b32 v7, v6, 3, v7')
    A('s_lshl_b32 s36, %s, 9' % s(sW))
    A('s_add_u32 s36, s36, %d' % ldsq)
    A('v_add_u32 %s, s36, v7' % v(P.ADR+5))
    A('v_lshlrev_b32 v7, 5, %s' % v(vN))
    A('v_lshl_or_b32 v7, v5, 10, v7')
    A('v_lshl_or_b32 %s, v6, 4, v7' % v(P.ADR+6))
    A('s_mul_i32 s56, %s, %d' % (s(sB), YS))
    A('s_lshl_b32 s36, %s, 11' % s(sW))
    A('s_add_u32 s56, s56, s36')
    A('s_add_u32 s56, s56, %d' % Y_OFF)
    SG = P.D; J = P.D + 1; W16 = P.D + 2
    A('v_and_b32 v5, 1, %s' % v(vN))
    A('v_mul_u32_u24 v5, 0x8000, v5')
    A('v_lshl_or_b32 %s, v5, 16, v5' % v(SG))
    A('s_lshl_b32 s36, %s, 4' % s(sW))
    A('v_cvt_f32_u32 %s, s36' % v(W16))
    A('v_add_f32 %s, %s, %s' % (v(J), v(W16), v(vNF)))
    A('v_mul_f32 v7, %s, %s' % (fhex(1/64), v(J)))
    A('v_mul_f32 v5, %s, %s' % (v(J), v(vQF)))
    A('v_mul_f32 v6, %s, v5' % fhex(1/8))
    sincos_chain(A, 6, 7, 8, [T+i for i in range(8)], [T+8+i for i in range(8)])
    for j in range(4):
        cvt(A, P.C64+j, T+2*j, T+2*j+1)
        cvt(A, P.S64+j, T+8+2*j, T+8+2*j+1)
        cvt(A, P.N64+j, T+8+2*j, T+8+2*j+1, True, True)
    for j in range(4):
        for base in (P.C64, P.S64, P.N64):
            A('v_xor_b32 %s, %s, %s' % (v(base+4+j), v(SG), v(base+j)))
    A('v_mul_f32 v7, %s, %s' % (fhex(1/2048), v(J)))
    A('v_mul_f32 v6, %s, v5' % fhex(4/2048))
    sincos_chain(A, 6, 7, 4, [P.TC1+r for r in range(4)], [P.TS1+r for r in range(4)])
    A('v_fmac_f32 v6, %s, v7' % fhex(13.0))
    sincos_chain(A, 6, 7, 4, [P.TC1+4+r for r in range(4)], [P.TS1+4+r for r in range(4)])
    A('v_fma_f32 v5, %s, 4.0, %s' % (v(vQF), v(W16)))
    for t in range(2):
        A('v_mul_f32 v7, %s, %s' % (fhex(1/2048), v(vNF)))
        if t:
            A('v_add_f32 v7, %s, v7' % fhex(16/2048))
        A('v_mul_f32 v6, v5, v7')
        sincos_chain(A, 6, 7, 4, [P.TC2+4*t+r for r in range(4)], [P.TS2+4*t+r for r in range(4)])

def p2_tags(A):
    P = P2
    tagbits_s(A, 36, '0', 37)
    A('v_and_b32 v5, 1, v0')
    A('v_lshlrev_b32 v5, 14, v5')
    A('v_and_b32 v6, 2, v0')
    A('v_lshl_or_b32 v5, v6, 28, v5')
    A('v_xor_b32 %s, s36, v5' % v(P.ADR+7))
    A('v_xor_b32 %s, 0x%x, %s' % (v(P.ADR+8), tagconst(1), v(P.ADR+7)))
    A('v_or_b32 %s, 0x%x, %s' % (v(P.ADR+7), STALE, v(P.ADR+7)))
    A('v_and_b32 v5, 1, %s' % v(vQ))
    A('v_lshlrev_b32 v5, 29, v5')
    A('v_xor_b32 %s, s36, v5' % v(P.TG))
    for r in range(1, 4):
        A('v_xor_b32 %s, 0x%x, %s' % (v(P.TG+r), tagconst(r), v(P.TG)))
    A('v_or_b32 %s, 0x%x, %s' % (v(P.TG), STALE, v(P.TG)))
    A('s_mov_b32 s46, 0x%x' % TAGM)

def p2_poll(A, bg=()):
    P = P2; F = P.F
    def check(first):
        for jj in range(4):
            A('@wv h1_%d' % jj if first else 's_waitcnt vmcnt(%d)' % (3-jj))
            for dw in range(2):
                A('v_xor_b32 %s, %s, %s' % (v(F+4*jj+dw), v(P.ADR+7+dw), v(F+4*jj+dw)))
            if jj == 0: A('v_or_b32 v5, %s, %s' % (v(F), v(F+1)))
            else: A('v_or3_b32 v5, v5, %s, %s' % (v(F+4*jj), v(F+4*jj+1)))
        A('v_and_b32 v5, s46, v5')
        A('v_or_b32_dpp v5, v5, v5 quad_perm:[1,0,3,2] row_mask:0xf bank_mask:0xf')
        A('v_or_b32_dpp v5, v5, v5 quad_perm:[2,3,0,1] row_mask:0xf bank_mask:0xf')
    if bg is None:
        A('L_h1slow:')
        A('s_mov_b64 exec, vcc')
        poll_begin(A, 'h1')
        R_ = Rec(); p2_loads(R_, ' sc1')
        for op in R_.ops: A('x_' + op)
        check(False)
        poll_end(A, 'h1', 5)
        A('s_branch L_h1back')
        return
    R_ = Rec(); p2_loads(R_, ' sc1')
    for jj, op in enumerate(R_.ops):
        A(op); A('@mv h1_%d' % jj)
    for g_ in bg:
        for op in g_: A(op)
    check(True)
    A('v_cmp_ne_u32 vcc, 0, v5')
    A('s_cbranch_vccnz L_h1slow')
    A('L_h1back:')

def gen_update(A, name):
    A('s_or_b32 s36, %s, %s' % (s(sB), s(sW)))
    A('s_cbranch_scc1 L_%s' % name)
    A('v_mov_b32 v5, %s' % s(sTAG))
    A('v_mov_b32 v6, 0')
    A('x_buffer_store_dword v5, v6, %s, 0 offen offset:%d' % (s(SWS, 4), GEN_OFF))
    A('L_%s:' % name)

def p2_stage(A, vm_first=3):
    P = P2
    for jj in range(4):
        if vm_first is not None:
            A('s_waitcnt vmcnt(%d)' % (vm_first - jj))
        A('ds_write_b64 %s, %s offset:%d' % (v(P.ADR+1), v(P.F+4*jj, 2), (jj >> 1)*1024 + (jj & 1)*512))
        A('ds_write_b64 %s, %s offset:%d' % (v(P.ADR+2), v(P.F+4*jj+2, 2), jj*1024))
    A('s_waitcnt lgkmcnt(0)')
    A('s_barrier')

def p2_compute_a(A, ldsx, ldsw, ldsq):
    P = P2; F = P.F; D = P.D
    fr = lambda t, c, oh: F + 16*t + 8*c + 4*oh
    for t in range(2):
        for oh in range(2):
            for c in range(2):
                A('ds_read_b128 %s, %s offset:%d' % (v(fr(t, c, oh), 4), v(P.ADR+3), ldsx + t*2*XC + c*XC + oh*1024))
                A('@ml x%d%d%d' % (t, oh, c))
    WP = P.WP
    for c in range(2):
        A('ds_read_b128 %s, %s offset:%d' % (v(WP+4*c, 4), v(P.ADR+4), ldsw + c*WC))
    A('@ml wp')
    for t in range(2):
        dre, dim = D+8*t, D+8*t+4
        for oh in range(2):
            A('@wl x%d%d0' % (t, oh))
            mfma(A, dre, fr(t, 0, oh), P.C64+4*oh, dre if oh else None)
            mfma(A, dim, fr(t, 0, oh), P.N64+4*oh, dim if oh else None)
            A('@wl x%d%d1' % (t, oh))
            mfma(A, dre, fr(t, 1, oh), P.S64+4*oh, dre)
            mfma(A, dim, fr(t, 1, oh), P.C64+4*oh, dim)
    A('@nop split')
    T = F; UR, UI = F + 16, F + 20
    def twiddle_pack(cb, sb, conj):
        for t in range(2):
            for x in range(2):
                o = T + 8*t + 4*x
                cmul(A, o, o+2, D+8*t+2*x, D+8*t+4+2*x, cb+4*t+2*x, sb+4*t+2*x, conj)
            for x in range(2):
                o = T + 8*t + 4*x
                cvt(A, UR+2*t+x, o, o+1)
                cvt(A, UI+2*t+x, o+2, o+3)
    twiddle_pack(P.TC1, P.TS1, True)
    A('@wl wp')
    M = Rec(); V = Rec()
    for t in range(2):
        dre, dim = D+8*t, D+8*t+4
        mfma(M, dre, P.C32+4*t, UR)
        mfma(M, dim, P.C32+4*t, UI)
        mfma(M, dre, P.S32+4*t, UI, dre)
        mfma(M, dim, P.N32+4*t, UR, dim)
    for j in range(4):
        for c in range(2):
            b = (P.TC1, P.TS1)[c] + 2*j
            V('v_lshlrev_b32 %s, 16, %s' % (v(b), v(WP+4*c+j)))
            V('v_and_b32 %s, 0xffff0000, %s' % (v(b+1), v(WP+4*c+j)))
    interleave(A, [' ' + m for m in M.ops], V.ops, 2)
    twiddle_pack(P.TC1, P.TS1, False)
    for t in range(2):
        dre, dim = D+8*t, D+8*t+4
        mfma(A, dre, UR, P.C32+4*t)
        mfma(A, dim, UI, P.C32+4*t)
        mfma(A, dre, UI, P.N32+4*t, dre)
        mfma(A, dim, UR, P.S32+4*t, dim)
    twiddle_pack(P.TC2, P.TS2, False)
    for t in range(2):
        for c in range(2):
            A('ds_write_b64 %s, %s offset:%d' % (v(P.ADR+5), v((UR, UI)[c]+2*t, 2), (2*t+c)*2048))

def p2_compute_b(A, ldsq, st_mod='', tags=True):
    P = P2; F = P.F; D = P.D
    fr = lambda t, c, oh: F + 16*t + 8*c + 4*oh
    for t in range(2):
        for oh in range(2):
            for c in range(2):
                A('ds_read_b128 %s, %s offset:%d' % (v(fr(t, c, oh), 4), v(P.ADR+3), ldsq + (2*t+c)*2048 + oh*1024))
                A('@ml q%d%d%d' % (t, oh, c))
    for t in range(2):
        dre, dim = D+8*t, D+8*t+4
        for oh in range(2):
            M = Rec()
            M('@wl q%d%d0' % (t, oh))
            mfma(M, dre, P.C64+4*oh, fr(t, 0, oh), dre if oh else None)
            mfma(M, dim, P.S64+4*oh, fr(t, 0, oh), dim if oh else None)
            M('@wl q%d%d1' % (t, oh))
            mfma(M, dre, P.N64+4*oh, fr(t, 1, oh), dre)
            mfma(M, dim, P.C64+4*oh, fr(t, 1, oh), dim)
            if (t, oh) != (1, 1):
                for op in M.ops: A(op)
    O = P.TC1
    out = []
    for t in range(2):
        V = Rec()
        for r in range(4):
            cvt(V, O+4*t+r, D+8*t+r, D+8*t+4+r)
        for r in range(4):
            V('v_bfi_b32 %s, s46, %s, %s' % (v(O+4*t+r), v(P.TG+r), v(O+4*t+r)))
        V('buffer_store_dwordx4 %s, %s, %s, s56 offen offset:%d%s' % (v(O+4*t, 4), v(P.ADR+6), s(SWS, 4), t*512, st_mod))
        out.append(V.ops)
    for op in M.ops:
        if op.startswith('@'): A(op)
        else:
            A(' ' + op); A(out[0].pop(0)); A(out[0].pop(0))
    for op in out[0] + out[1]: A(op)

def p3_addr_loads(A):
    P = P3
    A('v_lshrrev_b32 v5, 1, v0')
    A('v_and_b32 v6, 1, v0')
    A('v_mul_u32_u24 v7, %d, v5' % YS)
    A('v_lshl_add_u32 %s, v6, 4, v7' % v(P.ADR))
    A('v_lshlrev_b32 v5, 2, v5')
    A('v_lshl_or_b32 %s, v6, 12, v5' % v(P.ADR+1))
    A('s_lshl_b32 s52, %s, 5' % s(sB))
    A('s_add_u32 s52, s52, %d' % Y_OFF)
    A('s_add_u32 s53, s52, %d' % (128*YS))

def p3_loads(A, mod=''):
    P = P3
    for jj in range(2):
        A('buffer_load_dwordx4 %s, %s, %s, %s offen%s' % (v(P.L+4*jj, 4), v(P.ADR), s(SWS, 4), s(52+jj), mod))

def p3_tags(A):
    P = P3
    tagbits_s(A, 36, '0', 37)
    A('v_and_b32 v5, 1, v0')
    A('v_lshlrev_b32 v5, 29, v5')
    A('v_xor_b32 %s, s36, v5' % v(P.T))
    for e in range(1, 4):
        A('v_xor_b32 %s, 0x%x, %s' % (v(P.T+e), tagconst(e), v(P.T)))
    A('v_or_b32 %s, 0x%x, %s' % (v(P.T), STALE, v(P.T)))

def p3_poll(A, bg=()):
    P = P3; L = P.L
    def check(first):
        for jj in range(2):
            A('@wv h2_%d' % jj if first else 's_waitcnt vmcnt(%d)' % (1-jj))
            for e in range(4):
                A('v_xor_b32 %s, %s, %s' % (v(L+4*jj+e), v(P.T+e), v(L+4*jj+e)))
            if jj == 0: A('v_or_b32 v5, %s, %s' % (v(L), v(L+1)))
            else: A('v_or3_b32 v5, v5, %s, %s' % (v(L+4), v(L+5)))
            A('v_or3_b32 v5, v5, %s, %s' % (v(L+4*jj+2), v(L+4*jj+3)))
        A('v_and_b32 v5, s46, v5')
        A('v_or_b32_dpp v5, v5, v5 quad_perm:[1,0,3,2] row_mask:0xf bank_mask:0xf')
    if bg is None:
        A('L_h2slow:')
        A('s_mov_b64 exec, vcc')
        poll_begin(A, 'h2')
        R_ = Rec(); p3_loads(R_, ' sc1')
        for op in R_.ops: A('x_' + op)
        check(False)
        poll_end(A, 'h2', 5)
        A('s_branch L_h2back')
        return
    R_ = Rec(); p3_loads(R_, ' sc1')
    for jj, op in enumerate(R_.ops):
        A(op); A('@mv h2_%d' % jj)
    for g_ in bg:
        for op in g_: A(op)
    check(True)
    A('v_cmp_ne_u32 vcc, 0, v5')
    A('s_cbranch_vccnz L_h2slow')
    A('L_h2back:')

def p3_setup(A, ldsy):
    P = P3
    A('v_lshlrev_b32 v5, 2, %s' % v(vN))
    A('v_or_b32 v5, v5, %s' % v(vQ))
    A('s_lshl_b32 s36, %s, 11' % s(sW))
    A('s_add_u32 s36, s36, %d' % ldsy)
    A('v_lshl_add_u32 %s, v5, 4, s36' % v(P.ADR+3))
    A('s_and_b32 s36, %s, 7' % s(sB))
    A('s_lshl_b32 s36, s36, 2')
    A('s_add_u32 s36, s36, %s' % s(sW))
    A('s_lshl_b32 s37, s36, 1')
    A('s_and_b32 s37, s37, 15')
    A('v_xor_b32 v5, s37, v5')
    A('v_lshrrev_b32 v6, 5, v5')
    A('v_mul_u32_u24 v6, %d, v6' % XS)
    A('v_and_b32 v5, 31, v5')
    A('v_lshl_add_u32 %s, v5, 4, v6' % v(P.ADR+4))
    A('v_xor_b32 %s, 16, %s' % (v(P.ADR+5), v(P.ADR+4)))
    A('s_lshr_b32 s38, %s, 3' % s(sB))
    A('s_lshl_b32 s38, s38, 9')
    A('s_add_u32 s38, s38, %d' % XW_OFF)
    A('s_mul_i32 s37, s36, %d' % (4*XS))
    A('s_add_u32 s56, s37, s38')
    A('s_add_u32 s57, s56, %d' % (2*XS))
    A('s_mul_i32 s37, s36, %d' % XS)
    A('s_add_u32 s37, s37, s38')
    A('s_add_u32 s58, s37, %d' % (224*XS))
    A('v_and_b32 v5, 7, v0')
    A('v_lshlrev_b32 %s, 4, v5' % v(P.ADR+6))

def p3_xunpack(A):
    P = P3
    for j in range(8):
        A('v_lshlrev_b32 %s, 16, %s' % (v(P.H+2*j), v(XK+j)))
        A('v_and_b32 %s, 0xffff0000, %s' % (v(P.H+2*j+1), v(XK+j)))
    for j in range(8):
        A('v_pk_add_f32 %s, %s, s[42:43] op_sel:[0,%d] op_sel_hi:[1,%d] neg_lo:[0,1] neg_hi:[0,1]' % (v(P.H+2*j, 2), v(P.H+2*j, 2), j >> 2, j >> 2))

def p3_stage(A, ldsy):
    P = P3
    assert ldsy % 256 == 0
    o = ldsy // 256
    for jj in range(2):
        for e in (0, 2):
            A('ds_write2st64_b32 %s, %s, %s offset0:%d offset1:%d' % (v(P.ADR+1), v(P.L+4*jj+e), v(P.L+4*jj+e+1), o + 4*e + 2*jj, o + 4*e + 4 + 2*jj))
    A('s_waitcnt lgkmcnt(0)')
    A('s_barrier')

def p3_compute(A):
    P = P3; D = P.D; T = P.T; H = P.H
    for rho in range(2):
        A('ds_read_b128 %s, %s offset:%d' % (v(P.L+4*rho, 4), v(P.ADR+3), rho*1024))
    for rho in range(2):
        A('s_waitcnt lgkmcnt(%d)' % (1-rho))
        mfma(A, D+16+8*rho, P.L+4*rho, P.BSR)
        mfma(A, D+16+8*rho+4, P.L+4*rho, P.BSI)
        mfma(A, D+8*rho, P.L+4*rho, P.BRE)
        mfma(A, D+8*rho+4, P.L+4*rho, P.BIM)
    for rho in range(2):
        for c in range(2):
            j = 8*rho + 4*c
            A('v_cndmask_b32 %s, %s, %s, %s' % (v(D+j), v(D+j), v(D+16+j), s(sMASK16, 2)))
        for x in range(2):
            o = T + 8*rho + 4*x
            cmul(A, o, o+2, D+8*rho+2*x, D+8*rho+4+2*x, P.TC+2*x, P.TS+2*x, False)
        for r in range(4):
            o = T + 8*rho + 4*(r >> 1) + (r & 1)
            cvt(A, P.L+4*rho+r, o, o+2)
        for t in range(2):
            mfma(A, H+8*rho+4*t, P.L+4*rho, P.CA+4*t, H+8*rho+4*t)
    A('v_mov_b32 %s, %s' % (v(D+2), fhex(1e-5/LOG2E**2)))
    for rho in range(2):
        h = H + 8*rho; d = D + 4 + 4*rho
        A('v_pk_mul_f32 %s, %s, %s' % (v(d, 2), v(h, 2), v(h, 2)))
        for j in range(1, 4):
            A('v_pk_fma_f32 %s, %s, %s, %s' % (v(d, 2), v(h+2*j, 2), v(h+2*j, 2), v(d, 2)))
        A('v_add_f32 %s, %s, %s' % (v(D+rho), v(d), v(d+1)))
    for op in reduce2([(D, D+1)]): A(op)
    A('v_fmac_f32 %s, %s, %s' % (v(D+2), fhex(1/512/LOG2E**2), v(D)))
    A('v_rsq_f32 %s, %s' % (v(D), v(D+2)))
    A('v_readlane_b32 s62, %s, 31' % v(D))
    A('v_readlane_b32 s63, %s, 63' % v(D))
    A('v_mul_f32 %s, %s, %s' % (v(D+2), v(D+2), v(D)))
    for rho in range(2):
        for j in range(4):
            h = H + 8*rho + 2*j
            A('v_pk_mul_f32 %s, %s, s[62:63] op_sel:[0,%d] op_sel_hi:[1,%d]' % (v(h, 2), v(h, 2), rho, rho))
        for j in range(4):
            cvt(A, P.L+4*rho+j, H+8*rho+2*j, H+8*rho+2*j+1)
        A('buffer_store_dwordx4 %s, %s, %s, %s offen sc1' % (v(P.L+4*rho, 4), v(P.ADR+4+rho), s(SWS, 4), s(56+rho)))

def p3_stats(A):
    P = P3; D = P.D
    A('v_readlane_b32 s62, %s, 31' % v(D+2))
    A('v_readlane_b32 s63, %s, 63' % v(D+2))
    A('v_mov_b32 %s, s42' % v(D+4))
    A('v_mov_b32 %s, s43' % v(D+6))
    A('v_mov_b32 %s, s62' % v(D+5))
    A('v_mov_b32 %s, s63' % v(D+7))
    A('s_mov_b64 exec, 0xff\nbuffer_store_dwordx4 %s, %s, %s, s58 offen sc1\ns_mov_b64 exec, -1' % (v(D+4, 4), v(P.ADR+6), s(SWS, 4)))

W1O, W1A, W2O, W2A = 130, 133, 136, 140
def w1reg(ft, kap):
    i = 4*(3*kap + ft)
    return 256 + 176 + i if i < 80 else 252 - (i - 80)
def w2reg(dt, st):
    return 256 + 4*(4*st + dt)

SWZ = [0]
ROT2 = [3]
def w1_addr(A):
    vo, va = W1O, W1A
    A('v_and_b32 v5, 63, v0')
    A('s_and_b32 s36, %s, 7' % s(sB))
    A('s_mul_i32 s36, s36, 24')
    A('s_sub_u32 s36, 172, s36')
    A('v_bfrev_b32 %s, 2' % v(va))
    for u in range(3):
        A('v_add_u32 v6, %d, v5' % (64*u))
        A('v_mul_u32_u24 v7, 0xaab, v6')
        A('v_lshrrev_b32 v7, 16, v7')
        A('v_mul_u32_u24 %s, 24, v7' % v(vo+u))
        A('v_sub_u32 v6, v6, %s' % v(vo+u))
        if SWZ[0] == 0:
            A('v_and_b32 %s, 6, v7' % v(vo+u))
            A('v_xor_b32 v6, v6, %s' % v(vo+u))
        elif SWZ[0] == 2:
            A('v_and_b32 %s, 4, v7' % v(vo+u))
            A('v_sub_u32 v6, v6, %s' % v(vo+u))
            A('v_add_u32 %s, 24, v6' % v(vo+u))
            A('v_min_u32 v6, v6, %s' % v(vo+u))
            A('v_and_b32 %s, 2, v7' % v(vo+u))
            A('v_xor_b32 v6, v6, %s' % v(vo+u))
        A('v_cmp_gt_u32 vcc, s36, v6')
        A('v_mul_u32_u24 v7, 2752, v7')
        A('v_lshl_add_u32 v6, v6, 4, v7')
        A('v_subrev_u32 v6, %d, v6' % (1024*u))
        A('v_cndmask_b32 %s, %s, v6, vcc' % (v(vo+u), v(va)))
    A('s_and_b32 s6, %s, 7' % s(sB))
    A('s_mul_i32 s6, s6, 384')
    A('s_lshr_b32 s36, %s, 1' % s(sW))
    A('s_mul_i32 s36, s36, %d' % (256*2752))
    A('s_add_u32 s6, s6, s36')
    A('s_and_b32 s36, %s, 1' % s(sW))
    A('s_mul_i32 s36, s36, %d' % (8*2752))
    A('s_add_u32 s6, s6, s36')

def w1_addr_rd(A, base):
    va = W1A
    A('v_and_b32 v5, 63, v0')
    A('v_lshrrev_b32 v6, 2, v5')
    A('v_mul_u32_u24 v7, 384, v6')
    A('v_and_b32 v5, 3, v5')
    A('v_lshl_add_u32 v7, v5, 3, v7')
    A('v_add_u32 v7, %d, v7' % base)
    A('s_mul_i32 s36, %s, 3' % s(sW))
    if SWZ[0] == 0:
        A('v_bfe_u32 v6, v6, 1, 2')
        for ft in range(3):
            A('s_add_u32 s37, s36, %d' % ft)
            A('v_xor_b32 v5, s37, v6')
            A('v_lshl_add_u32 %s, v5, 5, v7' % v(va+ft))
    else:
        for ft in range(3):
            A('s_add_u32 s37, s36, %d' % ft)
            A('v_bfe_u32 v5, v6, 1, 1')
            A('v_xor_b32 v5, s37, v5')
            A('v_bfe_u32 %s, v6, 2, 1' % v(va+ft))
            A('v_lshl_add_u32 v5, %s, 1, v5' % v(va+ft))
            A('v_subrev_u32 %s, 12, v5' % v(va+ft))
            A('v_min_u32 v5, v5, %s' % v(va+ft))
            A('v_lshl_add_u32 %s, v5, 5, v7' % v(va+ft))

def w1_dma(A, k0, k1, lds):
    A('s_add_u32 s96, s6, %d' % (16*k0*2752))
    A('s_mul_i32 s97, %s, 3072' % s(sW))
    A('s_add_u32 m0, s97, %d' % lds)
    for k in range(k0, k1):
        for u in range(3):
            A('buffer_load_dwordx4 %s, %s, s96 offen offset:%d lds' % (v(W1O+u), s(SW1, 4), 1024*u))
        if k + 1 < k1:
            A('s_add_u32 m0, m0, 12288')
            A('s_add_u32 s96, s96, %d' % (16*2752))

def w1_read(A, k0, k1, lds, base, tmp=5):
    cur = base; regs = [W1A, W1A+1, W1A+2]
    for k in range(k0, k1):
        off = lds + (k - k0)*12288
        if off + 6144 - cur > 65535:
            for ft in range(3):
                A('v_add_u32 %s, %d, %s' % (v(tmp+ft), off - base, v(W1A+ft)))
            cur = off; regs = [tmp, tmp+1, tmp+2]
        for hi in range(2):
            for ft in range(3):
                A('ds_read_b64_tr_b16 %s, %s offset:%d' % (R(w1reg(ft, k) + 2*hi, 2), v(regs[ft]), off + hi*6144 - cur))

def w2_addr(A):
    vo = W2O
    A('v_and_b32 v5, 63, v0')
    A('v_lshrrev_b32 v6, 3, v5')
    A('v_and_b32 v7, 2, v6')
    A('v_xor_b32 v7, v7, v5')
    A('v_and_b32 v7, 7, v7')
    A('v_lshlrev_b32 v7, 4, v7')
    A('v_lshl_or_b32 %s, v6, 10, v7' % v(vo))
    A('v_xor_b32 v7, 64, %s' % v(vo))
    A('v_add_u32 %s, %d, v7' % (v(vo+1), 7168))
    A('v_add_u32 %s, %d, %s' % (v(vo+2), 2*7168, v(vo)))
    A('v_add_u32 %s, %d, v7' % (v(vo+3), 3*7168))
    A('s_and_b32 s7, %s, 7' % s(sB))
    if FAKE3[0]: A('s_cmp_eq_u32 s7, 3\ns_cselect_b32 s7, 2, s7')
    A('s_lshl_b32 s7, s7, 7')
    A('s_mul_i32 s36, %s, %d' % (s(sW), 11*32*1024))
    A('s_add_u32 s7, s7, s36')

def w2_addr_rd(A, bases):
    A('v_and_b32 v5, 63, v0')
    A('v_bfe_u32 v6, v5, 2, 2')
    A('v_lshl_or_b32 v6, %s, 3, v6' % v(vQ))
    A('v_and_b32 v7, 3, v5')
    A('v_lshlrev_b32 v7, 3, v7')
    A('v_lshl_or_b32 v7, v6, 7, v7')
    A('v_bfe_u32 v6, v5, 3, 2')
    A('v_xor_b32 v6, %s, v6' % s(sW))
    A('v_lshl_or_b32 v7, v6, 5, v7')
    for lds, va in bases:
        A('s_lshl_b32 s36, %s, 12' % s(sW))
        A('s_add_u32 s36, s36, %d' % lds)
        A('v_add_u32 %s, s36, v7' % v(va[0]))
        for dt in range(1, 4):
            A('v_xor_b32 %s, %d, %s' % (v(va[dt]), 32*dt, v(va[0])))

def w2_dma(A, st, lds):
    A('s_add_u32 m0, s51, %d' % lds)
    A('s_add_u32 s96, s7, %d' % (st << 15))
    for u in range(4):
        A('buffer_load_dwordx4 %s, %s, s96 offen offset:%d lds' % (v(W2O+u), s(SW2, 4), 1024*u))

def w2_read(A, st, va, off):
    for dt in range(4):
        for hi in range(2):
            A('ds_read_b64_tr_b16 %s, %s offset:%d' % (R(w2reg(dt, st) + 2*hi, 2), v(va[dt]), off + hi*512))

def touch_weights(A, dst, srd):
    A('s_lshl_b32 s59, %s, 2' % s(sB))
    A('s_add_u32 s59, s59, %s' % s(sW))
    A('s_mul_i32 s59, s59, %d' % (11*128))
    A('v_min_u32 v221, 10, %s' % v(vN))
    A('v_lshlrev_b32 v221, 7, v221')
    A('buffer_load_dword %s, v221, %s, s59 offen' % (v(dst), s(srd, 4)))

def touch_slice3(A, dst):
    A('s_and_b32 s59, %s, 31' % s(sB))
    A('s_lshl_b32 s59, s59, 2')
    A('s_add_u32 s59, s59, %s' % s(sW))
    A('s_mul_i32 s59, s59, %d' % (11*1024))
    A('v_min_u32 v221, 10, %s' % v(vN))
    A('v_lshlrev_b32 v221, 10, v221')
    A('buffer_load_dword %s, v221, %s, s59 offen offset:384' % (v(dst), s(SW2, 4)))

def poison_ops(vp, va):
    A = Rec()
    for i in range(4):
        A('v_mov_b32 %s, 0x70007000' % v(vp+i))
    A('v_bfe_u32 %s, v0, 5, 1' % v(va))
    A('v_mul_u32_u24 %s, %d, %s' % (v(va), 96*XS//16, v(va)))
    A('v_and_or_b32 %s, v0, 31, %s' % (v(va), v(va)))
    A('v_lshlrev_b32 %s, 4, %s' % (v(va), v(va)))
    A('s_and_b32 s98, %s, 7' % s(sB))
    A('s_lshl_b32 s98, s98, 2')
    A('s_add_u32 s98, s98, %s' % s(sW))
    A('s_mul_i32 s98, s98, %d' % (3*XS))
    A('s_lshr_b32 s99, %s, 3' % s(sB))
    A('s_lshl_b32 s99, s99, 9')
    A('s_add_u32 s98, s98, s99')
    for i in range(3):
        A('s_add_u32 s99, s98, %d' % (E_OFF + i*XS))
        A('buffer_store_dwordx4 %s, %s, %s, s99 offen sc1' % (v(vp, 4), v(va), s(SWS, 4)))
    return A.ops

HB = [E_OFF, E_OFF + 96*XS, Y_OFF, XW_OFF + 128*XS]
class G1:
    ACC = 40
    BF = 64
    T = 96
    O = 108
    CK = 116
    ADR = 18
    AD2 = 26
    GA = [22, 29, 38, 39]
    SH = 8
class G2:
    ADR = 8
    ST = 64
    GR = 30
    SS = [54, 55, 59, 23]
    CK = 72
    ACC = 256 + 176
    SO = 12

def g1_setup_dma(A):
    G = G1
    A('v_bfe_u32 v5, v0, 5, 1')
    A('v_mul_u32_u24 v5, %d, v5' % (XS//16))
    A('v_and_or_b32 v5, v0, 31, v5')
    A('v_lshlrev_b32 %s, 4, v5' % v(G.ADR+4))
    for u in range(1, 4):
        A('v_add_u32 %s, %d, %s' % (v(G.GA[u]), u*(2*XS - 1024), v(G.ADR+4)))
    A('s_lshl_b32 s51, %s, 12' % s(sW))
    A('s_lshr_b32 s36, %s, 3' % s(sB))
    A('s_lshl_b32 s36, s36, 9')
    A('s_mul_i32 s37, %s, %d' % (s(sW), 8*XS))
    A('s_add_u32 s50, s36, s37')

def g1_setup(A):
    G = G1
    for k in range(4):
        A('v_or_b32 v5, %d, %s' % (4*k, v(vQ)))
        A('v_xor_b32 v5, v5, %s' % v(vN))
        A('v_lshlrev_b32 v5, 4, v5')
        A('v_lshl_or_b32 %s, %s, 10, v5' % (v(G.ADR+k), v(vN)))
    A('v_and_b32 v5, 63, v0')
    A('v_lshl_add_u32 %s, v5, 4, s51' % v(G.ADR+7))
    A('s_mov_b32 s40, 0x%x' % STALE)
    A('v_and_b32 v5, 1, %s' % v(vQ))
    A('v_mul_u32_u24 v6, %d, v5' % XS)
    A('v_lshl_add_u32 v6, %s, 4, v6' % v(vN))
    A('v_lshlrev_b32 v5, 30, v5')
    A('v_lshl_or_b32 v5, %s, 4, v5' % v(vN))
    A('v_add_u32 v5, %d, v5' % (2*XS))
    A('v_lshrrev_b32 v7, 1, %s' % v(vQ))
    A('v_lshl_add_u32 %s, v7, 8, v6' % v(G.ADR+5))
    A('v_lshl_add_u32 %s, v7, 8, v5' % v(G.ADR+6))
    A('v_mul_u32_u24 v7, %d, v7' % YS)
    A('v_add_u32 %s, v7, v6' % v(G.AD2))
    A('v_add_u32 %s, v7, v5' % v(G.AD2+1))
    A('s_and_b32 s38, %s, 7' % s(sB))
    A('s_lshl_b32 s39, s38, 2')
    A('s_add_u32 s39, s39, %s' % s(sW))
    A('s_mul_i32 s36, s39, %d' % (3*XS))
    A('s_lshr_b32 s37, %s, 3' % s(sB))
    A('s_lshl_b32 s37, s37, 8')
    A('s_add_u32 s36, s36, s37')
    A('s_add_u32 %s, s36, %d' % (s(G.SH+2), HB[2]))
    A('s_add_u32 s36, s36, s37')
    for rt in (0, 1, 3):
        A('s_add_u32 %s, s36, %d' % (s(G.SH+rt), HB[rt]))
    A('s_and_b32 s39, s39, 15')
    A('s_lshl_b32 s39, s39, 2')
    A('v_or_b32 v5, s39, %s' % v(vQ))
    A('v_xor_b32 v5, v5, %s' % v(vN))
    A('v_lshlrev_b32 v5, 4, v5')
    A('v_lshl_or_b32 v5, %s, 10, v5' % v(vN))
    A('s_lshr_b32 s38, s38, 2')
    A('s_lshl_b32 s38, s38, 3')
    A('v_or_b32 %s, s38, v5' % v(G.AD2+2))

def g1_dma_rt(A, rt, pre=''):
    G = G1
    A('s_add_u32 m0, s51, %d' % (rt*16384))
    so = 99 if pre else 98
    A('s_add_u32 %s, s50, %d' % (s(so), XW_OFF + 32*rt*XS))
    for u in range(4):
        A('%sbuffer_load_dwordx4 %s, %s, %s offen offset:%d sc1 lds' % (pre, v(G.GA[u]), s(SWS, 4), s(so), 1024*u))

def g1_check_rd(A, rt, pre=''):
    G = G1
    for u in (0, 2):
        A('%sds_read2st64_b32 %s, %s offset0:%d offset1:%d' % (pre, v(G.CK+u, 2), v(G.ADR+7), rt*64 + u*4, rt*64 + u*4 + 4))
def g1_check_cmp(A):
    G = G1
    A('v_max3_f32 %s, |%s|, |%s|, |%s|' % (v(G.CK), v(G.CK), v(G.CK+1), v(G.CK+2)))
    A('v_max_f32 %s, %s, |%s|' % (v(G.CK), v(G.CK), v(G.CK+3)))
    A('v_cmp_le_f32 vcc, s40, %s' % v(G.CK))

def g1_slow(A):
    for rt in range(4):
        A('L_gslow%d:' % rt)
        A('s_mov_b32 s38, m0')
        A('s_movk_i32 s47, %d' % SPIN)
        A('L_gspin%d:' % rt)
        if CNT[0]: A('s_add_u32 s100, s100, %d' % (1 << 8*rt))
        g1_dma_rt(A, rt, 'x_')
        A('s_waitcnt vmcnt(0)')
        g1_check_rd(A, rt, 'x_')
        A('s_waitcnt lgkmcnt(0)')
        g1_check_cmp(A)
        A('s_sub_u32 s47, s47, 1')
        A('s_cselect_b64 vcc, 0, vcc')
        A('s_cbranch_vccnz L_gspin%d' % rt)
        A('s_mov_b32 m0, s38')
        A('s_branch L_gback%d' % rt)

def silu_ops(rt):
    G = G1; ops = []
    for ft in range(3):
        acc = G.ACC + 12*(rt & 1) + 4*ft; t = G.T + 4*ft
        for r in range(4):
            ops.append('v_exp_f32 %s, -%s' % (v(t+r), v(acc+r)))
        for r in range(4):
            ops.append('v_add_f32 %s, 1.0, %s' % (v(t+r), v(t+r)))
        for r in range(4):
            ops.append('v_rcp_f32 %s, %s' % (v(t+r), v(t+r)))
        for r in range(4):
            ops.append('v_mul_f32 %s, %s, %s' % (v(t+r), v(t+r), v(acc+r)))
        for x in range(2):
            ops.append('v_cvt_pk_bf16_f32 %s, %s, %s' % (v(G.O+2*ft+x), v(t+2*x), v(t+2*x+1)))
        if ft:
            o = G.O + 4*(ft-1)
            ops.append('v_permlane16_swap_b32 %s, %s' % (v(o), v(o+2)))
            ops.append('v_permlane16_swap_b32 %s, %s' % (v(o+1), v(o+3)))
            ops.append('buffer_store_dwordx4 %s, %s, %s, %s offen sc1' % (v(o, 4), v(G.AD2+ft-1 if rt == 2 else G.ADR+4+ft), s(SWS, 4), s(G.SH+rt)))
    return ops

def op_cost(op):
    if op.startswith('@m'): return 0
    return 8 if any(op.startswith(t) for t in TRANS) else 4

KORD = [(6 + i) % 16 for i in range(16)]
def g1_compute(A, pre=(), rd0=(), bg=(), pace=6, ek=50, ne=11, dens=8, ck=6, pace0=4, S=lambda A, i: None):
    G = G1
    DEPTH = 6; nxt = [0]
    def rd(K):
        rt, k = K >> 4, KORD[K & 15]
        A('ds_read_b128 %s, %s offset:%d' % (v(G.BF+4*(K & 7), 4), v(G.ADR+(k & 3)), rt*16384 + (k >> 2)*256))
        A('@ml b%d' % K)
    def chk1(rt):
        A('@wv g%d' % rt); g1_check_rd(A, rt); A('@ml ck')
    def chk2(rt):
        A('@wl ck'); g1_check_cmp(A)
    def chk3(rt):
        A('s_cbranch_vccnz L_gslow%d' % rt)
        A('L_gback%d:' % rt)
        A('s_barrier')
    A('@mv bgend')
    chk1(0); A('s_waitcnt lgkmcnt(0)'); g1_check_cmp(A); chk3(0)
    for op in pre: A(op)
    S(A, 0)
    for K in range(DEPTH): rd(K)
    bg = list(bg); rd0 = list(rd0); early = []
    pend = []
    def slots(op): return 2 if any(op.startswith(t) for t in TRANS) else 1
    def make(ops):
        out = []
        for op in ops:
            I_ = Ins(op); deps = []
            for e in out:
                P_ = e[3]
                if set(P_.w) & (set(I_.r) | set(I_.w)) or set(P_.r) & set(I_.w): deps.append(e)
            out.append([op, deps, None, I_])
        return out
    gap = 0
    A('@wl b1')
    for K in range(64):
        rt, k = K >> 4, K & 15
        for ft in range(3):
            gap += 1
            acc = G.ACC + 12*(rt & 1) + 4*ft
            mfma(A, acc, w1reg(ft, KORD[k]), G.BF+4*(K & 7), acc if k else None)
            free = 2; sc = 1
            def put(op):
                nonlocal free, sc
                A(op)
                if op.startswith('@m'): return
                if op.startswith('s_') or op.startswith('@w'):
                    if sc: sc = 0
                    else: free -= 1
                else:
                    sc = 0; free -= slots(op)
            if ft == 2 and K % 2 == 1 and K < 63: put('@wl b%d' % (K+2))
            if rt < 3:
                if k == ck and ft == 1:
                    put('@wv g%d' % (rt+1)); R_ = Rec(); g1_check_rd(R_, rt+1)
                    for op in R_.ops: put(op)
                    put('@ml ck')
                if k == 8 and ft == 1:
                    put('@wl ck'); R_ = Rec(); g1_check_cmp(R_); cmp_ = R_.ops
                    put(cmp_[0]); put(cmp_[1])
                if k == 8 and ft == 2: put(cmp_[2])
                if k == 9 and ft == 0: put('s_cbranch_vccnz L_gslow%d\nL_gback%d:' % (rt+1, rt+1))
                if k == 9 and ft == 1: put('s_barrier')
            if bg and K >= bg[0][0]:
                grp = bg[0][1]
                if not grp[0].startswith('buffer_'):
                    if sc:
                        assert not (rd0 and grp[0] == '@wl rd0')
                        put(grp.pop(0))
                elif gap >= nxt[0] and free >= 1:
                    for op in grp: put(op)
                    put('@mv bgend'); bg.pop(0)
                    nxt[0] = max(nxt[0], gap - 2) + (pace if K >= 16 else pace0)
            if ft == 0 and K + DEPTH < 64:
                rd(K + DEPTH); free -= 1; sc = 0
            if k == 0 and ft == 1:
                put('ds_read_b64 %s, %s offset:%d' % (v(G2.GR+2*rt, 2), v(G.AD2+2), rt*16384))
            if K >= ek and ft == 0 and len(early) < ne:
                i = len(early); early.append(i)
                assert 1 + 3*(k - 1) > i
                put(g2_load(i // 11, i % 11)); put('@mv h%d_%d' % (i // 11, i % 11))
            if K == 0 and ft == 0: A('@ml rd0')
            if rd0 and free >= 1:
                put(rd0.pop(0)); put('@ml rd0')
            if k >= 1:
                left = (15 - k)*3 + (2 - ft)
                while True:
                    todo = [e for e in pend if e[2] is None]
                    need_ = sum(slots(e[0]) for e in todo)
                    over = need_ > dens*left/6
                    ready = [e for e in todo[:14] if all(d[2] is not None and (d[2] < gap or not (d[3].trans or e[3].perml)) for d in e[1])]
                    pick = [e for e in ready if slots(e[0]) == free] or [e for e in ready if slots(e[0]) <= free]
                    if not pick and over and free >= 0: pick = [e for e in ready if slots(e[0]) <= free + 1]
                    if not pick: break
                    pick[0][2] = gap; put(pick[0][0])
        if k == 15:
            for e in pend:
                if e[2] is None: A(e[0])
            fill = silu_ops(rt); pend = make(fill)
            S(A, 1 + rt)
    assert not bg
    return fill, len(early)

def hf(rt, st):
    return 252 - 4*(11*rt + st)

def g2_setup(A, ldsr):
    G = G2
    A('s_lshr_b32 s36, %s, 3' % s(sB))
    A('s_lshl_b32 s37, s36, 8')
    A('s_add_u32 s38, s37, %d' % HB[2])
    A('v_mul_u32_u24 v5, %d, %s' % (YS, v(vQ)))
    A('v_lshl_add_u32 v5, %s, 4, v5' % v(vN))
    A('v_add_u32 %s, s38, v5' % v(G.ADR+2))
    A('v_and_b32 v6, 1, %s' % v(vQ))
    A('v_mul_u32_u24 v6, %d, v6' % (YS - 256))
    A('v_sub_u32 v5, v5, v6')
    A('s_lshl_b32 s37, s36, 9')
    for rt in (0, 1, 3):
        A('s_add_u32 s38, s37, %d' % HB[rt])
        A('v_add_u32 %s, s38, v5' % v(G.ADR+rt))
    A('s_mul_i32 %s, %s, %d' % (s(G.SO), s(sW), 22*XS))
    for st in range(1, 11):
        A('s_add_u32 %s, %s, %d' % (s(G.SO+st), s(G.SO), st*2*XS))
    A('v_lshrrev_b32 v5, 1, %s' % v(vN))
    A('v_mul_u32_u24 v5, %d, v5' % XS)
    A('v_and_b32 v6, 1, %s' % v(vN))
    A('v_lshl_add_u32 %s, v6, 3, v5' % v(G.ADR+8))
    for rt in range(4):
        A('s_add_u32 %s, s37, %d' % (s(G.SS[rt]), XW_OFF + (224 + 8*rt)*XS))
    A('v_and_b32 v5, 63, v0')
    A('v_lshlrev_b32 v5, 4, v5')
    for dl in range(4):
        A('s_xor_b32 s38, %s, %d' % (s(sW), dl))
        A('s_mul_i32 s39, s38, 12288')
        A('s_add_u32 s39, s39, %d' % (ldsr + max(dl-1, 0)*4096))
        A('v_add_u32 %s, s39, v5' % v(G.ADR+4+dl))
    A('s_and_b32 s38, %s, 7' % s(sB))
    A('s_lshl_b32 s38, s38, 2')
    A('s_add_u32 s38, s38, %s' % s(sW))
    A('s_lshl_b32 s38, s38, 5')
    A('s_lshr_b32 s37, %s, 5' % s(sB))
    A('s_lshl_b32 s37, s37, 8')
    A('s_and_b32 s39, %s, 24' % s(sB))
    A('s_add_u32 s37, s37, s39')
    A('s_lshl_b32 s37, s37, 10')
    A('s_add_u32 s44, s37, s38')
    A('s_add_u32 s45, s44, 4096')
    A('v_and_b32 v5, 7, %s' % v(vN))
    A('v_lshlrev_b32 v5, 15, v5')
    A('v_lshrrev_b32 v6, 3, %s' % v(vN))
    A('v_lshl_or_b32 v5, v6, 10, v5')
    A('v_and_b32 v6, 1, %s' % v(vQ))
    A('v_lshl_or_b32 v5, v6, 11, v5')
    A('v_lshrrev_b32 v6, 1, %s' % v(vQ))
    A('v_lshl_or_b32 %s, v6, 4, v5' % v(G.ADR+9))

def g2_load(rt, st, pre=''):
    G = G2
    return '%sbuffer_load_dwordx4 %s, %s, %s, %s offen sc1' % (pre, v(hf(rt, st), 4), v(G.ADR+rt), s(SWS, 4), s(G.SO+st))

CHUNKS = [(0, 3), (3, 6), (6, 9), (9, 11)]
def g2_check_ops(rt, c):
    G = G2; a_, b_ = CHUNKS[c]
    return ['@wv h%d_%d' % (rt, b_-1),
            'v_max3_f32 %s, |%s|, |%s|, |%s|' % (v(G.CK), v(hf(rt, a_)), v(hf(rt, a_+1)), v(hf(rt, b_-1))),
            'v_cmp_le_f32 vcc, s40, %s' % v(G.CK),
            's_cbranch_vccnz L_hslow%d%d\nL_hback%d%d:' % (rt, c, rt, c)]

def g2_slow(A):
    G = G2
    for rt in range(4):
        for c in range(4):
            A('L_hslow%d%d:' % (rt, c))
            A('s_call_b64 s[48:49], L_hre%d' % rt)
            A('s_branch L_hback%d%d' % (rt, c))
        A('L_hre%d:' % rt)
        A('s_movk_i32 s47, %d' % SPIN)
        A('L_hspin%d:' % rt)
        if CNT[0]: A('s_add_u32 s101, s101, %d' % (1 << 8*rt))
        for st in range(11): A(g2_load(rt, st, 'x_'))
        A('s_waitcnt vmcnt(0)')
        A('v_max3_f32 %s, |%s|, |%s|, |%s|' % (v(G.CK), v(hf(rt, 0)), v(hf(rt, 1)), v(hf(rt, 2))))
        for st in range(3, 11, 2):
            A('v_max3_f32 %s, %s, |%s|, |%s|' % (v(G.CK), v(G.CK), v(hf(rt, st)), v(hf(rt, st+1))))
        A('v_cmp_le_f32 vcc, s40, %s' % v(G.CK))
        A('s_sub_u32 s47, s47, 1')
        A('s_cselect_b64 vcc, 0, vcc')
        A('s_cbranch_vccnz L_hspin%d' % rt)
        A('s_setpc_b64 s[48:49]')

def g2_red_writes(rt):
    G = G2
    return ['ds_write_b128 %s, %s offset:%d' % (v(G.ADR+4+dl), R(g2acc(rt, dl), 4), rt*1024) for dl in range(1, 4)]

HS = 40
VACC = [76, 56, 60, 24]
RT_ = 208
def g2acc(rt, dl):
    return VACC[rt] if dl == 0 else G2.ACC + 16*rt + 4*dl
def g2_res_ops(j):
    G = G2; ops = []
    for x in range(4*j, 4*j+4):
        ops.append('v_lshlrev_b32 %s, 16, %s' % (v(HS+2*x), v(G.GR+x)))
        ops.append('v_and_b32 %s, 0xffff0000, %s' % (v(HS+2*x+1), v(G.GR+x)))
    for x in range(8*j, 8*j+8):
        ops.append('v_fma_f32 %s, %s, %s, %s' % (v(HS+x), v(HS+x), v(G.ST+2*(x >> 2)+1), v(G.ST+2*(x >> 2))))
    return ops
def g2_red_reads(rt):
    return ['ds_read_b128 %s, %s offset:%d' % (v(RT_+12*rt+4*k, 4), v(G2.ADR+4), k*4096 + rt*1024) for k in range(3)] + ['@ml rr%d' % rt]
def g2_out_ops(rt, pk):
    G = G2; t = RT_ + 12*rt; a_ = VACC[rt]; O = G.GR; ops = ['@wl rr%d' % rt]
    if pk:
        for x in range(2):
            ops.append('v_pk_add_f32 %s, %s, %s' % (v(t+2*x, 2), v(t+2*x, 2), v(t+4+2*x, 2)))
            ops.append('v_pk_add_f32 %s, %s, %s' % (v(a_+2*x, 2), v(a_+2*x, 2), v(t+8+2*x, 2)))
        for x in range(2):
            ops.append('v_pk_add_f32 %s, %s, %s' % (v(t+2*x, 2), v(t+2*x, 2), v(a_+2*x, 2)))
        for x in range(2):
            ops.append('v_pk_fma_f32 %s, %s, s[62:63], %s' % (v(t+2*x, 2), v(t+2*x, 2), v(HS+4*rt+2*x, 2)))
    else:
        for x in range(4):
            ops.append('v_add_f32 %s, %s, %s' % (v(t+x), v(t+x), v(t+4+x)))
            ops.append('v_add_f32 %s, %s, %s' % (v(a_+x), v(a_+x), v(t+8+x)))
        for x in range(4):
            ops.append('v_add_f32 %s, %s, %s' % (v(t+x), v(t+x), v(a_+x)))
        for x in range(4):
            ops.append('v_fma_f32 %s, %s, s62, %s' % (v(t+x), v(t+x), v(HS+4*rt+x)))
    O = OUTR
    for x in range(2):
        ops.append('v_cvt_pk_bf16_f32 %s, %s, %s' % (v(O+2*rt+x), v(t+2*x), v(t+2*x+1)))
    if rt & 1:
        o = O + 4*(rt >> 1)
        ops.append('v_permlane16_swap_b32 %s, %s' % (v(o), v(o+2)))
        ops.append('v_permlane16_swap_b32 %s, %s' % (v(o+1), v(o+3)))
        ops.append('buffer_store_dwordx4 %s, %s, %s, %s offen%s' % (v(o, 4), v(G.ADR+9), s(SOUT, 4), s(44 + (rt >> 1)), OMOD[0]))
    return ops
OUTR = 200
OMOD = ['']

def g2_main(A, tail, done, w2late, ahead=14, tgap=48, b2=0, S=lambda A, i: None):
    G = G2
    loads = [(rt, st) for rt in range(4) for st in range(11)][done:]
    late = []
    for st in sorted(w2late): late += [(st, op) for op in w2late[st]]
    def ld():
        rt, st = loads.pop(0)
        assert hf(rt, st) >= 144 or not late
        A(g2_load(rt, st)); A('@mv h%d_%d' % (rt, st))
    def lrd():
        st, op = late.pop(0); A(op); A('@ml w2_%d' % st)
    acc = 0; n = done
    for op in tail:
        A(op); acc += op_cost(op)
        if acc >= tgap and n < ahead: ld(); n += 1; acc = 0
    if DLY[0]:
        A('s_memrealtime s[62:63]'); A('s_waitcnt lgkmcnt(0)'); A('s_add_u32 s36, s62, %d' % DLY[0])
        A('L_dly:'); A('s_memrealtime s[62:63]'); A('s_waitcnt lgkmcnt(0)'); A('s_cmp_lt_u32 s62, s36'); A('s_cbranch_scc1 L_dly')
    S(A, 0)
    while n < ahead: ld(); n += 1
    A('@wv bgend')
    for _ in range(24):
        if late: lrd()
    for op in g2_check_ops(0, 0): A(op)
    S(A, 2)
    fill = []
    for rt in range(4):
        for st in range(11):
            chk = []
            for c, (a_, b_) in enumerate(CHUNKS):
                if st == b_ - 1 and (rt, c) != (3, 3): chk = g2_check_ops(rt + (c+1)//4, (c+1) % 4)
            if rt == 0 and st in w2late:
                while late and late[0][0] <= st: lrd()
                A('@wl w2_%d' % st)
            for dl in range(4):
                d_ = (dl + 1) % 4; acc = g2acc(rt, d_)
                mfma(A, acc, w2reg(d_, st), hf(rt, st), acc if st else None)
                if dl == 0 and loads: ld()
                elif chk:
                    if dl == 1: A(chk[0]); A(chk[1])
                    elif dl >= 2: A(chk[dl])
                elif late:
                    for _ in range(2):
                        if late: lrd()
                elif fill and (st >= 2 or not fill[0].startswith('ds_write')):
                    if fill[0].startswith('@w') or fill[0].startswith('s_'): A(fill.pop(0))
                    for _ in range(2):
                        if fill and not (fill[0].startswith('@w') or fill[0].startswith('s_')) and (st >= 2 or not fill[0].startswith('ds_write')):
                            op = fill.pop(0)
                            if op != '@nop gap': A(op)
                            if fill and fill[0].startswith('@m'): A(fill.pop(0))
            if rt == 0 and st == 5: S(A, 3)
        if rt == 0:
            A('s_barrier')
            fill = ['buffer_load_dwordx2 %s, %s, %s, %s offen sc1' % (v(G.ST+2*r_, 2), v(G.ADR+8), s(SWS, 4), s(G.SS[r_])) for r_ in range(4)] + ['@mv st']
            S(A, 4)
        if rt < 3: fill += g2_red_writes(rt)
        if rt == 1:
            fill += ['s_mov_b32 s62, %s' % fhex(1/LOG2E), 's_mov_b32 s63, s62', '@wv st'] + g2_res_ops(0) + ['s_waitcnt lgkmcnt(0)', 's_barrier']
            fill += g2_red_reads(0) + g2_red_reads(1) + g2_res_ops(1)
        if rt == 2:
            fill += g2_out_ops(0, False)
            if b2: fill += ['s_waitcnt lgkmcnt(0)', 's_barrier'] + g2_red_reads(2)
            fill += g2_out_ops(1, False)
        if rt == 1: S(A, 1)
    assert not loads
    for op in fill: A(op)

def g2_finish(A, b2):
    if b2:
        ops = g2_out_ops(2, False)
        for op in ops[:5]: A(op)
        for op in g2_red_writes(3): A(op)
        for op in ops[5:]: A(op)
    else:
        for op in g2_red_writes(3): A(op)
    A('s_waitcnt lgkmcnt(0)')
    A('s_barrier')
    rts = (3,) if b2 else (2, 3)
    for rt in rts:
        for op in g2_red_reads(rt): A(op)
    for rt in rts:
        for op in g2_out_ops(rt, True): A(op)

CLK = ['s_memrealtime']
def stamp(A, idx):
    A('%s %s' % (CLK[0], s(64 + 2*idx, 2)))
def stamp_dump(A, slot, n):
    A('s_waitcnt vmcnt(0) lgkmcnt(0)')
    stamp(A, n)
    A('s_waitcnt lgkmcnt(0)')
    A('v_mov_b32 v5, 0')
    for i in range(n + 1):
        A('v_writelane_b32 v5, %s, %d' % (s(64 + 2*i), i))
    if CNT[0]:
        A('v_writelane_b32 v5, s2, 1')
        A('v_writelane_b32 v5, s100, 3')
        A('v_writelane_b32 v5, s101, 6')
    A('s_lshl_b32 s36, %s, 2' % s(sB))
    A('s_add_u32 s36, s36, %s' % s(sW))
    A('s_lshl_b32 s36, s36, 6')
    A('s_add_u32 s36, s36, %d' % (STAMP_OFF + slot*65536))
    A('v_and_b32 v6, 63, v0')
    A('v_lshlrev_b32 v6, 2, v6')
    A('s_mov_b64 exec, 0xffff')
    A('buffer_store_dword v5, v6, %s, s36 offen sc1' % s(SWS, 4))

def readout(A, pt, op, wait_us=34, add_us=40):
    A('s_mov_b64 exec, -1')
    A('s_or_b32 s36, %s, %s' % (s(sB), s(sW)))
    A('s_cbranch_scc1 L_end')
    A('L_ro1:')
    A('s_memrealtime s[62:63]')
    A('s_waitcnt lgkmcnt(0)')
    A('s_sub_u32 s62, s62, s64')
    A('s_cmp_lt_u32 s62, %d' % (wait_us*100))
    A('s_cbranch_scc1 L_ro1')
    A('v_lshlrev_b32 v6, 6, v0')
    A('s_mov_b32 s36, %d' % (STAMP_OFF + pt*4))
    for i in range(16):
        A('buffer_load_dword %s, v6, %s, s36 offen sc1' % (v(8+i), s(SWS, 4)))
        A('s_add_u32 s36, s36, 4096')
    A('s_waitcnt vmcnt(0)')
    for i in range(16):
        A('v_subrev_u32 %s, s64, %s' % (v(8+i), v(8+i)))
    for i in range(1, 16):
        A('v_%s_i32 v8, v8, %s' % (op, v(8+i)))
    for mod in ('quad_perm:[1,0,3,2]', 'quad_perm:[2,3,0,1]', 'row_ror:4', 'row_ror:8'):
        A('v_%s_i32_dpp v8, v8, v8 %s row_mask:0xf bank_mask:0xf' % (op, mod))
    for st in (16, 32):
        A('v_mov_b32 v9, v8')
        A('v_permlane%d_swap_b32 v8, v9' % st)
        A('v_%s_i32 v8, v8, v9' % op)
    A('v_readfirstlane_b32 s36, v8')
    A('s_add_u32 s36, s36, %d' % (add_us*100))
    A('s_min_u32 s36, s36, 20000')
    A('L_ro2:')
    A('s_memrealtime s[62:63]')
    A('s_waitcnt lgkmcnt(0)')
    A('s_sub_u32 s62, s62, s64')
    A('s_cmp_lt_u32 s62, s36')
    A('s_cbranch_scc1 L_ro2')
```

```python
from asmlib import *

XS = 16384 + 512
YS = XS // 2
GEN_OFF = 0
STAMP_OFF = 64 << 10
XW_OFF = 256 << 10
Y_OFF  = XW_OFF + 256*XS
E_OFF  = Y_OFF + 256*YS
WS_BYTES = E_OFF + 192*XS
LOG2E = 1.4426950408889634
SC = 2.0**-98
STALE = 0x60000000

sB, sW = 3, 4
SX, SWR, SWI, SW1, SW2, SOUT, SWS = 8, 12, 16, 20, 24, 28, 32
sT = 36
sMASK16 = 60

vTID, vN, vQ, vNF, vQF = 0, 1, 2, 3, 4

MF = 'v_mfma_f32_16x16x32_bf16'
def mfma(A, d, x, y, c=None):
    A('%s %s, %s, %s, %s' % (MF, R(d, 4), R(x, 4), R(y, 4), '0' if c is None else R(c, 4)))

def prologue(A, exit_label, st=False):
    A('s_cmp_ge_u32 s2, 256')
    A('s_cbranch_scc1 %s' % exit_label)
    if st: stamp(A, 0)
    for srd, off in ((SX, 0), (SWR, 8), (SWI, 16), (SW1, 32), (SW2, 40), (SOUT, 48), (SWS, 64)):
        A('s_load_dwordx2 %s, s[0:1], %d' % (s(srd, 2), off))
    A('s_and_b32 s36, s2, 7')
    A('s_lshl_b32 s36, s36, 5')
    A('s_lshr_b32 s37, s2, 3')
    A('s_or_b32 %s, s36, s37' % s(sB))
    A('v_lshrrev_b32 v5, 6, v0')
    A('v_and_b32 %s, 15, v0' % v(vN))
    A('v_readfirstlane_b32 %s, v5' % s(sW))
    A('v_bfe_u32 %s, v0, 4, 2' % v(vQ))
    for srd, nb in ((SX, 2048*1024), (SWR, 2048*514), (SWI, 2048*514), (SW1, 512*2752), (SW2, 1376*1024), (SOUT, 2048*1024), (SWS, WS_BYTES)):
        A('s_mov_b32 %s, %d' % (s(srd+2), nb))
        A('s_mov_b32 %s, 0x00020000' % s(srd+3))
    A('v_cvt_f32_u32 %s, %s' % (v(vNF), v(vN)))
    A('v_cvt_f32_u32 %s, %s' % (v(vQF), v(vQ)))
    A('s_mov_b64 %s, 0xffff' % s(sMASK16, 2))

def sincos_chain(A, ang, step, n, cdst, sdst):
    for i in range(n):
        A('v_cos_f32 %s, %s' % (v(cdst[i]), v(ang)))
        A('v_sin_f32 %s, %s' % (v(sdst[i]), v(ang)))
        if i + 1 < n:
            A('v_add_f32 %s, %s, %s' % (v(ang), v(ang), v(step)))

def cvt(A, d, lo, hi, nlo=False, nhi=False):
    f = lambda r, ng: (('-' if ng else '') + v(r)) if isinstance(r, int) else r
    A('v_cvt_pk_bf16_f32 %s, %s, %s' % (v(d), f(lo, nlo), f(hi, nhi)))

def nu_of(A, dst, k2, t0):
    A('v_lshlrev_b32 %s, 1, %s' % (v(dst), v(k2)))
    A('v_cmp_eq_u32 vcc, 0, %s' % v(k2))
    A('v_subrev_u32 %s, 15, %s' % (v(t0), v(dst)))
    A('v_cndmask_b32 %s, %s, 16, vcc' % (v(dst), v(dst)))
    A('v_cmp_gt_u32 vcc, 8, %s' % v(k2))
    A('v_cndmask_b32 %s, %s, %s, vcc' % (v(dst), v(t0), v(dst)))

def reduce2(pairs):
    ops = []
    for a_, b_ in pairs: ops.append('v_permlane32_swap_b32 %s, %s' % (v(a_), v(b_)))
    for a_, b_ in pairs: ops.append('v_add_f32 %s, %s, %s' % (v(a_), v(a_), v(b_)))
    for mod in ('quad_perm:[1,0,3,2] row_mask:0xf', 'quad_perm:[2,3,0,1] row_mask:0xf', 'row_ror:4 row_mask:0xf', 'row_ror:8 row_mask:0xf', 'row_bcast:15 row_mask:0xa'):
        for a_, b_ in pairs: ops.append('v_add_f32_dpp %s, %s, %s %s bank_mask:0xf' % (v(a_), v(a_), v(a_), mod))
    return ops

GP = 4416
TAGM = 0x60006000
sTAG = 5

def tagbits_s(A, dst, pos_s, tmp):
    A('s_xor_b32 %s, %s, %s' % (s(dst), s(sTAG), pos_s))
    A('s_and_b32 %s, %s, 12' % (s(tmp), s(dst)))
    A('s_lshl_b32 %s, %s, 27' % (s(tmp), s(tmp)))
    A('s_and_b32 %s, %s, 3' % (s(dst), s(dst)))
    A('s_lshl_b32 %s, %s, 13' % (s(dst), s(dst)))
    A('s_or_b32 %s, %s, %s' % (s(dst), s(dst), s(tmp)))
def tagconst(j):
    return ((j & 3) << 13) | ((j & 12) << 27)

def interleave(A, main, fill, ratio=1):
    fill = list(fill)
    for op in main:
        A(op)
        for _ in range(ratio):
            if fill: A(fill.pop(0))
    for op in fill: A(op)

def cmul(A, ore, oim, xr, xi, c, sn, conj):
    neg = ' neg_lo:[1,0,0] neg_hi:[1,0,0]'
    A('v_pk_mul_f32 %s, %s, %s' % (v(ore, 2), v(xr, 2), v(c, 2)))
    A('v_pk_mul_f32 %s, %s, %s' % (v(oim, 2), v(xi, 2), v(c, 2)))
    A('v_pk_fma_f32 %s, %s, %s, %s%s' % (v(ore, 2), v(xi, 2), v(sn, 2), v(ore, 2), '' if conj else neg))
    A('v_pk_fma_f32 %s, %s, %s, %s%s' % (v(oim, 2), v(xr, 2), v(sn, 2), v(oim, 2), neg if conj else ''))

SPIN = 20000
CNT = [0]
FAKE3 = [0]
DLY = [0]
HMOD = [' sc1']
def poll_begin(A, name):
    A('s_movk_i32 s47, %d' % SPIN)
    A('L_%s:' % name)
    if CNT[0]: A('s_add_u32 s2, s2, %d' % (0x10000 if name == 'h1' else 0x1000000))
def poll_end(A, name, acc):
    A('v_cmp_ne_u32 vcc, 0, %s' % v(acc))
    A('s_sub_u32 s47, s47, 1')
    A('s_cselect_b64 vcc, 0, vcc')
    A('s_and_b64 exec, exec, vcc')
    A('s_cbranch_execnz L_%s' % name)
    A('s_mov_b64 exec, -1')

def row_base(A, dst):
    A('s_lshr_b32 %s, %s, 5' % (s(dst), s(sB)))
    A('s_lshl_b32 %s, %s, 8' % (s(dst), s(dst)))
    A('s_and_b32 s37, %s, 31' % s(sB))
    A('s_or_b32 %s, %s, s37' % (s(dst), s(dst)))
    A('s_lshl_b32 s37, %s, 6' % s(sW))
    A('s_add_u32 %s, %s, s37' % (s(dst), s(dst)))
    A('s_lshl_b32 %s, %s, 10' % (s(dst), s(dst)))

class P1:
    X = 8
    WL = 16
    CA, SA = 24, 28
    TC, TS = 32, 36
    BRE, BIM, BSR, BSI = 40, 44, 48, 52
    U = 56
    D = 72
    T = 104
    ADR = 120
    W256 = 144
    S = 24
class P2:
    C64, S64, N64 = 8, 16, 24
    D = 32
    WP = 48
    TC1, TS1 = 56, 64
    TC2, TS2 = 72, 80
    F = 88
    ADR = 120
    C32, S32, N32 = 148, 156, 164
    TG = 212
class P3:
    L = 40
    H = 48
    D = 72
    T = 104
    ADR = 120
    BRE, BIM, BSR, BSI = 172, 176, 180, 184
    TC, TS = 188, 192
    CA = 196
XK = 204
XC = 2048 + 64
WC = 4096 + 64

def fast_prologue(A, exit_label, ldsxs, st=False, pf=6, pre=0, S9=lambda A: None):
    P = P1
    assert ldsxs == 0
    R_ = Rec()
    R_('s_lshl_b32 s36, s36, 5')
    R_('s_or_b32 %s, s36, s37' % s(sB))
    R_('s_lshr_b32 %s, %s, 6' % (s(sW), s(sW)))
    R_('v_lshl_add_u32 %s, v5, 3, m0' % v(P.ADR))
    R_('v_and_b32 %s, 15, v0' % v(vN))
    R_('v_bfe_u32 %s, v0, 4, 2' % v(vQ))
    for srd, nb in ((SWR, 2048*514), (SW1, 512*2752), (SWS, WS_BYTES)):
        R_('s_mov_b32 %s, %d' % (s(srd+2), nb))
    for srd, src in ((SWI, SWR), (SW2, SW1), (SOUT, SX)):
        R_('s_mov_b32 %s, %s' % (s(srd+2), s(src+2)))
    for srd in (SWR, SWI, SW1, SW2, SOUT, SWS):
        R_('s_mov_b32 %s, s43' % s(srd+3))
    R_('v_cvt_f32_u32 %s, %s' % (v(vNF), v(vN)))
    R_('v_cvt_f32_u32 %s, %s' % (v(vQF), v(vQ)))
    R_('s_mov_b64 %s, 0xffff' % s(sMASK16, 2))
    early, late = (R_.ops, []) if pre else ([], R_.ops)
    A('s_load_dwordx16 s[44:59], s[0:1], 0')
    A('s_load_dwordx2 %s, s[0:1], 64' % s(SWS, 2))
    A('s_cmpk_ge_u32 s2, 256')
    A('s_cbranch_scc1 %s' % exit_label)
    if st: stamp(A, 0)
    A('v_readfirstlane_b32 %s, v0' % s(sW))
    A('s_lshr_b32 s37, s2, 3')
    A('s_mov_b32 s43, 0x20000')
    if pf:
        A('s_getpc_b64 s[40:41]')
        A('L_pc:')
        A('s_movk_i32 s42, CODE_BYTES')
        A('s_lshl_b32 s38, s37, 7')
        A('v_min_u32 v7, %d, v0' % (pf-1))
        A('v_lshlrev_b32 v7, 12, v7')
        A('buffer_load_dword v222, v7, s[40:43], s38 offen')
    A('v_and_b32 v5, 63, v0')
    A('s_and_b32 s36, s2, 7')
    A('s_lshl_b32 s38, s36, 8')
    A('s_add_u32 s38, s38, s37')
    A('s_add_u32 s38, s38, %s' % s(sW))
    A('s_lshl_b32 s38, s38, 10')
    A('s_lshl_b32 m0, %s, 6' % s(sW))
    A('v_lshlrev_b32 v6, 4, v5')
    A('s_lshl_b32 %s, s43, 4' % s(SX+2))
    A('s_mov_b32 %s, s43' % s(SX+3))
    for op in early: A(op)
    A('s_waitcnt lgkmcnt(0)')
    A('s_mov_b64 %s, s[44:45]' % s(SX, 2))
    A('buffer_load_dwordx4 v6, %s, s38 offen lds' % s(SX, 4))
    A('s_addk_i32 s38, %d' % (0x8000 - 1024))
    A('buffer_load_dwordx4 v6, %s, s38 offen offset:1024 lds' % s(SX, 4))
    A('@mv x')
    S9(A)
    for op in late: A(op)
    A('s_load_dword %s, %s, %d' % (s(sTAG), s(SWS, 2), GEN_OFF))
    for srd, off in ((SWR, 8), (SWI, 16), (SW1, 32), (SW2, 40), (SOUT, 48)):
        A('s_mov_b64 %s, %s' % (s(srd, 2), s(44 + off//4, 2)))

def p1_wloads(A, ldsxs):
    P = P1
    A('s_lshr_b32 s37, %s, 6' % s(sB))
    A('s_lshl_b32 s37, s37, 4')
    A('s_and_b32 s38, %s, 15' % s(sB))
    A('s_or_b32 s37, s37, s38')
    A('s_bfe_u32 s38, %s, 0x20004' % s(sB))
    A('s_lshl_b32 s38, s38, 8')
    A('s_or_b32 s37, s37, s38')
    A('s_mul_i32 s37, s37, 514')
    A('v_bfe_u32 v6, v0, 3, 2')
    A('v_bfe_u32 v7, v0, 5, 1')
    A('v_lshl_or_b32 v6, v7, 4, v6')
    A('v_mul_u32_u24 v6, %d, v6' % (64*514))
    A('s_and_b32 s40, %s, 1' % s(sB))
    A('s_or_b32 s41, s40, %s' % s(sW))
    A('s_cbranch_scc1 L_w256')
    A('x_buffer_load_ushort %s, v6, %s, s37 offen offset:512' % (v(P.W256), s(SWR, 4)))
    A('x_buffer_load_ushort %s, v6, %s, s37 offen offset:512' % (v(P.W256+1), s(SWI, 4)))
    A('L_w256:')
    A('s_lshl_b32 s38, %s, 6' % s(sW))
    A('s_add_u32 s38, s38, s40')
    A('s_lshl_b32 s38, s38, 1')
    A('s_add_u32 s37, s37, s38')
    A('v_and_b32 v7, 7, v0')
    A('v_lshl_add_u32 v6, v7, 4, v6')
    A('s_lshl_b32 s39, %s, 12' % s(sW))
    A('s_add_u32 m0, s39, %d' % (ldsxs + 2048))
    A('buffer_load_dwordx4 v6, %s, s37 offen lds' % s(SWR, 4))
    A('s_add_u32 m0, m0, 1024')
    A('buffer_load_dwordx4 v6, %s, s37 offen lds' % s(SWI, 4))
    A('@mv w')

def consts_a(A):
    P = P1; T = P.T; SG = P.T + 8
    A('v_mul_f32 v5, %s, %s' % (v(vNF), v(vQF)))
    A('v_mul_f32 v6, %s, v5' % fhex(4/32))
    A('v_mul_f32 v7, %s, %s' % (fhex(1/32), v(vNF)))
    sincos_chain(A, 6, 7, 4, [T+i for i in range(4)], [T+4+i for i in range(4)])
    A('v_and_b32 v6, 1, %s' % v(vN))
    A('v_mul_u32_u24 v6, 0x8000, v6')
    A('v_lshl_or_b32 %s, v6, 16, v6' % v(SG))
    Q = P2
    for j in range(2):
        for t in range(2):
            cvt(A, Q.C32+4*t+j, T+2*j, T+2*j+1, False, t == 1)
            cvt(A, Q.S32+4*t+j, T+4+2*j, T+4+2*j+1, False, t == 1)
            cvt(A, Q.N32+4*t+j, T+4+2*j, T+4+2*j+1, True, t == 0)
    for j in range(2):
        for t in range(2):
            for base in (Q.C32, Q.S32, Q.N32):
                A('v_xor_b32 %s, %s, %s' % (v(base+4*t+2+j), v(SG), v(base+4*t+j)))
    A('v_mov_b32 v7, 0xbf803f80')
    A('v_cmp_eq_u32 vcc, 0, %s' % v(vN))
    for j in range(4):
        A('v_cndmask_b32 %s, %s, v7, vcc' % (v(P.SA+j), v(Q.N32+j)))
    A('v_cndmask_b32 %s, 0, -1.0, vcc' % v(P.ADR+6))
    Z = P3
    for r in range(4):
        cvt(A, Z.CA+r, T+r, T+4+r, False, True)
        cvt(A, Z.CA+4+r, T+r, T+4+r, (r & 1) == 1, (r & 1) == 0)
    A('v_and_b32 v7, 0x80000000, %s' % v(SG))
    A('v_or_b32 v7, 0x3f803f80, v7')
    for t in range(2):
        A('v_cndmask_b32 %s, %s, v7, %s' % (v(Z.CA+4*t), v(Z.CA+4*t), s(sMASK16, 2)))
    A('v_or_b32 %s, 0x3f00, v6' % v(Z.BSI+3))

def consts_b(A):
    P = P1; Z = P3; T = P.T
    A('v_mul_f32 v5, %s, %s' % (v(vNF), v(vQF)))
    A('v_mul_f32 v6, %s, v5' % fhex(4/512))
    A('v_mul_f32 v7, %s, %s' % (fhex(1/512), v(vNF)))
    sincos_chain(A, 6, 7, 4, [P.TC+e for e in range(4)], [P.TS+e for e in range(4)])
    A('v_mul_f32 v6, %s, v5' % fhex(4/16))
    A('v_mul_f32 v7, %s, %s' % (fhex(1/16), v(vNF)))
    sincos_chain(A, 6, 7, 4, [T+e for e in range(4)], [T+4+e for e in range(4)])
    A('v_and_b32 v6, 8, %s' % v(vN))
    A('v_mul_u32_u24 v6, 0x1000, v6')
    A('v_lshl_or_b32 v6, v6, 16, v6')
    for e in range(4):
        cvt(A, P.BRE+e, T+e, T+4+e)
        cvt(A, P.BIM+e, T+4+e, T+e, True, False)
    A('v_lshlrev_b32 %s, 30, %s' % (v(T+10), v(vQ)))
    A('v_and_b32 %s, 0x80000000, %s' % (v(T+10), v(T+10)))
    A('v_xor_b32 %s, 0x80000000, %s' % (v(T+11), v(T+10)))
    A('v_xor_b32 %s, 0x8000, %s' % (v(T+10), v(T+10)))
    for e in range(4):
        A('v_xor_b32 %s, %s, %s' % (v(Z.BRE+e), v(T+11), v(P.BRE+e)))
        A('v_xor_b32 %s, %s, %s' % (v(Z.BIM+e), v(T+10), v(P.BIM+e)))
        A('v_xor_b32 %s, v6, %s' % (v(P.BIM+e), v(P.BIM+e)))
    nu_of(A, T+12, vN, 6)
    A('v_cvt_f32_u32 %s, %s' % (v(T+12), v(T+12)))
    A('v_mul_f32 %s, %s, %s' % (v(T+13), fhex(1/32), v(T+12)))
    A('v_mul_f32 v6, 4.0, %s' % v(T+13))
    A('v_mul_f32 v6, v6, %s' % v(vQF))
    sincos_chain(A, 6, T+13, 4, [T+e for e in range(4)], [T+4+e for e in range(4)])
    A('v_and_b32 v6, 8, %s' % v(vN))
    A('v_lshlrev_b32 v6, 1, v6')
    for e in range(4):
        cvt(A, P.BSR+e, T+e, '0')
        cvt(A, P.BSI+e, T+4+e, '0', True)
    for e in range(4):
        A('v_lshlrev_b32 %s, v6, %s' % (v(P.BSR+e), v(P.BSR+e)))
        A('v_lshlrev_b32 %s, v6, %s' % (v(P.BSI+e), v(P.BSI+e)))

def consts_c(A):
    P = P1; Z = P3; T = P.T
    A('v_mul_f32 v7, %s, %s' % (fhex(1/16), v(vNF)))
    A('v_fma_f32 v6, %s, 4.0, %s' % (v(vQF), '-4.0'))
    A('v_add_f32 v6, %s, v6' % fhex(-3.5))
    A('v_mul_f32 v6, v6, v7')
    sincos_chain(A, 6, 7, 4, [T+e for e in range(4)], [T+4+e for e in range(4)])
    A('v_cmp_gt_u32 vcc, 2, %s' % v(vQ))
    for e in range(4):
        cvt(A, T+e, T+e, T+4+e, False, True)
    for e in range(4):
        A('v_cndmask_b32 %s, 0, %s, vcc' % (v(Z.BSR+e), v(Z.BRE+e)))
        if e == 2: A('v_cndmask_b32 %s, %s, %s, %s' % (v(Z.BSR), v(Z.BSR), v(Z.BSI+3), s(sMASK16, 2)))
        A('v_cndmask_b32 %s, %s, 0, vcc' % (v(Z.BSI+e), v(T+e)))
    for e in range(8):
        A('v_mul_f32 %s, %s, %s' % (v(Z.TC+e), fhex(2.0**-19/SC), v(P.TC+e)))

def p1_addrs(A, lds):
    P = P1
    A('v_bfe_u32 v5, v0, 2, 2')
    A('v_lshlrev_b32 v5, 7, v5')
    A('v_lshl_or_b32 v5, %s, 5, v5' % v(vQ))
    A('v_and_b32 v6, 3, v0')
    A('v_lshl_or_b32 v5, v6, 3, v5')
    A('s_lshl_b32 s39, %s, 12' % s(sW))
    A('v_add_u32 %s, s39, v5' % v(P.ADR+1))
    A('v_mul_u32_u24 v6, %d, v6' % GP)
    A('v_bfe_u32 v5, v0, 2, 4')
    A('v_lshl_add_u32 v5, v5, 4, v6')
    A('s_mul_i32 s36, %s, 272' % s(sW))
    A('v_add_u32 %s, s36, v5' % v(P.ADR+4))
    A('s_lshr_b32 s36, %s, 1' % s(sW))
    A('s_mul_i32 s36, s36, %d' % GP)
    A('s_and_b32 s37, %s, 1' % s(sW))
    A('s_lshl_b32 s37, s37, 2')
    A('s_add_u32 s36, s36, s37')
    A('s_add_u32 s36, s36, %d' % lds)
    A('v_mul_u32_u24 v5, 68, %s' % v(vQ))
    A('v_add_u32 v5, v5, %s' % v(vN))
    A('v_lshl_add_u32 %s, v5, 4, s36' % v(P.ADR+2))
    A('v_bfe_u32 v5, v0, 5, 1')
    A('v_mul_u32_u24 v5, %d, v5' % GP)
    A('v_bfe_u32 v6, v0, 3, 2')
    A('v_lshl_add_u32 %s, v6, 1, v5' % v(P.W256+2))
    A('v_mov_b32 %s, %s' % (v(P.W256+3), fhex(-1/32)))
    A('v_add_u32 v5, s40, v0')
    A('v_and_b32 v6, 31, v5')
    A('v_lshrrev_b32 v5, 5, v5')
    A('v_and_b32 v5, 7, v5')
    A('v_mad_u32_u24 v7, v6, 17, v5')
    A('v_sub_u32 %s, %d, v7' % (v(P.ADR+5), 17*32 + 15))
    A('v_cmp_gt_u32 vcc, 16, v6')
    A('v_add_u32 v5, 8, v5')
    A('v_cndmask_b32 v7, %s, v7, vcc' % v(P.ADR+5))
    A('v_cmp_eq_u32 vcc, 16, v6')
    A('v_lshlrev_b32 %s, 4, v0' % v(P.ADR+3))
    A('v_cndmask_b32 v7, v7, v5, vcc')
    A('v_lshlrev_b32 %s, 4, v7' % v(P.ADR+5))
    A('s_mul_i32 s48, %s, %d' % (s(sB), XS))
    A('s_add_u32 s48, s48, %d' % XW_OFF)
    for jj in range(1, 4):
        A('s_add_u32 %s, s48, %d' % (s(48+jj), jj*4096))

def p1_tags(A):
    tagbits_s(A, 46, s(sW), 36)
    A('s_xor_b32 s47, s46, 0x%x' % tagconst(4))
    A('s_bitcmp0_b32 %s, 0' % s(sW))
    A('s_cselect_b32 s36, 0x%x, 0' % STALE)
    A('s_or_b32 s46, s46, s36')
    A('s_or_b32 s47, s47, s36')
    A('v_mov_b32 %s, 0x%x' % (v(P1.ADR+7), TAGM))

def p1_compute(A, ldsxs, lds, S_=lambda A, i: None):
    P = P1; U = P.U; T = P.T; D = P.D; X = P.X; S = P.S
    A('@wv x')
    S_(A, 0)
    for rho in range(2):
        for hi in range(2):
            A('ds_read_b64_tr_b16 %s, %s offset:%d' % (v(X+4*rho+2*hi, 2), v(P.ADR), ldsxs + rho*1024 + hi*512))
    for rho in range(2):
        A('s_waitcnt lgkmcnt(%d)' % (2 - 2*rho))
        mfma(A, D+8*rho, X+4*rho, P2.C32)
        mfma(A, D+8*rho+4, X+4*rho, P.SA)
    for j in range(8):
        A('v_lshlrev_b32 %s, 16, %s' % (v(U+2*j), v(X+j)))
        A('v_and_b32 %s, 0xffff0000, %s' % (v(U+2*j+1), v(X+j)))
        if j in (4, 5): A('v_readlane_b32 %s, %s, 0' % (s(42+j-4), v(D+8*(j-4))))
    for rho in range(2):
        A('v_mul_f32 %s, %s, %s' % (v(S+2*rho), s(42+rho), v(P.ADR+6)))
        A('v_mul_f32 %s, %s, %s' % (v(S+4+2*rho), s(42+rho), v(P.W256+3)))
    for rho in range(2):
        for x in range(2):
            A('v_pk_add_f32 %s, %s, %s op_sel_hi:[1,0]' % (v(D+8*rho+2*x, 2), v(D+8*rho+2*x, 2), v(S+2*rho, 2)))
        for x in range(2):
            o = T + 8*rho + 4*x
            cmul(A, o, o+2, D+8*rho+2*x, D+8*rho+4+2*x, P.TC+2*x, P.TS+2*x, True)
        for r in range(4):
            o = T + 8*rho + 4*(r >> 1) + (r & 1)
            cvt(A, X+4*rho+r, o, o+2)
    M = Rec()
    for rho in range(2):
        mfma(M, D+16+8*rho, X+4*rho, P.BSR)
        mfma(M, D+16+8*rho+4, X+4*rho, P.BSI)
        mfma(M, D+8*rho, X+4*rho, P.BRE)
        mfma(M, D+8*rho+4, X+4*rho, P.BIM)
    V = Rec()
    for rho in range(2):
        for j in range(8):
            h = U + 8*rho + j
            V('v_add_f32 %s, %s, %s' % (v(h), v(h), v(S+4+2*rho)))
    for j in range(4):
        for rho in range(2):
            h = U + 8*rho; d = T + 4*rho
            if j == 0: V('v_pk_mul_f32 %s, %s, %s' % (v(d, 2), v(h, 2), v(h, 2)))
            else: V('v_pk_fma_f32 %s, %s, %s, %s' % (v(d, 2), v(h+2*j, 2), v(h+2*j, 2), v(d, 2)))
    for a_, b_ in ((0, 2), (4, 6), (0, 4)):
        for rho in range(2):
            h = U + 8*rho
            V('v_pk_add_f32 %s, %s, %s' % (v(h+a_, 2), v(h+a_, 2), v(h+b_, 2)))
    for rho in range(2):
        V('v_add_f32 %s, %s, %s' % (v(T+8+rho), v(T+4*rho), v(T+4*rho+1)))
        V('v_add_f32 %s, %s, %s' % (v(T+10+rho), v(U+8*rho), v(U+8*rho+1)))
    interleave(A, M.ops, V.ops, 2)
    fx = ['v_cndmask_b32 %s, %s, %s, %s' % (v(D+4*j), v(D+4*j), v(D+16+4*j), s(sMASK16, 2)) for j in range(4)]
    fx.append('v_mov_b32 %s, %s' % (v(T), fhex(1e-5/SC1**2)))
    fx.append('v_cndmask_b32 %s, %s, %s, %s' % (v(T+2), v(S+6), v(S+4), s(62, 2)))
    A('s_mov_b32 s62, -1')
    A('s_mov_b32 s63, 0')
    for i, op in enumerate(reduce2([(T+8, T+9), (T+10, T+11)])):
        A(op)
        if i & 1 and i > 2 and fx: A(fx.pop(0))
    for op in fx: A(op)
    A('v_mul_f32 %s, %s, %s' % (v(T+10), fhex(1/512), v(T+10)))
    A('v_mul_f32 %s, %s, %s' % (v(T+8), fhex(1/512), v(T+8)))
    A('v_fma_f32 %s, -%s, %s, %s' % (v(T+8), v(T+10), v(T+10), v(T+8)))
    A('v_fmac_f32 %s, %s, %s' % (v(T), fhex(1/SC1**2), v(T+8)))
    A('v_rsq_f32 %s, %s' % (v(T), v(T)))
    A('v_sub_f32 %s, %s, %s' % (v(T+10), v(T+10), v(T+2)))
    A('v_mul_f32 %s, %s, %s' % (v(T), fhex(SC/SC1), v(T)))
    A('v_readlane_b32 s42, %s, 31' % v(T+10))
    A('v_readlane_b32 s62, %s, 31' % v(T))
    A('v_readlane_b32 s63, %s, 63' % v(T))
    A('v_readlane_b32 s43, %s, 63' % v(T+10))
    for c in range(2):
        if c == 1:
            S_(A, 1)
            A('@wv w')
            S_(A, 2)
            for g in range(4):
                A('ds_read_b64_tr_b16 %s, %s offset:%d' % (v(P.WL+2*g, 2), v(P.ADR+1), ldsxs + 2048 + g*512))
        for x in range(2):
            for rho in range(2):
                d = D + 8*rho + 4*c + 2*x
                A('v_pk_mul_f32 %s, %s, s[62:63] op_sel:[0,%d] op_sel_hi:[1,%d]' % (v(d, 2), v(d, 2), rho, rho))
            for r in (2*x, 2*x+1):
                cvt(A, U+4*c+r, D+4*c+r, D+8+4*c+r)
            for r in (2*x, 2*x+1):
                A('v_bfi_b32 %s, %s, %s, %s' % (v(U+4*c+r), v(P.ADR+7), s(46+c), v(U+4*c+r)))
            for r in (2*x, 2*x+1):
                A('ds_write_b32 %s, %s offset:%d' % (v(P.ADR+2), v(U+4*c+r), r*272 + c*2*GP))
    A('s_waitcnt lgkmcnt(4)')
    for g in range(4):
        A('ds_write_b64 %s, %s offset:%d' % (v(P.ADR+5), v(P.WL+2*g, 2), lds + g*GP + 8))
    A('s_cmp_lg_u32 s41, 0\ns_cbranch_scc1 L_w256b\n' + '\n'.join('x_ds_write_b16 %s, %s offset:%d' % (v(P.W256+2), v(P.W256+c), lds + 2*c*GP + 8) for c in range(2)) + '\nL_w256b:')
    S_(A, 3)
    A('s_waitcnt lgkmcnt(0)')
    A('s_barrier')
    S_(A, 4)
    for jj in range(4):
        A('ds_read_b128 %s, %s offset:%d' % (v(D+4*jj, 4), v(P.ADR+4), lds + jj*68*16))
    for jj in range(4):
        A('s_waitcnt lgkmcnt(%d)' % (3-jj))
        A('buffer_store_dwordx4 %s, %s, %s, %s offen sc1' % (v(D+4*jj, 4), v(P.ADR+3), s(SWS, 4), s(48+jj)))
SC1 = 1.0

def p1_keep_x(A, ldsxs):
    A('v_lshlrev_b32 v5, 5, %s' % v(vN))
    A('v_lshl_or_b32 v5, %s, 3, v5' % v(vQ))
    A('s_lshl_b32 s36, %s, 12' % s(sW))
    A('v_add_u32 v5, s36, v5')
    for rho in range(2):
        for t in range(2):
            A('ds_read_b64 %s, v5 offset:%d' % (v(XK+4*rho+2*t, 2), ldsxs + rho*1024 + t*512))

def p2_addr_loads(A):
    P = P2
    A('v_lshrrev_b32 v5, 2, v0')
    A('v_and_b32 v6, 3, v0')
    A('v_mul_u32_u24 v7, %d, v5' % XS)
    A('v_lshl_add_u32 %s, v6, 4, v7' % v(P.ADR))
    A('s_lshl_b32 s52, %s, 6' % s(sB))
    A('s_add_u32 s52, s52, %d' % XW_OFF)
    for jj in range(1, 4):
        A('s_add_u32 %s, s52, %d' % (s(52+jj), jj*64*XS))

def p2_loads(A, mod=''):
    P = P2
    for jj in range(4):
        A('buffer_load_dwordx4 %s, %s, %s, %s offen%s' % (v(P.F+4*jj, 4), v(P.ADR), s(SWS, 4), s(52+jj), mod))

def p2_setup(A, ldsx, ldsw, ldsq):
    P = P2; T = P.F + 16
    A('v_bfe_u32 v5, v0, 1, 1')
    A('v_and_b32 v6, 1, v0')
    A('v_lshlrev_b32 v6, 3, v6')
    A('v_bfe_u32 v7, v0, 2, 4')
    A('v_lshl_or_b32 v7, v7, 4, v6')
    A('s_and_b32 s36, %s, 1' % s(sW))
    A('s_mul_i32 s36, s36, %d' % (2*XC))
    A('s_lshr_b32 s37, %s, 1' % s(sW))
    A('s_lshl_b32 s37, s37, 8')
    A('s_add_u32 s36, s36, s37')
    A('s_add_u32 s36, s36, %d' % ldsx)
    A('v_mul_u32_u24 %s, %d, v5' % (v(P.ADR+1), XC))
    A('v_add3_u32 %s, %s, v7, s36' % (v(P.ADR+1), v(P.ADR+1)))
    A('s_lshl_b32 s36, %s, 8' % s(sW))
    A('s_add_u32 s36, s36, %d' % ldsw)
    A('v_mul_u32_u24 %s, %d, v5' % (v(P.ADR+2), WC))
    A('v_add3_u32 %s, %s, v7, s36' % (v(P.ADR+2), v(P.ADR+2)))
    A('v_and_b32 v5, 63, v0')
    A('v_lshlrev_b32 %s, 4, v5' % v(P.ADR+3))
    A('v_lshlrev_b32 %s, 4, v0' % v(P.ADR+4))
    A('v_lshrrev_b32 v5, 1, %s' % v(vQ))
    A('v_and_b32 v6, 1, %s' % v(vQ))
    A('v_lshlrev_b32 v7, 4, %s' % v(vN))
    A('v_lshl_or_b32 v7, v5, 8, v7')
    A('v_lshl_or_b32 v7, v6, 3, v7')
    A('s_lshl_b32 s36, %s, 9' % s(sW))
    A('s_add_u32 s36, s36, %d' % ldsq)
    A('v_add_u32 %s, s36, v7' % v(P.ADR+5))
    A('v_lshlrev_b32 v7, 5, %s' % v(vN))
    A('v_lshl_or_b32 v7, v5, 10, v7')
    A('v_lshl_or_b32 %s, v6, 4, v7' % v(P.ADR+6))
    A('s_mul_i32 s56, %s, %d' % (s(sB), YS))
    A('s_lshl_b32 s36, %s, 11' % s(sW))
    A('s_add_u32 s56, s56, s36')
    A('s_add_u32 s56, s56, %d' % Y_OFF)
    SG = P.D; J = P.D + 1; W16 = P.D + 2
    A('v_and_b32 v5, 1, %s' % v(vN))
    A('v_mul_u32_u24 v5, 0x8000, v5')
    A('v_lshl_or_b32 %s, v5, 16, v5' % v(SG))
    A('s_lshl_b32 s36, %s, 4' % s(sW))
    A('v_cvt_f32_u32 %s, s36' % v(W16))
    A('v_add_f32 %s, %s, %s' % (v(J), v(W16), v(vNF)))
    A('v_mul_f32 v7, %s, %s' % (fhex(1/64), v(J)))
    A('v_mul_f32 v5, %s, %s' % (v(J), v(vQF)))
    A('v_mul_f32 v6, %s, v5' % fhex(1/8))
    sincos_chain(A, 6, 7, 8, [T+i for i in range(8)], [T+8+i for i in range(8)])
    for j in range(4):
        cvt(A, P.C64+j, T+2*j, T+2*j+1)
        cvt(A, P.S64+j, T+8+2*j, T+8+2*j+1)
        cvt(A, P.N64+j, T+8+2*j, T+8+2*j+1, True, True)
    for j in range(4):
        for base in (P.C64, P.S64, P.N64):
            A('v_xor_b32 %s, %s, %s' % (v(base+4+j), v(SG), v(base+j)))
    A('v_mul_f32 v7, %s, %s' % (fhex(1/2048), v(J)))
    A('v_mul_f32 v6, %s, v5' % fhex(4/2048))
    sincos_chain(A, 6, 7, 4, [P.TC1+r for r in range(4)], [P.TS1+r for r in range(4)])
    A('v_fmac_f32 v6, %s, v7' % fhex(13.0))
    sincos_chain(A, 6, 7, 4, [P.TC1+4+r for r in range(4)], [P.TS1+4+r for r in range(4)])
    A('v_fma_f32 v5, %s, 4.0, %s' % (v(vQF), v(W16)))
    for t in range(2):
        A('v_mul_f32 v7, %s, %s' % (fhex(1/2048), v(vNF)))
        if t:
            A('v_add_f32 v7, %s, v7' % fhex(16/2048))
        A('v_mul_f32 v6, v5, v7')
        sincos_chain(A, 6, 7, 4, [P.TC2+4*t+r for r in range(4)], [P.TS2+4*t+r for r in range(4)])

def p2_tags(A):
    P = P2
    tagbits_s(A, 36, '0', 37)
    A('v_and_b32 v5, 1, v0')
    A('v_lshlrev_b32 v5, 14, v5')
    A('v_and_b32 v6, 2, v0')
    A('v_lshl_or_b32 v5, v6, 28, v5')
    A('v_xor_b32 %s, s36, v5' % v(P.ADR+7))
    A('v_xor_b32 %s, 0x%x, %s' % (v(P.ADR+8), tagconst(1), v(P.ADR+7)))
    A('v_or_b32 %s, 0x%x, %s' % (v(P.ADR+7), STALE, v(P.ADR+7)))
    A('v_and_b32 v5, 1, %s' % v(vQ))
    A('v_lshlrev_b32 v5, 29, v5')
    A('v_xor_b32 %s, s36, v5' % v(P.TG))
    for r in range(1, 4):
        A('v_xor_b32 %s, 0x%x, %s' % (v(P.TG+r), tagconst(r), v(P.TG)))
    A('v_or_b32 %s, 0x%x, %s' % (v(P.TG), STALE, v(P.TG)))
    A('s_mov_b32 s46, 0x%x' % TAGM)

def p2_poll(A, bg=()):
    P = P2; F = P.F
    def check(first):
        for jj in range(4):
            A('@wv h1_%d' % jj if first else 's_waitcnt vmcnt(%d)' % (3-jj))
            for dw in range(2):
                A('v_xor_b32 %s, %s, %s' % (v(F+4*jj+dw), v(P.ADR+7+dw), v(F+4*jj+dw)))
            if jj == 0: A('v_or_b32 v5, %s, %s' % (v(F), v(F+1)))
            else: A('v_or3_b32 v5, v5, %s, %s' % (v(F+4*jj), v(F+4*jj+1)))
        A('v_and_b32 v5, s46, v5')
        A('v_or_b32_dpp v5, v5, v5 quad_perm:[1,0,3,2] row_mask:0xf bank_mask:0xf')
        A('v_or_b32_dpp v5, v5, v5 quad_perm:[2,3,0,1] row_mask:0xf bank_mask:0xf')
    if bg is None:
        A('L_h1slow:')
        A('s_mov_b64 exec, vcc')
        poll_begin(A, 'h1')
        R_ = Rec(); p2_loads(R_, ' sc1')
        for op in R_.ops: A('x_' + op)
        check(False)
        poll_end(A, 'h1', 5)
        A('s_branch L_h1back')
        return
    R_ = Rec(); p2_loads(R_, ' sc1')
    for jj, op in enumerate(R_.ops):
        A(op); A('@mv h1_%d' % jj)
    for g_ in bg:
        for op in g_: A(op)
    check(True)
    A('v_cmp_ne_u32 vcc, 0, v5')
    A('s_cbranch_vccnz L_h1slow')
    A('L_h1back:')

def gen_update(A, name):
    A('s_or_b32 s36, %s, %s' % (s(sB), s(sW)))
    A('s_cbranch_scc1 L_%s' % name)
    A('v_mov_b32 v5, %s' % s(sTAG))
    A('v_mov_b32 v6, 0')
    A('x_buffer_store_dword v5, v6, %s, 0 offen offset:%d' % (s(SWS, 4), GEN_OFF))
    A('L_%s:' % name)

def p2_stage(A, vm_first=3):
    P = P2
    for jj in range(4):
        if vm_first is not None:
            A('s_waitcnt vmcnt(%d)' % (vm_first - jj))
        A('ds_write_b64 %s, %s offset:%d' % (v(P.ADR+1), v(P.F+4*jj, 2), (jj >> 1)*1024 + (jj & 1)*512))
        A('ds_write_b64 %s, %s offset:%d' % (v(P.ADR+2), v(P.F+4*jj+2, 2), jj*1024))
    A('s_waitcnt lgkmcnt(0)')
    A('s_barrier')

def p2_compute_a(A, ldsx, ldsw, ldsq):
    P = P2; F = P.F; D = P.D
    fr = lambda t, c, oh: F + 16*t + 8*c + 4*oh
    for t in range(2):
        for oh in range(2):
            for c in range(2):
                A('ds_read_b128 %s, %s offset:%d' % (v(fr(t, c, oh), 4), v(P.ADR+3), ldsx + t*2*XC + c*XC + oh*1024))
                A('@ml x%d%d%d' % (t, oh, c))
    WP = P.WP
    for c in range(2):
        A('ds_read_b128 %s, %s offset:%d' % (v(WP+4*c, 4), v(P.ADR+4), ldsw + c*WC))
    A('@ml wp')
    for t in range(2):
        dre, dim = D+8*t, D+8*t+4
        for oh in range(2):
            A('@wl x%d%d0' % (t, oh))
            mfma(A, dre, fr(t, 0, oh), P.C64+4*oh, dre if oh else None)
            mfma(A, dim, fr(t, 0, oh), P.N64+4*oh, dim if oh else None)
            A('@wl x%d%d1' % (t, oh))
            mfma(A, dre, fr(t, 1, oh), P.S64+4*oh, dre)
            mfma(A, dim, fr(t, 1, oh), P.C64+4*oh, dim)
    A('@nop split')
    T = F; UR, UI = F + 16, F + 20
    def twiddle_pack(cb, sb, conj):
        for t in range(2):
            for x in range(2):
                o = T + 8*t + 4*x
                cmul(A, o, o+2, D+8*t+2*x, D+8*t+4+2*x, cb+4*t+2*x, sb+4*t+2*x, conj)
            for x in range(2):
                o = T + 8*t + 4*x
                cvt(A, UR+2*t+x, o, o+1)
                cvt(A, UI+2*t+x, o+2, o+3)
    twiddle_pack(P.TC1, P.TS1, True)
    A('@wl wp')
    M = Rec(); V = Rec()
    for t in range(2):
        dre, dim = D+8*t, D+8*t+4
        mfma(M, dre, P.C32+4*t, UR)
        mfma(M, dim, P.C32+4*t, UI)
        mfma(M, dre, P.S32+4*t, UI, dre)
        mfma(M, dim, P.N32+4*t, UR, dim)
    for j in range(4):
        for c in range(2):
            b = (P.TC1, P.TS1)[c] + 2*j
            V('v_lshlrev_b32 %s, 16, %s' % (v(b), v(WP+4*c+j)))
            V('v_and_b32 %s, 0xffff0000, %s' % (v(b+1), v(WP+4*c+j)))
    interleave(A, [' ' + m for m in M.ops], V.ops, 2)
    twiddle_pack(P.TC1, P.TS1, False)
    for t in range(2):
        dre, dim = D+8*t, D+8*t+4
        mfma(A, dre, UR, P.C32+4*t)
        mfma(A, dim, UI, P.C32+4*t)
        mfma(A, dre, UI, P.N32+4*t, dre)
        mfma(A, dim, UR, P.S32+4*t, dim)
    twiddle_pack(P.TC2, P.TS2, False)
    for t in range(2):
        for c in range(2):
            A('ds_write_b64 %s, %s offset:%d' % (v(P.ADR+5), v((UR, UI)[c]+2*t, 2), (2*t+c)*2048))

def p2_compute_b(A, ldsq, st_mod='', tags=True):
    P = P2; F = P.F; D = P.D
    fr = lambda t, c, oh: F + 16*t + 8*c + 4*oh
    for t in range(2):
        for oh in range(2):
            for c in range(2):
                A('ds_read_b128 %s, %s offset:%d' % (v(fr(t, c, oh), 4), v(P.ADR+3), ldsq + (2*t+c)*2048 + oh*1024))
                A('@ml q%d%d%d' % (t, oh, c))
    for t in range(2):
        dre, dim = D+8*t, D+8*t+4
        for oh in range(2):
            M = Rec()
            M('@wl q%d%d0' % (t, oh))
            mfma(M, dre, P.C64+4*oh, fr(t, 0, oh), dre if oh else None)
            mfma(M, dim, P.S64+4*oh, fr(t, 0, oh), dim if oh else None)
            M('@wl q%d%d1' % (t, oh))
            mfma(M, dre, P.N64+4*oh, fr(t, 1, oh), dre)
            mfma(M, dim, P.C64+4*oh, fr(t, 1, oh), dim)
            if (t, oh) != (1, 1):
                for op in M.ops: A(op)
    O = P.TC1
    out = []
    for t in range(2):
        V = Rec()
        for r in range(4):
            cvt(V, O+4*t+r, D+8*t+r, D+8*t+4+r)
        for r in range(4):
            V('v_bfi_b32 %s, s46, %s, %s' % (v(O+4*t+r), v(P.TG+r), v(O+4*t+r)))
        V('buffer_store_dwordx4 %s, %s, %s, s56 offen offset:%d%s' % (v(O+4*t, 4), v(P.ADR+6), s(SWS, 4), t*512, st_mod))
        out.append(V.ops)
    for op in M.ops:
        if op.startswith('@'): A(op)
        else:
            A(' ' + op); A(out[0].pop(0)); A(out[0].pop(0))
    for op in out[0] + out[1]: A(op)

def p3_addr_loads(A):
    P = P3
    A('v_lshrrev_b32 v5, 1, v0')
    A('v_and_b32 v6, 1, v0')
    A('v_mul_u32_u24 v7, %d, v5' % YS)
    A('v_lshl_add_u32 %s, v6, 4, v7' % v(P.ADR))
    A('v_lshlrev_b32 v5, 2, v5')
    A('v_lshl_or_b32 %s, v6, 12, v5' % v(P.ADR+1))
    A('s_lshl_b32 s52, %s, 5' % s(sB))
    A('s_add_u32 s52, s52, %d' % Y_OFF)
    A('s_add_u32 s53, s52, %d' % (128*YS))

def p3_loads(A, mod=''):
    P = P3
    for jj in range(2):
        A('buffer_load_dwordx4 %s, %s, %s, %s offen%s' % (v(P.L+4*jj, 4), v(P.ADR), s(SWS, 4), s(52+jj), mod))

def p3_tags(A):
    P = P3
    tagbits_s(A, 36, '0', 37)
    A('v_and_b32 v5, 1, v0')
    A('v_lshlrev_b32 v5, 29, v5')
    A('v_xor_b32 %s, s36, v5' % v(P.T))
    for e in range(1, 4):
        A('v_xor_b32 %s, 0x%x, %s' % (v(P.T+e), tagconst(e), v(P.T)))
    A('v_or_b32 %s, 0x%x, %s' % (v(P.T), STALE, v(P.T)))

def p3_poll(A, bg=()):
    P = P3; L = P.L
    def check(first):
        for jj in range(2):
            A('@wv h2_%d' % jj if first else 's_waitcnt vmcnt(%d)' % (1-jj))
            for e in range(4):
                A('v_xor_b32 %s, %s, %s' % (v(L+4*jj+e), v(P.T+e), v(L+4*jj+e)))
            if jj == 0: A('v_or_b32 v5, %s, %s' % (v(L), v(L+1)))
            else: A('v_or3_b32 v5, v5, %s, %s' % (v(L+4), v(L+5)))
            A('v_or3_b32 v5, v5, %s, %s' % (v(L+4*jj+2), v(L+4*jj+3)))
        A('v_and_b32 v5, s46, v5')
        A('v_or_b32_dpp v5, v5, v5 quad_perm:[1,0,3,2] row_mask:0xf bank_mask:0xf')
    if bg is None:
        A('L_h2slow:')
        A('s_mov_b64 exec, vcc')
        poll_begin(A, 'h2')
        R_ = Rec(); p3_loads(R_, ' sc1')
        for op in R_.ops: A('x_' + op)
        check(False)
        poll_end(A, 'h2', 5)
        A('s_branch L_h2back')
        return
    R_ = Rec(); p3_loads(R_, ' sc1')
    for jj, op in enumerate(R_.ops):
        A(op); A('@mv h2_%d' % jj)
    for g_ in bg:
        for op in g_: A(op)
    check(True)
    A('v_cmp_ne_u32 vcc, 0, v5')
    A('s_cbranch_vccnz L_h2slow')
    A('L_h2back:')

def p3_setup(A, ldsy):
    P = P3
    A('v_lshlrev_b32 v5, 2, %s' % v(vN))
    A('v_or_b32 v5, v5, %s' % v(vQ))
    A('s_lshl_b32 s36, %s, 11' % s(sW))
    A('s_add_u32 s36, s36, %d' % ldsy)
    A('v_lshl_add_u32 %s, v5, 4, s36' % v(P.ADR+3))
    A('s_and_b32 s36, %s, 7' % s(sB))
    A('s_lshl_b32 s36, s36, 2')
    A('s_add_u32 s36, s36, %s' % s(sW))
    A('s_lshl_b32 s37, s36, 1')
    A('s_and_b32 s37, s37, 15')
    A('v_xor_b32 v5, s37, v5')
    A('v_lshrrev_b32 v6, 5, v5')
    A('v_mul_u32_u24 v6, %d, v6' % XS)
    A('v_and_b32 v5, 31, v5')
    A('v_lshl_add_u32 %s, v5, 4, v6' % v(P.ADR+4))
    A('v_xor_b32 %s, 16, %s' % (v(P.ADR+5), v(P.ADR+4)))
    A('s_lshr_b32 s38, %s, 3' % s(sB))
    A('s_lshl_b32 s38, s38, 9')
    A('s_add_u32 s38, s38, %d' % XW_OFF)
    A('s_mul_i32 s37, s36, %d' % (4*XS))
    A('s_add_u32 s56, s37, s38')
    A('s_add_u32 s57, s56, %d' % (2*XS))
    A('s_mul_i32 s37, s36, %d' % XS)
    A('s_add_u32 s37, s37, s38')
    A('s_add_u32 s58, s37, %d' % (224*XS))
    A('v_and_b32 v5, 7, v0')
    A('v_lshlrev_b32 %s, 4, v5' % v(P.ADR+6))

def p3_xunpack(A):
    P = P3
    for j in range(8):
        A('v_lshlrev_b32 %s, 16, %s' % (v(P.H+2*j), v(XK+j)))
        A('v_and_b32 %s, 0xffff0000, %s' % (v(P.H+2*j+1), v(XK+j)))
    for j in range(8):
        A('v_pk_add_f32 %s, %s, s[42:43] op_sel:[0,%d] op_sel_hi:[1,%d] neg_lo:[0,1] neg_hi:[0,1]' % (v(P.H+2*j, 2), v(P.H+2*j, 2), j >> 2, j >> 2))

def p3_stage(A, ldsy):
    P = P3
    assert ldsy % 256 == 0
    o = ldsy // 256
    for jj in range(2):
        for e in (0, 2):
            A('ds_write2st64_b32 %s, %s, %s offset0:%d offset1:%d' % (v(P.ADR+1), v(P.L+4*jj+e), v(P.L+4*jj+e+1), o + 4*e + 2*jj, o + 4*e + 4 + 2*jj))
    A('s_waitcnt lgkmcnt(0)')
    A('s_barrier')

def p3_compute(A):
    P = P3; D = P.D; T = P.T; H = P.H
    for rho in range(2):
        A('ds_read_b128 %s, %s offset:%d' % (v(P.L+4*rho, 4), v(P.ADR+3), rho*1024))
    for rho in range(2):
        A('s_waitcnt lgkmcnt(%d)' % (1-rho))
        mfma(A, D+16+8*rho, P.L+4*rho, P.BSR)
        mfma(A, D+16+8*rho+4, P.L+4*rho, P.BSI)
        mfma(A, D+8*rho, P.L+4*rho, P.BRE)
        mfma(A, D+8*rho+4, P.L+4*rho, P.BIM)
    for rho in range(2):
        for c in range(2):
            j = 8*rho + 4*c
            A('v_cndmask_b32 %s, %s, %s, %s' % (v(D+j), v(D+j), v(D+16+j), s(sMASK16, 2)))
        for x in range(2):
            o = T + 8*rho + 4*x
            cmul(A, o, o+2, D+8*rho+2*x, D+8*rho+4+2*x, P.TC+2*x, P.TS+2*x, False)
        for r in range(4):
            o = T + 8*rho + 4*(r >> 1) + (r & 1)
            cvt(A, P.L+4*rho+r, o, o+2)
        for t in range(2):
            mfma(A, H+8*rho+4*t, P.L+4*rho, P.CA+4*t, H+8*rho+4*t)
    A('v_mov_b32 %s, %s' % (v(D+2), fhex(1e-5/LOG2E**2)))
    for rho in range(2):
        h = H + 8*rho; d = D + 4 + 4*rho
        A('v_pk_mul_f32 %s, %s, %s' % (v(d, 2), v(h, 2), v(h, 2)))
        for j in range(1, 4):
            A('v_pk_fma_f32 %s, %s, %s, %s' % (v(d, 2), v(h+2*j, 2), v(h+2*j, 2), v(d, 2)))
        A('v_add_f32 %s, %s, %s' % (v(D+rho), v(d), v(d+1)))
    for op in reduce2([(D, D+1)]): A(op)
    A('v_fmac_f32 %s, %s, %s' % (v(D+2), fhex(1/512/LOG2E**2), v(D)))
    A('v_rsq_f32 %s, %s' % (v(D), v(D+2)))
    A('v_readlane_b32 s62, %s, 31' % v(D))
    A('v_readlane_b32 s63, %s, 63' % v(D))
    A('v_mul_f32 %s, %s, %s' % (v(D+2), v(D+2), v(D)))
    for rho in range(2):
        for j in range(4):
            h = H + 8*rho + 2*j
            A('v_pk_mul_f32 %s, %s, s[62:63] op_sel:[0,%d] op_sel_hi:[1,%d]' % (v(h, 2), v(h, 2), rho, rho))
        for j in range(4):
            cvt(A, P.L+4*rho+j, H+8*rho+2*j, H+8*rho+2*j+1)
        A('buffer_store_dwordx4 %s, %s, %s, %s offen sc1' % (v(P.L+4*rho, 4), v(P.ADR+4+rho), s(SWS, 4), s(56+rho)))

def p3_stats(A):
    P = P3; D = P.D
    A('v_readlane_b32 s62, %s, 31' % v(D+2))
    A('v_readlane_b32 s63, %s, 63' % v(D+2))
    A('v_mov_b32 %s, s42' % v(D+4))
    A('v_mov_b32 %s, s43' % v(D+6))
    A('v_mov_b32 %s, s62' % v(D+5))
    A('v_mov_b32 %s, s63' % v(D+7))
    A('s_mov_b64 exec, 0xff\nbuffer_store_dwordx4 %s, %s, %s, s58 offen sc1\ns_mov_b64 exec, -1' % (v(D+4, 4), v(P.ADR+6), s(SWS, 4)))

W1O, W1A, W2O, W2A = 130, 133, 136, 140
def w1reg(ft, kap):
    i = 4*(3*kap + ft)
    return 256 + 176 + i if i < 80 else 252 - (i - 80)
def w2reg(dt, st):
    return 256 + 4*(4*st + dt)

SWZ = [0]
ROT2 = [3]
def w1_addr(A):
    vo, va = W1O, W1A
    A('v_and_b32 v5, 63, v0')
    A('s_and_b32 s36, %s, 7' % s(sB))
    A('s_mul_i32 s36, s36, 24')
    A('s_sub_u32 s36, 172, s36')
    A('v_bfrev_b32 %s, 2' % v(va))
    for u in range(3):
        A('v_add_u32 v6, %d, v5' % (64*u))
        A('v_mul_u32_u24 v7, 0xaab, v6')
        A('v_lshrrev_b32 v7, 16, v7')
        A('v_mul_u32_u24 %s, 24, v7' % v(vo+u))
        A('v_sub_u32 v6, v6, %s' % v(vo+u))
        if SWZ[0] == 0:
            A('v_and_b32 %s, 6, v7' % v(vo+u))
            A('v_xor_b32 v6, v6, %s' % v(vo+u))
        elif SWZ[0] == 2:
            A('v_and_b32 %s, 4, v7' % v(vo+u))
            A('v_sub_u32 v6, v6, %s' % v(vo+u))
            A('v_add_u32 %s, 24, v6' % v(vo+u))
            A('v_min_u32 v6, v6, %s' % v(vo+u))
            A('v_and_b32 %s, 2, v7' % v(vo+u))
            A('v_xor_b32 v6, v6, %s' % v(vo+u))
        A('v_cmp_gt_u32 vcc, s36, v6')
        A('v_mul_u32_u24 v7, 2752, v7')
        A('v_lshl_add_u32 v6, v6, 4, v7')
        A('v_subrev_u32 v6, %d, v6' % (1024*u))
        A('v_cndmask_b32 %s, %s, v6, vcc' % (v(vo+u), v(va)))
    A('s_and_b32 s6, %s, 7' % s(sB))
    A('s_mul_i32 s6, s6, 384')
    A('s_lshr_b32 s36, %s, 1' % s(sW))
    A('s_mul_i32 s36, s36, %d' % (256*2752))
    A('s_add_u32 s6, s6, s36')
    A('s_and_b32 s36, %s, 1' % s(sW))
    A('s_mul_i32 s36, s36, %d' % (8*2752))
    A('s_add_u32 s6, s6, s36')

def w1_addr_rd(A, base):
    va = W1A
    A('v_and_b32 v5, 63, v0')
    A('v_lshrrev_b32 v6, 2, v5')
    A('v_mul_u32_u24 v7, 384, v6')
    A('v_and_b32 v5, 3, v5')
    A('v_lshl_add_u32 v7, v5, 3, v7')
    A('v_add_u32 v7, %d, v7' % base)
    A('s_mul_i32 s36, %s, 3' % s(sW))
    if SWZ[0] == 0:
        A('v_bfe_u32 v6, v6, 1, 2')
        for ft in range(3):
            A('s_add_u32 s37, s36, %d' % ft)
            A('v_xor_b32 v5, s37, v6')
            A('v_lshl_add_u32 %s, v5, 5, v7' % v(va+ft))
    else:
        for ft in range(3):
            A('s_add_u32 s37, s36, %d' % ft)
            A('v_bfe_u32 v5, v6, 1, 1')
            A('v_xor_b32 v5, s37, v5')
            A('v_bfe_u32 %s, v6, 2, 1' % v(va+ft))
            A('v_lshl_add_u32 v5, %s, 1, v5' % v(va+ft))
            A('v_subrev_u32 %s, 12, v5' % v(va+ft))
            A('v_min_u32 v5, v5, %s' % v(va+ft))
            A('v_lshl_add_u32 %s, v5, 5, v7' % v(va+ft))

def w1_dma(A, k0, k1, lds):
    A('s_add_u32 s96, s6, %d' % (16*k0*2752))
    A('s_mul_i32 s97, %s, 3072' % s(sW))
    A('s_add_u32 m0, s97, %d' % lds)
    for k in range(k0, k1):
        for u in range(3):
            A('buffer_load_dwordx4 %s, %s, s96 offen offset:%d lds' % (v(W1O+u), s(SW1, 4), 1024*u))
        if k + 1 < k1:
            A('s_add_u32 m0, m0, 12288')
            A('s_add_u32 s96, s96, %d' % (16*2752))

def w1_read(A, k0, k1, lds, base, tmp=5):
    cur = base; regs = [W1A, W1A+1, W1A+2]
    for k in range(k0, k1):
        off = lds + (k - k0)*12288
        if off + 6144 - cur > 65535:
            for ft in range(3):
                A('v_add_u32 %s, %d, %s' % (v(tmp+ft), off - base, v(W1A+ft)))
            cur = off; regs = [tmp, tmp+1, tmp+2]
        for hi in range(2):
            for ft in range(3):
                A('ds_read_b64_tr_b16 %s, %s offset:%d' % (R(w1reg(ft, k) + 2*hi, 2), v(regs[ft]), off + hi*6144 - cur))

def w2_addr(A):
    vo = W2O
    A('v_and_b32 v5, 63, v0')
    A('v_lshrrev_b32 v6, 3, v5')
    A('v_and_b32 v7, 2, v6')
    A('v_xor_b32 v7, v7, v5')
    A('v_and_b32 v7, 7, v7')
    A('v_lshlrev_b32 v7, 4, v7')
    A('v_lshl_or_b32 %s, v6, 10, v7' % v(vo))
    A('v_xor_b32 v7, 64, %s' % v(vo))
    A('v_add_u32 %s, %d, v7' % (v(vo+1), 7168))
    A('v_add_u32 %s, %d, %s' % (v(vo+2), 2*7168, v(vo)))
    A('v_add_u32 %s, %d, v7' % (v(vo+3), 3*7168))
    A('s_and_b32 s7, %s, 7' % s(sB))
    if FAKE3[0]: A('s_cmp_eq_u32 s7, 3\ns_cselect_b32 s7, 2, s7')
    A('s_lshl_b32 s7, s7, 7')
    A('s_mul_i32 s36, %s, %d' % (s(sW), 11*32*1024))
    A('s_add_u32 s7, s7, s36')

def w2_addr_rd(A, bases):
    A('v_and_b32 v5, 63, v0')
    A('v_bfe_u32 v6, v5, 2, 2')
    A('v_lshl_or_b32 v6, %s, 3, v6' % v(vQ))
    A('v_and_b32 v7, 3, v5')
    A('v_lshlrev_b32 v7, 3, v7')
    A('v_lshl_or_b32 v7, v6, 7, v7')
    A('v_bfe_u32 v6, v5, 3, 2')
    A('v_xor_b32 v6, %s, v6' % s(sW))
    A('v_lshl_or_b32 v7, v6, 5, v7')
    for lds, va in bases:
        A('s_lshl_b32 s36, %s, 12' % s(sW))
        A('s_add_u32 s36, s36, %d' % lds)
        A('v_add_u32 %s, s36, v7' % v(va[0]))
        for dt in range(1, 4):
            A('v_xor_b32 %s, %d, %s' % (v(va[dt]), 32*dt, v(va[0])))

def w2_dma(A, st, lds):
    A('s_add_u32 m0, s51, %d' % lds)
    A('s_add_u32 s96, s7, %d' % (st << 15))
    for u in range(4):
        A('buffer_load_dwordx4 %s, %s, s96 offen offset:%d lds' % (v(W2O+u), s(SW2, 4), 1024*u))

def w2_read(A, st, va, off):
    for dt in range(4):
        for hi in range(2):
            A('ds_read_b64_tr_b16 %s, %s offset:%d' % (R(w2reg(dt, st) + 2*hi, 2), v(va[dt]), off + hi*512))

def touch_weights(A, dst, srd):
    A('s_lshl_b32 s59, %s, 2' % s(sB))
    A('s_add_u32 s59, s59, %s' % s(sW))
    A('s_mul_i32 s59, s59, %d' % (11*128))
    A('v_min_u32 v221, 10, %s' % v(vN))
    A('v_lshlrev_b32 v221, 7, v221')
    A('buffer_load_dword %s, v221, %s, s59 offen' % (v(dst), s(srd, 4)))

def touch_slice3(A, dst):
    A('s_and_b32 s59, %s, 31' % s(sB))
    A('s_lshl_b32 s59, s59, 2')
    A('s_add_u32 s59, s59, %s' % s(sW))
    A('s_mul_i32 s59, s59, %d' % (11*1024))
    A('v_min_u32 v221, 10, %s' % v(vN))
    A('v_lshlrev_b32 v221, 10, v221')
    A('buffer_load_dword %s, v221, %s, s59 offen offset:384' % (v(dst), s(SW2, 4)))

def poison_ops(vp, va):
    A = Rec()
    for i in range(4):
        A('v_mov_b32 %s, 0x70007000' % v(vp+i))
    A('v_bfe_u32 %s, v0, 5, 1' % v(va))
    A('v_mul_u32_u24 %s, %d, %s' % (v(va), 96*XS//16, v(va)))
    A('v_and_or_b32 %s, v0, 31, %s' % (v(va), v(va)))
    A('v_lshlrev_b32 %s, 4, %s' % (v(va), v(va)))
    A('s_and_b32 s98, %s, 7' % s(sB))
    A('s_lshl_b32 s98, s98, 2')
    A('s_add_u32 s98, s98, %s' % s(sW))
    A('s_mul_i32 s98, s98, %d' % (3*XS))
    A('s_lshr_b32 s99, %s, 3' % s(sB))
    A('s_lshl_b32 s99, s99, 9')
    A('s_add_u32 s98, s98, s99')
    for i in range(3):
        A('s_add_u32 s99, s98, %d' % (E_OFF + i*XS))
        A('buffer_store_dwordx4 %s, %s, %s, s99 offen sc1' % (v(vp, 4), v(va), s(SWS, 4)))
    return A.ops

HB = [E_OFF, E_OFF + 96*XS, Y_OFF, XW_OFF + 128*XS]
class G1:
    ACC = 40
    BF = 64
    T = 96
    O = 108
    CK = 116
    ADR = 18
    AD2 = 26
    GA = [22, 29, 38, 39]
    SH = 8
class G2:
    ADR = 8
    ST = 64
    GR = 30
    SS = [54, 55, 59, 23]
    CK = 72
    ACC = 256 + 176
    SO = 12

def g1_setup_dma(A):
    G = G1
    A('v_bfe_u32 v5, v0, 5, 1')
    A('v_mul_u32_u24 v5, %d, v5' % (XS//16))
    A('v_and_or_b32 v5, v0, 31, v5')
    A('v_lshlrev_b32 %s, 4, v5' % v(G.ADR+4))
    for u in range(1, 4):
        A('v_add_u32 %s, %d, %s' % (v(G.GA[u]), u*(2*XS - 1024), v(G.ADR+4)))
    A('s_lshl_b32 s51, %s, 12' % s(sW))
    A('s_lshr_b32 s36, %s, 3' % s(sB))
    A('s_lshl_b32 s36, s36, 9')
    A('s_mul_i32 s37, %s, %d' % (s(sW), 8*XS))
    A('s_add_u32 s50, s36, s37')

def g1_setup(A):
    G = G1
    for k in range(4):
        A('v_or_b32 v5, %d, %s' % (4*k, v(vQ)))
        A('v_xor_b32 v5, v5, %s' % v(vN))
        A('v_lshlrev_b32 v5, 4, v5')
        A('v_lshl_or_b32 %s, %s, 10, v5' % (v(G.ADR+k), v(vN)))
    A('v_and_b32 v5, 63, v0')
    A('v_lshl_add_u32 %s, v5, 4, s51' % v(G.ADR+7))
    A('s_mov_b32 s40, 0x%x' % STALE)
    A('v_and_b32 v5, 1, %s' % v(vQ))
    A('v_mul_u32_u24 v6, %d, v5' % XS)
    A('v_lshl_add_u32 v6, %s, 4, v6' % v(vN))
    A('v_lshlrev_b32 v5, 30, v5')
    A('v_lshl_or_b32 v5, %s, 4, v5' % v(vN))
    A('v_add_u32 v5, %d, v5' % (2*XS))
    A('v_lshrrev_b32 v7, 1, %s' % v(vQ))
    A('v_lshl_add_u32 %s, v7, 8, v6' % v(G.ADR+5))
    A('v_lshl_add_u32 %s, v7, 8, v5' % v(G.ADR+6))
    A('v_mul_u32_u24 v7, %d, v7' % YS)
    A('v_add_u32 %s, v7, v6' % v(G.AD2))
    A('v_add_u32 %s, v7, v5' % v(G.AD2+1))
    A('s_and_b32 s38, %s, 7' % s(sB))
    A('s_lshl_b32 s39, s38, 2')
    A('s_add_u32 s39, s39, %s' % s(sW))
    A('s_mul_i32 s36, s39, %d' % (3*XS))
    A('s_lshr_b32 s37, %s, 3' % s(sB))
    A('s_lshl_b32 s37, s37, 8')
    A('s_add_u32 s36, s36, s37')
    A('s_add_u32 %s, s36, %d' % (s(G.SH+2), HB[2]))
    A('s_add_u32 s36, s36, s37')
    for rt in (0, 1, 3):
        A('s_add_u32 %s, s36, %d' % (s(G.SH+rt), HB[rt]))
    A('s_and_b32 s39, s39, 15')
    A('s_lshl_b32 s39, s39, 2')
    A('v_or_b32 v5, s39, %s' % v(vQ))
    A('v_xor_b32 v5, v5, %s' % v(vN))
    A('v_lshlrev_b32 v5, 4, v5')
    A('v_lshl_or_b32 v5, %s, 10, v5' % v(vN))
    A('s_lshr_b32 s38, s38, 2')
    A('s_lshl_b32 s38, s38, 3')
    A('v_or_b32 %s, s38, v5' % v(G.AD2+2))

def g1_dma_rt(A, rt, pre=''):
    G = G1
    A('s_add_u32 m0, s51, %d' % (rt*16384))
    so = 99 if pre else 98
    A('s_add_u32 %s, s50, %d' % (s(so), XW_OFF + 32*rt*XS))
    for u in range(4):
        A('%sbuffer_load_dwordx4 %s, %s, %s offen offset:%d sc1 lds' % (pre, v(G.GA[u]), s(SWS, 4), s(so), 1024*u))

def g1_check_rd(A, rt, pre=''):
    G = G1
    for u in (0, 2):
        A('%sds_read2st64_b32 %s, %s offset0:%d offset1:%d' % (pre, v(G.CK+u, 2), v(G.ADR+7), rt*64 + u*4, rt*64 + u*4 + 4))
def g1_check_cmp(A):
    G = G1
    A('v_max3_f32 %s, |%s|, |%s|, |%s|' % (v(G.CK), v(G.CK), v(G.CK+1), v(G.CK+2)))
    A('v_max_f32 %s, %s, |%s|' % (v(G.CK), v(G.CK), v(G.CK+3)))
    A('v_cmp_le_f32 vcc, s40, %s' % v(G.CK))

def g1_slow(A):
    for rt in range(4):
        A('L_gslow%d:' % rt)
        A('s_mov_b32 s38, m0')
        A('s_movk_i32 s47, %d' % SPIN)
        A('L_gspin%d:' % rt)
        if CNT[0]: A('s_add_u32 s100, s100, %d' % (1 << 8*rt))
        g1_dma_rt(A, rt, 'x_')
        A('s_waitcnt vmcnt(0)')
        g1_check_rd(A, rt, 'x_')
        A('s_waitcnt lgkmcnt(0)')
        g1_check_cmp(A)
        A('s_sub_u32 s47, s47, 1')
        A('s_cselect_b64 vcc, 0, vcc')
        A('s_cbranch_vccnz L_gspin%d' % rt)
        A('s_mov_b32 m0, s38')
        A('s_branch L_gback%d' % rt)

def silu_ops(rt):
    G = G1; ops = []
    for ft in range(3):
        acc = G.ACC + 12*(rt & 1) + 4*ft; t = G.T + 4*ft
        for r in range(4):
            ops.append('v_exp_f32 %s, -%s' % (v(t+r), v(acc+r)))
        for r in range(4):
            ops.append('v_add_f32 %s, 1.0, %s' % (v(t+r), v(t+r)))
        for r in range(4):
            ops.append('v_rcp_f32 %s, %s' % (v(t+r), v(t+r)))
        for r in range(4):
            ops.append('v_mul_f32 %s, %s, %s' % (v(t+r), v(t+r), v(acc+r)))
        for x in range(2):
            ops.append('v_cvt_pk_bf16_f32 %s, %s, %s' % (v(G.O+2*ft+x), v(t+2*x), v(t+2*x+1)))
        if ft:
            o = G.O + 4*(ft-1)
            ops.append('v_permlane16_swap_b32 %s, %s' % (v(o), v(o+2)))
            ops.append('v_permlane16_swap_b32 %s, %s' % (v(o+1), v(o+3)))
            ops.append('buffer_store_dwordx4 %s, %s, %s, %s offen sc1' % (v(o, 4), v(G.AD2+ft-1 if rt == 2 else G.ADR+4+ft), s(SWS, 4), s(G.SH+rt)))
    return ops

def op_cost(op):
    if op.startswith('@m'): return 0
    return 8 if any(op.startswith(t) for t in TRANS) else 4

KORD = [(6 + i) % 16 for i in range(16)]
def g1_compute(A, pre=(), rd0=(), bg=(), pace=6, ek=50, ne=11, dens=8, ck=6, pace0=4, S=lambda A, i: None):
    G = G1
    DEPTH = 6; nxt = [0]
    def rd(K):
        rt, k = K >> 4, KORD[K & 15]
        A('ds_read_b128 %s, %s offset:%d' % (v(G.BF+4*(K & 7), 4), v(G.ADR+(k & 3)), rt*16384 + (k >> 2)*256))
        A('@ml b%d' % K)
    def chk1(rt):
        A('@wv g%d' % rt); g1_check_rd(A, rt); A('@ml ck')
    def chk2(rt):
        A('@wl ck'); g1_check_cmp(A)
    def chk3(rt):
        A('s_cbranch_vccnz L_gslow%d' % rt)
        A('L_gback%d:' % rt)
        A('s_barrier')
    A('@mv bgend')
    chk1(0); A('s_waitcnt lgkmcnt(0)'); g1_check_cmp(A); chk3(0)
    for op in pre: A(op)
    S(A, 0)
    for K in range(DEPTH): rd(K)
    bg = list(bg); rd0 = list(rd0); early = []
    pend = []
    def slots(op): return 2 if any(op.startswith(t) for t in TRANS) else 1
    def make(ops):
        out = []
        for op in ops:
            I_ = Ins(op); deps = []
            for e in out:
                P_ = e[3]
                if set(P_.w) & (set(I_.r) | set(I_.w)) or set(P_.r) & set(I_.w): deps.append(e)
            out.append([op, deps, None, I_])
        return out
    gap = 0
    A('@wl b1')
    for K in range(64):
        rt, k = K >> 4, K & 15
        for ft in range(3):
            gap += 1
            acc = G.ACC + 12*(rt & 1) + 4*ft
            mfma(A, acc, w1reg(ft, KORD[k]), G.BF+4*(K & 7), acc if k else None)
            free = 2; sc = 1
            def put(op):
                nonlocal free, sc
                A(op)
                if op.startswith('@m'): return
                if op.startswith('s_') or op.startswith('@w'):
                    if sc: sc = 0
                    else: free -= 1
                else:
                    sc = 0; free -= slots(op)
            if ft == 2 and K % 2 == 1 and K < 63: put('@wl b%d' % (K+2))
            if rt < 3:
                if k == ck and ft == 1:
                    put('@wv g%d' % (rt+1)); R_ = Rec(); g1_check_rd(R_, rt+1)
                    for op in R_.ops: put(op)
                    put('@ml ck')
                if k == 8 and ft == 1:
                    put('@wl ck'); R_ = Rec(); g1_check_cmp(R_); cmp_ = R_.ops
                    put(cmp_[0]); put(cmp_[1])
                if k == 8 and ft == 2: put(cmp_[2])
                if k == 9 and ft == 0: put('s_cbranch_vccnz L_gslow%d\nL_gback%d:' % (rt+1, rt+1))
                if k == 9 and ft == 1: put('s_barrier')
            if bg and K >= bg[0][0]:
                grp = bg[0][1]
                if not grp[0].startswith('buffer_'):
                    if sc and not (rd0 and grp[0] == '@wl rd0'):
                        put(grp.pop(0))
                elif gap >= nxt[0] and free >= 1:
                    for op in grp: put(op)
                    put('@mv bgend'); bg.pop(0)
                    nxt[0] = max(nxt[0], gap - 2) + (pace if K >= 16 else pace0)
            if ft == 0 and K + DEPTH < 64:
                rd(K + DEPTH); free -= 1; sc = 0
            if k == 0 and ft == 1:
                put('ds_read_b64 %s, %s offset:%d' % (v(G2.GR+2*rt, 2), v(G.AD2+2), rt*16384))
            if K >= ek and ft == 0 and len(early) < ne:
                i = len(early); early.append(i)
                assert 1 + 3*(k - 1) > i
                put(g2_load(i // 11, i % 11)); put('@mv h%d_%d' % (i // 11, i % 11))
            if K == 0 and ft == 0: A('@ml rd0')
            if rd0 and free >= 1:
                if rd0[0].startswith('@w'): put(rd0.pop(0))
                put(rd0.pop(0)); put('@ml rd0')
            if k >= 1:
                left = (15 - k)*3 + (2 - ft)
                while True:
                    todo = [e for e in pend if e[2] is None]
                    need_ = sum(slots(e[0]) for e in todo)
                    over = need_ > dens*left/6
                    ready = [e for e in todo[:14] if all(d[2] is not None and (d[2] < gap or not (d[3].trans or e[3].perml)) for d in e[1])]
                    pick = [e for e in ready if slots(e[0]) == free] or [e for e in ready if slots(e[0]) <= free]
                    if not pick and over and free >= 0: pick = [e for e in ready if slots(e[0]) <= free + 1]
                    if not pick: break
                    pick[0][2] = gap; put(pick[0][0])
        if k == 15:
            for e in pend:
                if e[2] is None: A(e[0])
            fill = silu_ops(rt); pend = make(fill)
            S(A, 1 + rt)
    assert not bg
    return fill, len(early)

def hf(rt, st):
    return 252 - 4*(11*rt + st)

def g2_setup(A, ldsr):
    G = G2
    A('s_lshr_b32 s36, %s, 3' % s(sB))
    A('s_lshl_b32 s37, s36, 8')
    A('s_add_u32 s38, s37, %d' % HB[2])
    A('v_mul_u32_u24 v5, %d, %s' % (YS, v(vQ)))
    A('v_lshl_add_u32 v5, %s, 4, v5' % v(vN))
    A('v_add_u32 %s, s38, v5' % v(G.ADR+2))
    A('v_and_b32 v6, 1, %s' % v(vQ))
    A('v_mul_u32_u24 v6, %d, v6' % (YS - 256))
    A('v_sub_u32 v5, v5, v6')
    A('s_lshl_b32 s37, s36, 9')
    for rt in (0, 1, 3):
        A('s_add_u32 s38, s37, %d' % HB[rt])
        A('v_add_u32 %s, s38, v5' % v(G.ADR+rt))
    A('s_mul_i32 %s, %s, %d' % (s(G.SO), s(sW), 22*XS))
    for st in range(1, 11):
        A('s_add_u32 %s, %s, %d' % (s(G.SO+st), s(G.SO), st*2*XS))
    A('v_lshrrev_b32 v5, 1, %s' % v(vN))
    A('v_mul_u32_u24 v5, %d, v5' % XS)
    A('v_and_b32 v6, 1, %s' % v(vN))
    A('v_lshl_add_u32 %s, v6, 3, v5' % v(G.ADR+8))
    for rt in range(4):
        A('s_add_u32 %s, s37, %d' % (s(G.SS[rt]), XW_OFF + (224 + 8*rt)*XS))
    A('v_and_b32 v5, 63, v0')
    A('v_lshlrev_b32 v5, 4, v5')
    for dl in range(4):
        A('s_xor_b32 s38, %s, %d' % (s(sW), dl))
        A('s_mul_i32 s39, s38, 12288')
        A('s_add_u32 s39, s39, %d' % (ldsr + max(dl-1, 0)*4096))
        A('v_add_u32 %s, s39, v5' % v(G.ADR+4+dl))
    A('s_and_b32 s38, %s, 7' % s(sB))
    A('s_lshl_b32 s38, s38, 2')
    A('s_add_u32 s38, s38, %s' % s(sW))
    A('s_lshl_b32 s38, s38, 5')
    A('s_lshr_b32 s37, %s, 5' % s(sB))
    A('s_lshl_b32 s37, s37, 8')
    A('s_and_b32 s39, %s, 24' % s(sB))
    A('s_add_u32 s37, s37, s39')
    A('s_lshl_b32 s37, s37, 10')
    A('s_add_u32 s44, s37, s38')
    A('s_add_u32 s45, s44, 4096')
    A('v_and_b32 v5, 7, %s' % v(vN))
    A('v_lshlrev_b32 v5, 15, v5')
    A('v_lshrrev_b32 v6, 3, %s' % v(vN))
    A('v_lshl_or_b32 v5, v6, 10, v5')
    A('v_and_b32 v6, 1, %s' % v(vQ))
    A('v_lshl_or_b32 v5, v6, 11, v5')
    A('v_lshrrev_b32 v6, 1, %s' % v(vQ))
    A('v_lshl_or_b32 %s, v6, 4, v5' % v(G.ADR+9))

def g2_load(rt, st, pre=''):
    G = G2
    return '%sbuffer_load_dwordx4 %s, %s, %s, %s offen sc1' % (pre, v(hf(rt, st), 4), v(G.ADR+rt), s(SWS, 4), s(G.SO+st))

CHUNKS = [(0, 3), (3, 6), (6, 9), (9, 11)]
def g2_check_ops(rt, c):
    G = G2; a_, b_ = CHUNKS[c]
    return ['@wv h%d_%d' % (rt, b_-1),
            'v_max3_f32 %s, |%s|, |%s|, |%s|' % (v(G.CK), v(hf(rt, a_)), v(hf(rt, a_+1)), v(hf(rt, b_-1))),
            'v_cmp_le_f32 vcc, s40, %s' % v(G.CK),
            's_cbranch_vccnz L_hslow%d%d\nL_hback%d%d:' % (rt, c, rt, c)]

def g2_slow(A):
    G = G2
    for rt in range(4):
        for c in range(4):
            A('L_hslow%d%d:' % (rt, c))
            A('s_call_b64 s[48:49], L_hre%d' % rt)
            A('s_branch L_hback%d%d' % (rt, c))
        A('L_hre%d:' % rt)
        A('s_movk_i32 s47, %d' % SPIN)
        A('L_hspin%d:' % rt)
        if CNT[0]: A('s_add_u32 s101, s101, %d' % (1 << 8*rt))
        for st in range(11): A(g2_load(rt, st, 'x_'))
        A('s_waitcnt vmcnt(0)')
        A('v_max3_f32 %s, |%s|, |%s|, |%s|' % (v(G.CK), v(hf(rt, 0)), v(hf(rt, 1)), v(hf(rt, 2))))
        for st in range(3, 11, 2):
            A('v_max3_f32 %s, %s, |%s|, |%s|' % (v(G.CK), v(G.CK), v(hf(rt, st)), v(hf(rt, st+1))))
        A('v_cmp_le_f32 vcc, s40, %s' % v(G.CK))
        A('s_sub_u32 s47, s47, 1')
        A('s_cselect_b64 vcc, 0, vcc')
        A('s_cbranch_vccnz L_hspin%d' % rt)
        A('s_setpc_b64 s[48:49]')

def g2_red_writes(rt):
    G = G2
    return ['ds_write_b128 %s, %s offset:%d' % (v(G.ADR+4+dl), R(g2acc(rt, dl), 4), rt*1024) for dl in range(1, 4)]

HS = 40
VACC = [76, 56, 60, 24]
RT_ = 208
def g2acc(rt, dl):
    return VACC[rt] if dl == 0 else G2.ACC + 16*rt + 4*dl
def g2_res_ops(j):
    G = G2; ops = []
    for x in range(4*j, 4*j+4):
        ops.append('v_lshlrev_b32 %s, 16, %s' % (v(HS+2*x), v(G.GR+x)))
        ops.append('v_and_b32 %s, 0xffff0000, %s' % (v(HS+2*x+1), v(G.GR+x)))
    for x in range(8*j, 8*j+8):
        ops.append('v_fma_f32 %s, %s, %s, %s' % (v(HS+x), v(HS+x), v(G.ST+2*(x >> 2)+1), v(G.ST+2*(x >> 2))))
    return ops
def g2_red_reads(rt):
    return ['ds_read_b128 %s, %s offset:%d' % (v(RT_+12*rt+4*k, 4), v(G2.ADR+4), k*4096 + rt*1024) for k in range(3)] + ['@ml rr%d' % rt]
def g2_out_ops(rt, pk):
    G = G2; t = RT_ + 12*rt; a_ = VACC[rt]; O = G.GR; ops = ['@wl rr%d' % rt]
    if pk:
        for x in range(2):
            ops.append('v_pk_add_f32 %s, %s, %s' % (v(t+2*x, 2), v(t+2*x, 2), v(t+4+2*x, 2)))
            ops.append('v_pk_add_f32 %s, %s, %s' % (v(a_+2*x, 2), v(a_+2*x, 2), v(t+8+2*x, 2)))
        for x in range(2):
            ops.append('v_pk_add_f32 %s, %s, %s' % (v(t+2*x, 2), v(t+2*x, 2), v(a_+2*x, 2)))
        for x in range(2):
            ops.append('v_pk_fma_f32 %s, %s, s[62:63], %s' % (v(t+2*x, 2), v(t+2*x, 2), v(HS+4*rt+2*x, 2)))
    else:
        for x in range(4):
            ops.append('v_add_f32 %s, %s, %s' % (v(t+x), v(t+x), v(t+4+x)))
            ops.append('v_add_f32 %s, %s, %s' % (v(a_+x), v(a_+x), v(t+8+x)))
        for x in range(4):
            ops.append('v_add_f32 %s, %s, %s' % (v(t+x), v(t+x), v(a_+x)))
        for x in range(4):
            ops.append('v_fma_f32 %s, %s, s62, %s' % (v(t+x), v(t+x), v(HS+4*rt+x)))
    O = OUTR
    for x in range(2):
        ops.append('v_cvt_pk_bf16_f32 %s, %s, %s' % (v(O+2*rt+x), v(t+2*x), v(t+2*x+1)))
    if rt & 1:
        o = O + 4*(rt >> 1)
        ops.append('v_permlane16_swap_b32 %s, %s' % (v(o), v(o+2)))
        ops.append('v_permlane16_swap_b32 %s, %s' % (v(o+1), v(o+3)))
        ops.append('buffer_store_dwordx4 %s, %s, %s, %s offen%s' % (v(o, 4), v(G.ADR+9), s(SOUT, 4), s(44 + (rt >> 1)), OMOD[0]))
    return ops
OUTR = 200
OMOD = ['']

def g2_main(A, tail, done, w2late, ahead=14, tgap=48, b2=0, S=lambda A, i: None):
    G = G2
    loads = [(rt, st) for rt in range(4) for st in range(11)][done:]
    late = []
    for st in sorted(w2late): late += [(st, op) for op in w2late[st]]
    def ld():
        rt, st = loads.pop(0)
        assert hf(rt, st) >= 144 or not late
        A(g2_load(rt, st)); A('@mv h%d_%d' % (rt, st))
    def lrd():
        st, op = late.pop(0); A(op); A('@ml w2_%d' % st)
    acc = 0; n = done
    for op in tail:
        A(op); acc += op_cost(op)
        if acc >= tgap and n < ahead: ld(); n += 1; acc = 0
    if DLY[0]:
        A('s_memrealtime s[62:63]'); A('s_waitcnt lgkmcnt(0)'); A('s_add_u32 s36, s62, %d' % DLY[0])
        A('L_dly:'); A('s_memrealtime s[62:63]'); A('s_waitcnt lgkmcnt(0)'); A('s_cmp_lt_u32 s62, s36'); A('s_cbranch_scc1 L_dly')
        if DLY[0] & 1:
            for rt_ in range(4):
                for st_ in range(11):
                    A('x_buffer_load_dwordx4 v[252:255], %s, %s, %s offen sc1' % (v(G.ADR+rt_), s(SWS, 4), s(G.SO+st_)))
            A('s_waitcnt vmcnt(0)'); A('s_barrier')
    S(A, 0)
    while n < ahead: ld(); n += 1
    A('@wv bgend')
    for _ in range(24):
        if late: lrd()
    for op in g2_check_ops(0, 0): A(op)
    S(A, 2)
    fill = []
    for rt in range(4):
        for st in range(11):
            chk = []
            for c, (a_, b_) in enumerate(CHUNKS):
                if st == b_ - 1 and (rt, c) != (3, 3): chk = g2_check_ops(rt + (c+1)//4, (c+1) % 4)
            if rt == 0 and st in w2late:
                while late and late[0][0] <= st: lrd()
                A('@wl w2_%d' % st)
            for dl in range(4):
                d_ = (dl + 1) % 4; acc = g2acc(rt, d_)
                mfma(A, acc, w2reg(d_, st), hf(rt, st), acc if st else None)
                if dl == 0 and loads: ld()
                elif chk:
                    if dl == 1: A(chk[0]); A(chk[1])
                    elif dl >= 2: A(chk[dl])
                elif late:
                    for _ in range(2):
                        if late: lrd()
                elif fill and (st >= 2 or not fill[0].startswith('ds_write')):
                    if fill[0].startswith('@w') or fill[0].startswith('s_'): A(fill.pop(0))
                    for _ in range(2):
                        if fill and not (fill[0].startswith('@w') or fill[0].startswith('s_')) and (st >= 2 or not fill[0].startswith('ds_write')):
                            op = fill.pop(0)
                            if op != '@nop gap': A(op)
                            if fill and fill[0].startswith('@m'): A(fill.pop(0))
            if rt == 0 and st == 5: S(A, 3)
        if rt == 0:
            A('s_barrier')
            fill = ['buffer_load_dwordx2 %s, %s, %s, %s offen sc1' % (v(G.ST+2*r_, 2), v(G.ADR+8), s(SWS, 4), s(G.SS[r_])) for r_ in range(4)] + ['@mv st']
            S(A, 4)
        if rt < 3: fill += g2_red_writes(rt)
        if rt == 1:
            fill += ['s_mov_b32 s62, %s' % fhex(1/LOG2E), 's_mov_b32 s63, s62', '@wv st'] + g2_res_ops(0) + ['s_waitcnt lgkmcnt(0)', 's_barrier']
            fill += g2_red_reads(0) + g2_red_reads(1) + g2_res_ops(1)
        if rt == 2:
            fill += g2_out_ops(0, False)
            if b2: fill += ['s_waitcnt lgkmcnt(0)', 's_barrier'] + g2_red_reads(2)
            fill += g2_out_ops(1, False)
        if rt == 1: S(A, 1)
    assert not loads
    for op in fill: A(op)

def g2_finish(A, b2):
    if b2:
        ops = g2_out_ops(2, False)
        for op in ops[:5]: A(op)
        for op in g2_red_writes(3): A(op)
        for op in ops[5:]: A(op)
    else:
        for op in g2_red_writes(3): A(op)
    A('s_waitcnt lgkmcnt(0)')
    A('s_barrier')
    rts = (3,) if b2 else (2, 3)
    for rt in rts:
        for op in g2_red_reads(rt): A(op)
    for rt in rts:
        for op in g2_out_ops(rt, True): A(op)

CLK = ['s_memrealtime']
def stamp(A, idx):
    A('%s %s' % (CLK[0], s(64 + 2*idx, 2)))
def stamp_dump(A, slot, n):
    A('s_waitcnt vmcnt(0) lgkmcnt(0)')
    stamp(A, n)
    A('s_waitcnt lgkmcnt(0)')
    A('v_mov_b32 v5, 0')
    for i in range(n + 1):
        A('v_writelane_b32 v5, %s, %d' % (s(64 + 2*i), i))
    if CNT[0]:
        A('v_writelane_b32 v5, s2, 1')
        A('v_writelane_b32 v5, s100, 3')
        A('v_writelane_b32 v5, s101, 6')
    A('s_lshl_b32 s36, %s, 2' % s(sB))
    A('s_add_u32 s36, s36, %s' % s(sW))
    A('s_lshl_b32 s36, s36, 6')
    A('s_add_u32 s36, s36, %d' % (STAMP_OFF + slot*65536))
    A('v_and_b32 v6, 63, v0')
    A('v_lshlrev_b32 v6, 2, v6')
    A('s_mov_b64 exec, 0xffff')
    A('buffer_store_dword v5, v6, %s, s36 offen sc1' % s(SWS, 4))

def readout(A, pt, op, wait_us=34, add_us=40):
    A('s_mov_b64 exec, -1')
    A('s_or_b32 s36, %s, %s' % (s(sB), s(sW)))
    A('s_cbranch_scc1 L_end')
    A('L_ro1:')
    A('s_memrealtime s[62:63]')
    A('s_waitcnt lgkmcnt(0)')
    A('s_sub_u32 s62, s62, s64')
    A('s_cmp_lt_u32 s62, %d' % (wait_us*100))
    A('s_cbranch_scc1 L_ro1')
    A('v_lshlrev_b32 v6, 6, v0')
    A('s_mov_b32 s36, %d' % (STAMP_OFF + pt*4))
    for i in range(16):
        A('buffer_load_dword %s, v6, %s, s36 offen sc1' % (v(8+i), s(SWS, 4)))
        A('s_add_u32 s36, s36, 4096')
    A('s_waitcnt vmcnt(0)')
    for i in range(16):
        A('v_subrev_u32 %s, s64, %s' % (v(8+i), v(8+i)))
    for i in range(1, 16):
        A('v_%s_i32 v8, v8, %s' % (op, v(8+i)))
    for mod in ('quad_perm:[1,0,3,2]', 'quad_perm:[2,3,0,1]', 'row_ror:4', 'row_ror:8'):
        A('v_%s_i32_dpp v8, v8, v8 %s row_mask:0xf bank_mask:0xf' % (op, mod))
    for st in (16, 32):
        A('v_mov_b32 v9, v8')
        A('v_permlane%d_swap_b32 v8, v9' % st)
        A('v_%s_i32 v8, v8, v9' % op)
    A('v_readfirstlane_b32 s36, v8')
    A('s_add_u32 s36, s36, %d' % (add_us*100))
    A('s_min_u32 s36, s36, 20000')
    A('L_ro2:')
    A('s_memrealtime s[62:63]')
    A('s_waitcnt lgkmcnt(0)')
    A('s_sub_u32 s62, s62, s64')
    A('s_cmp_lt_u32 s62, s36')
    A('s_cbranch_scc1 L_ro2')
```
